```python
import torch

def _softmax(x, axis=-1):
    return torch.softmax(x, dim=axis)
def _gelu(x):
    return torch.nn.functional.gelu(x, approximate="tanh")
def _silu(x):
    return torch.nn.functional.silu(x)
def _sigmoid(x):
    return torch.sigmoid(x)
def _layernorm(x, axis=-1, eps=1e-5):
    m = x.mean(dim=axis, keepdim=True)
    v = x.var(dim=axis, keepdim=True, unbiased=False)
    return (x - m) / torch.sqrt(v + eps)
def _scatter_add(tgt, idx, src, axis=0):
    return tgt.clone().index_add_(axis, idx, src)
def _segment_sum(src, seg, n):
    out = torch.zeros((n,) + src.shape[1:], dtype=src.dtype)
    return out.index_add_(0, seg, src)
def _pad(x, pw):
    flat = tuple(v for pair in reversed(pw) for v in pair)
    return torch.nn.functional.pad(x, flat)

kernel_name = 'gated_mix__sliding_block_cached__glu_gated_swiglu__decode'

def setup_inputs():

    _w = (lambda a: (lambda t: t.to(torch.bfloat16) if t.is_floating_point() else t)(torch.as_tensor(a)))
    def _A_setup():
        B, Sq, D = 8, 1, 512
        Hq, Hkv, Sk, Dh = 32, 32, 4096, 128
        assert Hq % Hkv == 0, (Hq, Hkv)
        return {
            "x": _w((lambda *s: torch.randn(*s, dtype=torch.bfloat16) * 0.05)(B, Sq, D)),
            "k_cache": _w((lambda *s: torch.randn(*s, dtype=torch.bfloat16) * 3.2)(B, Hkv, Sk, Dh)),
            "v_cache": _w((lambda *s: torch.randn(*s, dtype=torch.bfloat16) * 0.05)(B, Hkv, Sk, Dh)),
            "wq": _w((lambda *s: torch.randn(*s, dtype=torch.bfloat16) * 3.2)(D, Hq * Dh) * (D ** -0.5)),
            "wo": _w((lambda *s: torch.randn(*s, dtype=torch.bfloat16) * 0.05)(Hq * Dh, D) * ((Hq * Dh) ** -0.5)),
        }
    _A_in = _A_setup()

    def _B_setup():
        B, S, D, F = 8, 1, 512, 1376
        return {
            "x": _w((lambda *s: torch.randn(*s, dtype=torch.bfloat16) * 0.05)(B, S, D)),
            "w1": _w((lambda *s: torch.randn(*s, dtype=torch.bfloat16) * 0.2)(D, F) * (2.0 / D) ** 0.5),
            "w3": _w((lambda *s: torch.randn(*s, dtype=torch.bfloat16) * 0.2)(D, F) * (2.0 / D) ** 0.5),
            "w2": _w((lambda *s: torch.randn(*s, dtype=torch.bfloat16) * 0.2)(F, D) * (2.0 / F) ** 0.5),
        }
    _B_in = _B_setup()

    return {
        "A_x": _A_in["x"],
        "A_k_cache": _A_in["k_cache"],
        "A_v_cache": _A_in["v_cache"],
        "A_wq": _A_in["wq"],
        "A_wo": _A_in["wo"],
        "B_x": _B_in["x"],
        "B_w1": _B_in["w1"],
        "B_w3": _B_in["w3"],
        "B_w2": _B_in["w2"],
        "gate_w": _w((lambda *s: torch.randn(*s, dtype=torch.bfloat16) * 0.05)(512) * 16.0),
    }

def reference(A_x, A_k_cache, A_v_cache, A_wq, A_wo, B_x, B_w1, B_w3, B_w2, gate_w):
    def _A_ref(x, k_cache, v_cache, wq, wo):
        B, Sq, D = x.shape
        Hq, Dh = 32, 128
        Hkv, Sk = k_cache.shape[1], k_cache.shape[2]
        W = min(4096, max(256, Sk // 4))
        rep = Hq // Hkv
        q = (lambda x, *d: x.permute(*d))((x @ wq).reshape(B, Sq, Hq, Dh), 0, 2, 1, 3)
        k = (lambda x, n, axis: torch.repeat_interleave(x, n, dim=axis))(k_cache[:, :, Sk - W:, :], rep, axis=1)
        v = (lambda x, n, axis: torch.repeat_interleave(x, n, dim=axis))(v_cache[:, :, Sk - W:, :], rep, axis=1)
        scores = torch.einsum("bhqd,bhkd->bhqk", q, k) * (Dh ** -0.5)
        p = _softmax(scores, axis=-1)
        o = torch.einsum("bhqk,bhkd->bhqd", p, v)
        return (lambda x, *d: x.permute(*d))(o, 0, 2, 1, 3).reshape(B, Sq, Hq * Dh) @ wo

    def _B_ref(x, w1, w3, w2):
        gate = torch.einsum("bsd,df->bsf", x, w1)
        up = torch.einsum("bsd,df->bsf", x, w3)
        h = _silu(gate) * up
        out = torch.einsum("bsf,fd->bsd", h, w2)
        return out

    x = A_x
    g = _sigmoid((x * gate_w).sum(-1, keepdims=True))
    a = _A_ref(x, A_k_cache, A_v_cache, A_wq, A_wo)
    b = _B_ref(x, B_w1, B_w3, B_w2)
    return g * a + (1 - g) * b
```

```python
import re

class Gen:
    def __init__(self):
        self.items = []
        self.role = None
        self.q = []
        self.ndone = {}
        self.roles = ['A', 'B']
        self.done = {r: 0 for r in self.roles}
        self.nlabel = 0

    def I(self, s):
        for line in s.strip("\n").split("\n"):
            line = line.strip()
            if line:
                self.items.append((line, self.role))

    def label(self, name):
        self.items.append((name + ":", None))

    def begin(self, role, cond_skip):
        assert self.role is None
        self.nlabel += 1
        self.cur_label = f"L_skip{self.nlabel}"
        self.I(cond_skip + " " + self.cur_label)
        self.role = role

    def end(self):
        self.role = None
        self.label(self.cur_label)

    def vm(self, text, tag):
        self.I(text)
        self.q.append((tag, self.role))

    def _paths(self):
        return [self.role] if self.role else self.roles

    def is_done(self, tag):
        idx = [i for i, (t, r) in enumerate(self.q) if t == tag]
        assert len(idx) == 1, tag
        return all(self.done[p] > idx[0] for p in self._paths())

    def waitn(self, n):
        assert 0 <= n <= 63
        need = False
        newdone = {}
        for p in self._paths():
            ops = [i for i, (t, r) in enumerate(self.q) if r is None or r == p]
            k = len(ops) - n
            if k > 0:
                nd = ops[k - 1] + 1
                if nd > self.done[p]:
                    need = True
                    newdone[p] = nd
        if need:
            self.I(f"s_waitcnt vmcnt({n})")
            self.done.update(newdone)

    def wait(self, tag):
        idx = [i for i, (t, r) in enumerate(self.q) if t == tag]
        assert len(idx) == 1, tag
        idx = idx[0]
        n = None
        for p in self._paths():
            if self.done[p] > idx:
                continue
            c = sum(1 for i, (t, r) in enumerate(self.q) if i > idx and (r is None or r == p))
            n = c if n is None else min(n, c)
        if n is not None:
            self.waitn(n)

    def text(self):
        out = []
        for s, r in self.items:
            out.append(s if s.endswith(":") else "    " + s)
        return "\n".join(out) + "\n"

def regs_of(op):
    op = op.strip()
    op = op.replace("-", "").replace("abs(", "").replace(")", "").replace("|", "")
    m = re.fullmatch(r"([vsa])(\d+)", op)
    if m: return {(m.group(1), int(m.group(2)))}
    m = re.fullmatch(r"([vsa])\[(\d+):(\d+)\]", op)
    if m: return {(m.group(1), i) for i in range(int(m.group(2)), int(m.group(3)) + 1)}
    if op == "vcc": return {("vcc", 0)}
    if op == "exec": return {("exec", 0)}
    if op == "m0": return {("m0", 0)}
    return set()

TRANS = ("v_exp_f32", "v_log_f32", "v_rcp_f32", "v_rsq_f32", "v_sqrt_f32")

def parse(line):
    line = line.split(";")[0].strip()
    parts = line.split(None, 1)
    mn = parts[0]
    rest = parts[1] if len(parts) > 1 else ""
    ops = []
    depth = 0; cur = ""
    for ch in rest:
        if ch == "[": depth += 1
        if ch == "]": depth -= 1
        if ch == "," and depth == 0:
            ops.append(cur.strip()); cur = ""
        else:
            cur += ch
    if cur.strip(): ops.append(cur.strip())
    mods = ""
    if ops:
        last = ops[-1].split(None, 1)
        ops[-1] = last[0]
        mods = last[1] if len(last) > 1 else ""
    d = dict(mn=mn, ops=ops, mods=mods, w=set(), r=set(), kind="other", text=line)
    R = [regs_of(o) for o in ops]
    if mn.startswith("v_mfma"):
        d["kind"] = "mfma"; d["w"] = R[0]; d["ra"] = R[1] | R[2]; d["rc"] = R[3]; d["r"] = R[1] | R[2] | R[3]
    elif mn.startswith("v_cmp"):
        d["kind"] = "valu"; d["w"] = R[0]; d["r"] = set().union(*R[1:])
    elif mn.startswith("v_permlane"):
        d["kind"] = "valu"; d["w"] = R[0] | R[1]; d["r"] = R[0] | R[1]; d["perm"] = True
    elif mn.startswith("v_readfirstlane") or mn.startswith("v_readlane"):
        d["kind"] = "valu"; d["w"] = R[0]; d["r"] = set().union(*R[1:]); d["rl"] = True
    elif mn.startswith("v_"):
        d["kind"] = "valu"; d["w"] = R[0]; d["r"] = set().union(*R[1:]) if len(R) > 1 else set()
        if mn.startswith("v_dot2c") or mn.startswith("v_fmac") or mn.endswith("_dpp") or mn.startswith("v_writelane"):
            d["r"] = d["r"] | R[0]
        if mn.endswith("_dpp"):
            d["dpp"] = R[1]
        if mn.startswith("v_dot"):
            d["dl"] = True
        if mn.startswith("v_cndmask") and len(ops) == 3:
            d["r"] |= {("vcc", 0)}
        if any(mn.startswith(t) for t in TRANS):
            d["trans"] = True
    elif mn.startswith("buffer_load") or mn.startswith("global_load"):
        d["kind"] = "vmem"
        if "lds" in mods.split():
            d["r"] = set().union(*R) | {("m0", 0)}
        else:
            d["w"] = R[0]; d["r"] = set().union(*R[1:])
    elif mn.startswith("buffer_store") or mn.startswith("buffer_atomic") or mn.startswith("global_store"):
        d["kind"] = "vmem"; d["r"] = set().union(*R)
        if "x4" in mn or "x3" in mn: d["wide"] = R[0]
        if mn.startswith("buffer_atomic") and "sc0" in mods: d["w"] = R[0]
    elif mn.startswith("ds_read") or "_rtn" in mn or mn.startswith("ds_bpermute") or mn.startswith("ds_swizzle"):
        d["kind"] = "ds"; d["w"] = R[0]; d["r"] = set().union(*R[1:])
    elif mn.startswith("ds_"):
        d["kind"] = "ds"; d["r"] = set().union(*R)
    elif mn.startswith("s_"):
        d["kind"] = "salu"
        if mn.startswith("s_cmp") or mn.startswith("s_cbranch") or mn in ("s_waitcnt", "s_nop", "s_barrier", "s_branch", "s_endpgm", "s_sleep", "s_setprio"):
            d["r"] = set().union(*R) if R else set()
        else:
            d["w"] = R[0] if R else set(); d["r"] = set().union(*R[1:]) if len(R) > 1 else set()
            if "saveexec" in mn: d["w"] |= {("exec", 0)}
    return d

def check(seq, name=""):
    ins = [parse(s) for s in seq if not s.endswith(":") and not s.startswith(";")]
    probs = []
    for j, c in enumerate(ins):
        dist = 0
        for i in range(j - 1, max(-1, j - 24), -1):
            p = ins[i]
            need = 0
            vw = {x for x in p["w"] if x[0] in "va"}
            sw = {x for x in p["w"] if x[0] in ("s", "vcc")}
            if p["kind"] == "valu":
                if c.get("dpp") and (vw & (c["dpp"])): need = max(need, 2)
                if c["kind"] == "mfma" and (vw & c["r"]): need = max(need, 2)
                if c.get("perm") and (vw & c["r"]): need = max(need, 2)
                if c.get("rl") and (vw & c["r"]): need = max(need, 1)
                if p.get("trans") and c["kind"] == "valu" and not c.get("trans") and (vw & c["r"]): need = max(need, 1)
                if p.get("dl") and (vw & (c["r"] | c["w"])):
                    same = c["mn"] == p["mn"]
                    if same:
                        if c["mn"].startswith("v_dot2c"):
                            ab = regs_of(c["ops"][1]) | regs_of(c["ops"][2])
                        else:
                            ab = regs_of(c["ops"][1]) | regs_of(c["ops"][2])
                        if vw & ab: need = max(need, 3)
                    else:
                        need = max(need, 3)
                if sw and c["kind"] == "vmem" and (sw & c["r"]): need = max(need, 5)
                if sw and c["kind"] in ("valu", "mfma") and (sw & c["r"]): need = max(need, 4 if c.get("rl") else 2)
                if ("exec", 0) in p["w"]: need = max(need, 5)
            if p["kind"] == "mfma":
                if c["kind"] == "mfma":
                    if p["w"] & c["ra"]: need = max(need, 8)
                    if (p["w"] & c["rc"]) and p["w"] != c["rc"]: need = max(need, 6)
                    if (p["w"] & c["w"]) and p["w"] != c["rc"]: need = max(need, 8)
                elif c["kind"] in ("valu", "vmem", "ds"):
                    if p["w"] & (c["r"] | c["w"]): need = max(need, 8)
                    if c["kind"] == "valu" and (p["rc"] & c["w"]): need = max(need, 3)
            if p.get("wide") and (p["wide"] & c["w"]): need = max(need, 2)
            if p["kind"] == "salu" and ("m0", 0) in p["w"] and ("m0", 0) in c["r"] and c["kind"] != "salu": need = max(need, 1)
            if p["kind"] == "salu" and ("exec", 0) in p["w"] and c.get("dpp"): pass
            if need > dist:
                probs.append(f"[{name}] need {need} have {dist}: '{p['text']}' -> '{c['text']}'")
            if p["mn"] == "s_nop":
                dist += int(p["ops"][0], 0) + 1
            else:
                dist += 1
    return probs

def check_gen(g):
    probs = []
    for role in g.roles:
        seq = [s for s, r in g.items if r is None or r == role]
        probs += check(seq, role)
    return sorted(set(probs))
```

```python
import sys, struct
from asmlib import Gen, check_gen

KNAME = "gated_mix__sliding_block_cached__glu_gated_swiglu__decode_kernel"
HEAD = open("head.txt").read() if False else ""

def f2u(x): return struct.unpack("<I", struct.pack("<f", x))[0]

L_O, L_Q, L_H, L_G, L_CNT, L_ML = 0, 512, 768, 1024, 1040, 1088
LDS_BYTES = 1280
ACC_OFF = 2 * 1024 * 1024
STAMP_OFF = 4 * 1024 * 1024
WS_BYTES = 8 * 1024 * 1024

V_L16, V_WO, V_W2, V_LANE, V_T0, V_T1, V_T2 = 1, 2, 3, 4, 5, 6, 7
Q = 8; MASK = 12; S = 16; A4 = 24; TT = 28; F = 30; ACC0 = 32; ACC1 = 36; AOP = 40
T = 48
STG = 56
W2R = 72
X = 104
V_FAC = 120; V_MC = 121; V_G = 122
V_LH = 124
XU = 126
SLOT = 128
def slot(n): return SLOT + 4 * n
def r4(b): return f"v[{b}:{b+3}]"

def gen(D=4, POLL=9, SYNC=24, W2POS=None, WOPOS=None, B2AT=10, stamps=False, kvpol="nt", wpol="nt"):
    g = Gen()
    I = g.I
    if W2POS is None: W2POS = [8, 10, 12, 14, 16, 18, 20, 22]
    if WOPOS is None: WOPOS = [0, 2, 3, 5, 6, 8, 9, 11, 12, 14, 15, 17, 18, 20, 21, 23]
    nst = [0]
    def stamp():
        if stamps:
            k = nst[0]; nst[0] += 1
            assert k < 6
            I(f"s_memrealtime s[{96}:{97}]\ns_waitcnt lgkmcnt(0)\nv_writelane_b32 v125, s96, {k}")
    I(f"""
    s_cmp_ge_u32 s2, 256
    s_cbranch_scc1 L_end""")
    if stamps:
        I("v_mov_b32 v125, 0")
        stamp()
    I(f"""
    s_load_dwordx16 s[48:63], s[0:1], 0
    s_load_dwordx8 s[64:71], s[0:1], 64
    s_load_dwordx2 s[72:73], s[0:1], 96
    v_lshrrev_b32 v{V_T0}, 6, v0
    v_and_b32 v{V_LANE}, 63, v0
    v_readfirstlane_b32 s3, v{V_T0}
    v_lshlrev_b32 v{V_L16}, 4, v{V_LANE}
    s_lshr_b32 s44, s2, 5
    s_and_b32 s45, s2, 31
    s_mov_b32 s7, 0x20000
    s_mov_b32 s11, 0x20000
    s_mov_b32 s23, 0x20000
    s_mov_b32 s27, 0x20000
    s_mov_b32 s31, 0x20000
    s_mov_b32 s43, 0x20000
    s_mov_b32 s26, 8192
    s_mov_b32 s30, {WS_BYTES}
    s_mov_b32 s42, 1024
    s_and_b32 s85, s3, 3
    s_lshl_b32 s86, s85, 13
    s_lshr_b32 s87, s3, 2
    s_lshl_b32 s87, s87, 12
    s_or_b32 s86, s86, s87
    s_sub_u32 s6, 0x40000, s86
    s_mov_b32 s10, s6
    s_lshl_b32 s87, s2, 20
    s_add_u32 s86, s86, s87
    s_add_u32 s86, s86, 0xc0000
    s_and_b32 s87, s45, 7
    s_lshl_b32 s87, s87, 2
    s_lshr_b32 s88, s45, 3
    s_add_u32 s87, s87, s88
    s_mul_i32 s87, s87, 172
    s_lshr_b32 s78, s87, 5
    s_add_u32 s87, s87, 172
    s_lshr_b32 s79, s87, 5
    s_sub_u32 s79, s79, s78
    s_lshl_b32 s87, s45, 8
    s_lshl_b32 s88, s85, 7
    s_add_u32 s87, s87, s88          ; 256h + 128u
    s_lshl_b32 s88, s78, 4           ; 16*c0
    s_cmp_lt_u32 s85, 2
    s_cselect_b32 s76, s26, 2752    ; stride
    s_cselect_b32 s87, s87, s88
    s_cselect_b32 s89, 8, s79
    s_lshl_b32 s22, s76, 9
    s_lshl_b32 s88, s44, 6
    s_mul_i32 s88, s88, s76
    s_add_u32 s87, s87, s88
    s_sub_u32 s22, s22, s87
    s_lshl_b32 s88, s44, 7
    v_bfe_u32 v{V_T0}, v0, 3, 1
    v_bfe_u32 v{V_T1}, v0, 4, 2
    v_lshlrev_b32 v{V_T1}, 3, v{V_T1}
    v_lshl_add_u32 v{V_T0}, v{V_T0}, 5, v{V_T1}        ; 32 khalf + 8 g
    v_and_b32 v{V_T2}, 7, v0
    v_lshlrev_b32 v{T+1}, 4, v{V_T2}                   ; i8*16
    v_mad_u32_u24 v{T}, v{V_T0}, s76, v{T+1}
    v_cmp_gt_u32 vcc, s89, v{V_T2}
    v_bfrev_b32 v{T+2}, 1
    v_lshl_add_u32 v{V_W2}, v{V_T0}, 10, v{T+1}
    v_cndmask_b32 v{T}, v{T+2}, v{T}, vcc
    v_and_b32 v{T+2}, 1, v0
    v_lshl_add_u32 v{T+2}, v{T+2}, 5, v{V_T1}          ; 32(m&1) + 8g
    v_lshlrev_b32 v{V_LH}, 1, v{T+2}
    v_bfe_u32 v{T+3}, v0, 1, 3
    v_lshl_add_u32 v{T+3}, v{T+3}, 10, v{V_LH}
    s_cmp_eq_u32 s85, 2
    s_waitcnt lgkmcnt(0)
    s_cselect_b32 s20, s60, s62
    s_cselect_b32 s21, s61, s63
    s_cmp_lt_u32 s85, 2
    s_cselect_b32 s20, s54, s20
    s_cselect_b32 s21, s55, s21
    s_add_u32 s20, s20, s87
    s_addc_u32 s21, s21, 0
    s_mov_b32 s24, s48
    s_mov_b32 s25, s49
    s_add_u32 s4, s50, s86
    s_addc_u32 s5, s51, 0
    s_mov_b32 s28, s72
    s_mov_b32 s29, s73
    s_mov_b32 s40, s66
    s_mov_b32 s41, s67
    """)
    W1RAW = slot(8); W1FR = slot(16); W1ACC = slot(24); XOP = X + 8; Y = X
    g.begin('A', "s_cmp_ge_u32 s3, 4\ns_cbranch_scc1")
    g.vm(f"buffer_load_dwordx4 {r4(XOP)}, v{T+3}, s[24:27], s88 offen", "xop")
    g.vm(f"buffer_load_dwordx4 {r4(W1RAW)}, v{T}, s[20:23], 0 offen {wpol}", "s1_0")
    I("s_mov_b32 s77, s76")
    for j in range(1, 8):
        g.vm(f"buffer_load_dwordx4 {r4(W1RAW+4*j)}, v{T}, s[20:23], s77 offen {wpol}", f"s1_{j}")
        if j < 7: I("s_add_u32 s77, s77, s76")
    g.end()
    g.begin('B', "s_cmp_lt_u32 s3, 4\ns_cbranch_scc1")
    I("s_lshl_b32 s88, s44, 10")
    g.vm(f"buffer_load_dwordx4 {r4(X)}, v{V_L16}, s[24:27], s88 offen", "gx")
    g.vm(f"buffer_load_dwordx4 {r4(X+4)}, v{V_L16}, s[40:43], 0 offen", "gw")
    g.end()

    I("s_mov_b32 s74, 0\ns_mov_b32 s75, 0x8000")
    def kload(n):
        if n % 4 == 0 and n > 0: I("s_add_u32 s74, s74, s75")
        g.vm(f"buffer_load_dwordx4 {r4(slot(n))}, v{V_L16}, s[4:7], s74 offen offset:{(n%4)*1024} {kvpol}", f"k{n}")
    def vload(n):
        if n == 0: I("s_mov_b32 s74, 0")
        if n % 4 == 0 and n > 0: I("s_add_u32 s74, s74, s75")
        g.vm(f"buffer_load_dwordx4 {r4(slot(n%8))}, v{V_L16}, s[8:11], s74 offen offset:{(n%4)*1024} {kvpol}", f"v{n}")
    def w2load(j):
        so = "0" if j < 4 else "s84"
        g.vm(f"buffer_load_dwordx4 {r4(W2R+4*j)}, v{V_W2}, s[16:19], {so} offen offset:{(j%4)*1024} {wpol}", f"w2_{j}")
    def woload(n):
        grp, j = n // 8, n % 8
        if j == 0: I("s_mov_b32 s83, 0")
        else: I("s_add_u32 s83, s83, s26")
        g.vm(f"buffer_load_dwordx4 {r4(STG+4*(n%4))}, v{V_WO}, s[12:15], s83 offen offset:{grp*2048} {wpol}", f"wo{n}")
    for n in range(D): kload(n)

    I(f"""
    s_add_u32 s8, s52, s86
    s_addc_u32 s9, s53, 0
    s_lshl_b32 s87, s3, 7                 ; 128 w
    s_lshl_b32 s88, s45, 17
    s_add_u32 s88, s88, s87
    s_add_u32 s12, s56, s88
    s_addc_u32 s13, s57, 0
    s_sub_u32 s14, 0x20000, s87
    s_mov_b32 s15, 0x20000
    s_lshl_b32 s88, s78, 13               ; c0*8 rows * 1024
    s_add_u32 s88, s88, s87
    s_add_u32 s16, s64, s88
    s_addc_u32 s17, s65, 0
    s_lshl_b32 s18, s79, 13
    s_sub_u32 s18, s18, s87
    s_mov_b32 s19, 0x20000
    s_mov_b32 s32, s70
    s_mov_b32 s33, s71
    s_mov_b32 s34, 256
    s_mov_b32 s35, 0x20000
    s_lshl_b32 s88, s44, 10
    s_add_u32 s88, s88, s87
    s_add_u32 s36, s68, s88
    s_addc_u32 s37, s69, 0
    s_sub_u32 s38, 8192, s88
    s_mov_b32 s39, 0x20000
    s_mov_b32 s46, 0x05040100
    s_mov_b32 s47, 0x07060302
    s_movk_i32 s84, 4096
    s_mov_b32 s93, {f2u(1.4426950408889634):#x}
    s_mov_b32 s94, {f2u(128 ** -0.5):#x}
    s_mov_b32 s95, 0xffff0000
    s_lshl_b32 s80, s45, 16
    s_lshl_b32 s88, s44, 13
    s_add_u32 s81, s80, s88
    s_lshl_b32 s88, s85, 11
    s_add_u32 s81, s81, s88
    s_lshr_b32 s88, s85, 1
    s_lshl_b32 s88, s88, 12
    s_add_u32 s80, s80, s88
    s_lshl_b32 s88, s44, 8
    s_add_u32 s80, s80, s88
    s_and_b32 s88, s85, 1
    s_lshl_b32 s88, s88, 7
    s_add_u32 s80, s80, s88               ; producer
    s_lshl_b32 s82, s44, 12
    s_add_u32 s82, s82, {ACC_OFF}
    v_bfe_u32 v{V_T0}, v0, 4, 1
    v_lshl_add_u32 v{V_WO}, v{V_T0}, 16, v{T+1}
    v_bfe_u32 v{V_T0}, v0, 5, 1
    v_lshl_add_u32 v{V_WO}, v{V_T0}, 12, v{V_WO}
    v_bfe_u32 v{V_T0}, v0, 3, 1
    v_lshl_add_u32 v{V_WO}, v{V_T0}, 10, v{V_WO}
    v_lshrrev_b32 v{V_T0}, 3, v{V_LANE}
    v_lshl_add_u32 v{T+4}, v{V_T0}, 13, v{T+1}
    v_and_b32 v{X+12}, 1, v0
    v_lshlrev_b32 v{X+12}, 2, v{X+12}
    v_bfe_u32 v{X+13}, v0, 1, 1
    s_lshl_b32 s88, s45, 3
    v_mad_u32_u24 v{X+12}, v{X+13}, s88, v{X+12}
    ; masks
    v_and_b32 v{V_T0}, 1, v0
    v_lshlrev_b32 v{V_T0}, 4, v{V_T0}
    v_mov_b32 v{V_T1}, 0xffff
    v_lshlrev_b32 v{V_T1}, v{V_T0}, v{V_T1}
    v_bfe_u32 v{V_T0}, v0, 1, 2
    """)
    for r in range(4):
        I(f"v_cmp_eq_u32 vcc, {r}, v{V_T0}\ns_nop 1\nv_cndmask_b32 v{MASK+r}, 0, v{V_T1}, vcc")
    I(f"""
    v_mov_b32 v{T+8}, 0
    v_mov_b32 v{T+9}, 0
    v_mov_b32 v{T+10}, 0
    v_mov_b32 v{T+11}, 0
    v_lshlrev_b32 v{V_T0}, 3, v{V_LANE}
    ds_write_b64 v{V_T0}, v[{T+8}:{T+9}] offset:{L_O}
    ds_write_b32 v{T+8}, v{T+8} offset:{L_CNT}
    v_mov_b32 v{F}, 1.0
    v_mov_b32 v{F+1}, 1.0
    v_mov_b32 v{XU}, 0
    v_mov_b32 v{XU+1}, 0
    s_waitcnt lgkmcnt(0)
    s_barrier
    """)
    stamp()
    g.begin('A', "s_cmp_ge_u32 s3, 4\ns_cbranch_scc1")
    I(f"""
    s_lshl_b32 s88, s3, 10
    s_add_u32 s88, s88, s82
    s_cmp_eq_u32 s45, 0
    s_cselect_b32 s88, s88, {WS_BYTES}
    """)
    for jj in range(4):
        g.wait(f"s1_{2*jj+1}")
        for q in range(4):
            for e in range(2):
                I(f"v_perm_b32 v{W1FR+4*(2*q+e)+jj}, v{W1RAW+4*(2*jj+1)+q}, v{W1RAW+4*(2*jj)+q}, s{46+e}")
    for c in range(8):
        I(f"v_mfma_f32_16x16x32_bf16 {r4(W1ACC+4*c)}, {r4(XOP)}, {r4(W1FR+4*c)}, 0")
    g.vm(f"buffer_store_dwordx4 {r4(T+8)}, v{V_L16}, s[28:31], s88 offen sc1", "zero")
    I("s_nop 0")
    for c in range(8):
        a = W1ACC + 4 * c
        I(f"v_add_f32_dpp v{Y+c}, v{a+1}, v{a} row_ror:8 row_mask:0xf bank_mask:0x3")
        I(f"v_add_f32_dpp v{Y+c}, v{a+2}, v{a+3} row_ror:8 row_mask:0xf bank_mask:0xc")
    g.vm(f"buffer_store_dwordx4 {r4(Y)}, v{T+4}, s[28:31], s80 offen sc1", "ex0")
    g.vm(f"buffer_store_dwordx4 {r4(Y+4)}, v{T+4}, s[28:31], s80 offen offset:2048 sc1", "ex1")
    g.end()
    g.begin('B', "s_cmp_lt_u32 s3, 4\ns_cbranch_scc1")
    g.wait("gw")
    for q in range(4):
        I(f"""
        v_lshlrev_b32 v{X+8}, 16, v{X+q}
        v_and_b32 v{X+9}, s95, v{X+q}
        v_lshlrev_b32 v{X+10}, 16, v{X+4+q}
        v_and_b32 v{X+11}, s95, v{X+4+q}
        v_mul_f32 v{X+8}, v{X+8}, v{X+10}
        v_mul_f32 v{X+9}, v{X+9}, v{X+11}
        v_cvt_pk_bf16_f32 v{X+q}, v{X+8}, v{X+9}
        """)
    I(f"""
    v_mov_b32 v{X+8}, 0
    v_mov_b32 v{X+9}, 0x3f803f80
    v_dot2c_f32_bf16 v{X+8}, v{X}, v{X+9}
    v_dot2c_f32_bf16 v{X+8}, v{X+1}, v{X+9}
    v_dot2c_f32_bf16 v{X+8}, v{X+2}, v{X+9}
    v_dot2c_f32_bf16 v{X+8}, v{X+3}, v{X+9}
    s_nop 2
    v_add_f32_dpp v{X+8}, v{X+8}, v{X+8} quad_perm:[1,0,3,2] row_mask:0xf bank_mask:0xf
    s_nop 1
    v_add_f32_dpp v{X+8}, v{X+8}, v{X+8} quad_perm:[2,3,0,1] row_mask:0xf bank_mask:0xf
    s_nop 1
    v_add_f32_dpp v{X+8}, v{X+8}, v{X+8} row_ror:4 row_mask:0xf bank_mask:0xf
    s_nop 1
    v_add_f32_dpp v{X+8}, v{X+8}, v{X+8} row_ror:8 row_mask:0xf bank_mask:0xf
    v_mov_b32 v{X+9}, v{X+8}
    s_nop 1
    v_permlane16_swap_b32 v{X+8}, v{X+9}
    v_add_f32 v{X+8}, v{X+8}, v{X+9}
    v_mov_b32 v{X+9}, v{X+8}
    s_nop 1
    v_permlane32_swap_b32 v{X+8}, v{X+9}
    v_add_f32 v{X+8}, v{X+8}, v{X+9}
    v_cvt_pk_bf16_f32 v{X+8}, v{X+8}, v{X+8}
    v_and_b32 v{X+8}, s95, v{X+8}
    v_mul_f32 v{X+8}, s93, v{X+8}
    v_exp_f32 v{X+8}, -v{X+8}
    s_nop 0
    v_add_f32 v{X+8}, 1.0, v{X+8}
    v_rcp_f32 v{X+8}, v{X+8}
    s_nop 0
    v_cvt_pk_bf16_f32 v{X+8}, v{X+8}, v{X+8}
    v_and_b32 v{X+8}, s95, v{X+8}
    v_sub_f32 v{X+9}, 1.0, v{X+8}
    v_cvt_pk_bf16_f32 v{X+9}, v{X+9}, v{X+9}
    v_and_b32 v{X+9}, s95, v{X+9}
    ds_write_b64 v{T+8}, v[{X+8}:{X+9}] offset:{L_G}
    """)
    g.end()

    kgroups_done = [0]
    def consume_group(k):
        s0 = 4 * k
        for i in range(4):
            I(f"v_dot2_f32_bf16 v{A4+i}, v{slot(s0+i)}, v{Q}, 0")
        for q in range(1, 4):
            for i in range(4):
                I(f"v_dot2c_f32_bf16 v{A4+i}, v{slot(s0+i)+q}, v{Q+q}")
        I(f"""
        v_add_f32_dpp v{TT}, v{A4}, v{A4} row_ror:8 row_mask:0xf bank_mask:0x3
        v_add_f32_dpp v{TT}, v{A4+1}, v{A4+1} row_ror:8 row_mask:0xf bank_mask:0xc
        v_add_f32_dpp v{TT+1}, v{A4+2}, v{A4+2} row_ror:8 row_mask:0xf bank_mask:0x3
        v_add_f32_dpp v{TT+1}, v{A4+3}, v{A4+3} row_ror:8 row_mask:0xf bank_mask:0xc
        v_add_f32_dpp v{S+k}, v{TT}, v{TT} row_half_mirror row_mask:0xf bank_mask:0x5
        s_nop 0
        v_add_f32_dpp v{S+k}, v{TT+1}, v{TT+1} row_half_mirror row_mask:0xf bank_mask:0xa
        s_nop 1
        v_add_f32_dpp v{S+k}, v{S+k}, v{S+k} quad_perm:[1,0,3,2] row_mask:0xf bank_mask:0xf
        s_nop 1
        v_add_f32_dpp v{S+k}, v{S+k}, v{S+k} quad_perm:[2,3,0,1] row_mask:0xf bank_mask:0xf
        """)
        if k % 2 == 1:
            a, b = S + k - 1, S + k
            I(f"""
            v_cvt_pk_bf16_f32 v{TT}, v{a}, v{b}
            v_lshlrev_b32 v{a}, 16, v{TT}
            v_and_b32 v{b}, s95, v{TT}
            v_mul_f32 v{a}, s94, v{a}
            v_mul_f32 v{b}, s94, v{b}
            v_cvt_pk_bf16_f32 v{TT}, v{a}, v{b}
            v_lshlrev_b32 v{a}, 16, v{TT}
            v_and_b32 v{b}, s95, v{TT}
            """)
        kgroups_done[0] = k + 1

    def allred(v, t, op):
        I(f"""
        s_nop 1
        {op}_dpp v{v}, v{v}, v{v} row_ror:4 row_mask:0xf bank_mask:0xf
        s_nop 1
        {op}_dpp v{v}, v{v}, v{v} row_ror:8 row_mask:0xf bank_mask:0xf
        v_mov_b32 v{t}, v{v}
        s_nop 1
        v_permlane16_swap_b32 v{v}, v{t}
        {op} v{v}, v{v}, v{t}
        v_mov_b32 v{t}, v{v}
        s_nop 1
        v_permlane32_swap_b32 v{v}, v{t}
        {op} v{v}, v{v}, v{t}
        """)

    def softmax():
        m = TT
        I(f"""
        v_max3_f32 v{m}, v{S}, v{S+1}, v{S+2}
        v_max3_f32 v{m}, v{m}, v{S+3}, v{S+4}
        v_max3_f32 v{m}, v{m}, v{S+5}, v{S+6}
        v_max_f32 v{m}, v{m}, v{S+7}
        """)
        allred(m, A4, "v_max_f32")
        I(f"v_mul_f32 v{m}, s93, v{m}")
        for k in range(8):
            I(f"v_fma_f32 v{S+k}, v{S+k}, s93, -v{m}")
        for k in range(8):
            I(f"v_exp_f32 v{S+k}, v{S+k}")
        l = TT + 1
        I(f"v_add_f32 v{l}, v{S}, v{S+1}")
        for k in range(2, 8):
            I(f"v_add_f32 v{l}, v{l}, v{S+k}")
        for k in range(8):
            I(f"v_cvt_pk_bf16_f32 v{S+k}, v{S+k}, v{S+k}")
        allred(l, A4, "v_add_f32")
        I(f"""
        s_lshl_b32 s88, s3, 3
        v_mov_b32 v{A4}, s88
        v_mov_b32 v{V_MC}, v{m}
        ds_write_b64 v{A4}, v[{TT}:{TT+1}] offset:{L_ML}
        """)

    def ffn_down(q):
        for e in range(2):
            for jj in range(4):
                I(f"v_perm_b32 v{X+4*e+jj}, v{W2R+4*(2*jj+1)+q}, v{W2R+4*(2*jj)+q}, s{46+e}")
        I("s_nop 1")
        for e in range(2):
            I(f"v_mfma_f32_16x16x32_bf16 {r4(X+8+4*e)}, {r4(T)}, {r4(X+4*e)}, 0")
        I("s_nop 7")
        for e in range(2):
            c = 2 * q + e
            a = X + 8 + 4 * e
            I(f"v_add_f32_dpp v{F+c//4}, v{a+1}, v{a} row_ror:8 row_mask:{1 << (c%4):#x} bank_mask:0x3")
        if q == 3:
            I("s_nop 1")
            for u in range(2):
                I(f"v_mul_f32_dpp v{F+u}, v{F+u}, v{V_G+1} quad_perm:[0,1,2,3] row_mask:0xf bank_mask:0x3")

    def build_a(t):
        k, half = t // 2, t % 2
        for r in range(4):
            mir = (r >= 2) != (half == 1)
            d = AOP + 4 * (t % 2) + r
            if mir:
                I(f"v_and_b32_dpp v{d}, v{S+k}, v{MASK+r} row_half_mirror row_mask:0xf bank_mask:0xf")
            else:
                I(f"v_and_b32 v{d}, v{S+k}, v{MASK+r}")

    vdone = [0]
    def pv(n):
        t = n // 2
        acc = ACC0 if n % 2 == 0 else ACC1
        c = "0" if n < 2 else r4(acc)
        I(f"v_mfma_f32_16x16x32_bf16 {r4(acc)}, {r4(AOP+4*(t%2))}, {r4(slot(n%8))}, {c}")
        vdone[0] = n + 1
        if n % 2 == 1 and t + 2 < 16:
            build_a(t + 2)

    wopairs = [0]
    def wo_perm(p):
        grp, jj = p // 4, p % 4
        a, b = STG + 4 * ((2 * p) % 4), STG + 4 * ((2 * p + 1) % 4)
        for q in range(4):
            for e in range(2):
                I(f"v_perm_b32 v{slot(8)+32*grp+4*(2*q+e)+jj}, v{b+q}, v{a+q}, s{46+e}")
        wopairs[0] = p + 1

    def ml_combine():
        I(f"""
        s_waitcnt lgkmcnt(0)
        s_barrier
        v_and_b32 v{A4}, 7, v0
        v_lshlrev_b32 v{A4}, 3, v{A4}
        ds_read_b64 v[{A4}:{A4+1}], v{A4} offset:{L_ML}
        s_waitcnt lgkmcnt(0)
        v_max_f32_dpp v{A4+2}, v{A4}, v{A4} quad_perm:[1,0,3,2] row_mask:0xf bank_mask:0xf
        s_nop 1
        v_max_f32_dpp v{A4+2}, v{A4+2}, v{A4+2} quad_perm:[2,3,0,1] row_mask:0xf bank_mask:0xf
        s_nop 1
        v_max_f32_dpp v{A4+2}, v{A4+2}, v{A4+2} row_half_mirror row_mask:0xf bank_mask:0xf
        v_sub_f32 v{A4}, v{A4}, v{A4+2}
        v_sub_f32 v{V_MC}, v{V_MC}, v{A4+2}
        v_exp_f32 v{A4}, v{A4}
        v_exp_f32 v{V_MC}, v{V_MC}
        v_mul_f32 v{A4}, v{A4}, v{A4+1}
        v_mul_f32 v{V_MC}, v{V_MC}, v{V_G}
        s_nop 0
        v_add_f32_dpp v{A4}, v{A4}, v{A4} quad_perm:[1,0,3,2] row_mask:0xf bank_mask:0xf
        s_nop 1
        v_add_f32_dpp v{A4}, v{A4}, v{A4} quad_perm:[2,3,0,1] row_mask:0xf bank_mask:0xf
        s_nop 1
        v_add_f32_dpp v{A4}, v{A4}, v{A4} row_half_mirror row_mask:0xf bank_mask:0xf
        v_rcp_f32 v{A4}, v{A4}
        s_nop 0
        v_mul_f32 v{V_FAC}, v{V_MC}, v{A4}
        v_and_b32 v{V_T0}, 31, v0
        v_lshlrev_b32 v{V_T0}, 2, v{V_T0}
        v_lshlrev_b32 v{V_T1}, 1, v{V_LH}
        v_lshlrev_b32 v{V_T2}, 2, v{V_LANE}
        v_and_b32 v{V_W2}, 15, v0
        v_lshlrev_b32 v{V_W2}, 4, v{V_W2}
        v_lshrrev_b32 v{A4}, 4, v{V_LANE}
        v_lshl_add_u32 v{V_W2}, v{A4}, 1, v{V_W2}
        s_lshl_b32 s88, s3, 9
        s_add_u32 s82, s82, s88
        """)

    w2n = 0
    synced = False
    ffn_q = 0
    PX = slot(30)
    for n in range(D, 32):
        if n == 2 * D:
            g.begin('A', "s_cmp_ge_u32 s3, 4\ns_cbranch_scc1")
            g.waitn(0)
            I(f"""
            v_mov_b32 v{X}, 1
            s_mov_b64 exec, 1
            ds_add_rtn_u32 v{X+1}, v{T+8}, v{X} offset:{L_CNT}
            s_lshl_b32 s88, s45, 3
            s_add_u32 s88, s88, s44
            s_waitcnt lgkmcnt(0)
            v_readfirstlane_b32 s89, v{X+1}
            s_cmp_eq_u32 s89, 3
            s_cselect_b32 s88, s88, 256
            """)
            g.vm(f"buffer_store_byte v{X}, v{T+8}, s[32:35], s88 offen sc1", "flag")
            I("s_mov_b64 exec, -1")
            g.end()
        if n == POLL:
            g.begin('B', "s_cmp_lt_u32 s3, 4\ns_cbranch_scc1")
            g.vm(f"buffer_load_dword v{X+13}, v{X+12}, s[32:35], 0 offen sc1", "poll")
            g.end()
        if n == POLL + D:
            g.begin('B', "s_cmp_lt_u32 s3, 4\ns_cbranch_scc1")
            g.wait("poll")
            I(f"""
            s_mov_b32 s92, 200000
            s_mov_b32 s88, 0x01010101""")
            g.label("L_poll")
            I(f"""
            v_cmp_ne_u32 vcc, s88, v{X+13}
            s_cbranch_vccz L_polled
            s_sub_u32 s92, s92, 1
            s_cbranch_scc1 L_polled
            buffer_load_dword v{X+13}, v{X+12}, s[32:35], 0 offen sc1
            s_waitcnt vmcnt(0)
            s_branch L_poll""")
            g.label("L_polled")
            g.vm(f"buffer_load_dwordx4 {r4(PX)}, v{V_L16}, s[28:31], s81 offen sc1", "px0")
            g.vm(f"buffer_load_dwordx4 {r4(PX+4)}, v{V_L16}, s[28:31], s81 offen offset:1024 sc1", "px1")
            g.end()
        if n == POLL + 2 * D:
            g.begin('B', "s_cmp_lt_u32 s3, 4\ns_cbranch_scc1")
            I(f"""
            v_and_b32 v{X}, 15, v0
            v_lshlrev_b32 v{X}, 4, v{X}
            v_bfe_u32 v{X+1}, v0, 4, 1
            v_lshl_add_u32 v{X}, v{X+1}, 2, v{X}
            v_bfe_u32 v{X+1}, v0, 5, 1
            v_lshl_add_u32 v{X}, v{X+1}, 1, v{X}
            s_and_b32 s88, s3, 1
            s_lshl_b32 s88, s88, 3
            s_and_b32 s89, s3, 2
            s_lshl_b32 s89, s89, 7
            s_add_u32 s88, s88, s89
            v_add_u32 v{X}, s88, v{X}
            """)
            g.wait("px1")
            I(f"""
            v_pk_add_f32 v[{PX}:{PX+1}], v[{PX}:{PX+1}], v[{PX+4}:{PX+5}]
            v_pk_add_f32 v[{PX+2}:{PX+3}], v[{PX+2}:{PX+3}], v[{PX+6}:{PX+7}]
            s_nop 0
            v_permlane32_swap_b32 v{PX}, v{PX+1}
            v_permlane32_swap_b32 v{PX+2}, v{PX+3}
            v_add_f32 v{PX}, v{PX}, v{PX+1}
            v_add_f32 v{PX+2}, v{PX+2}, v{PX+3}
            s_nop 1
            v_permlane16_swap_b32 v{PX}, v{PX+2}
            v_add_f32 v{PX}, v{PX}, v{PX+2}
            v_cvt_pk_bf16_f32 v{PX}, v{PX}, v{PX}
            v_and_b32 v{PX+1}, s95, v{PX}
            v_mul_f32 v{PX+2}, s93, v{PX+1}
            v_exp_f32 v{PX+2}, -v{PX+2}
            s_nop 0
            v_add_f32 v{PX+2}, 1.0, v{PX+2}
            v_rcp_f32 v{PX+2}, v{PX+2}
            s_nop 0
            v_mul_f32 v{PX+2}, v{PX+2}, v{PX+1}
            v_cvt_pk_bf16_f32 v{PX+2}, v{PX+2}, v{PX+2}
            v_and_b32 v{PX+2}, s95, v{PX+2}
            v_mul_f32_dpp v{PX+2}, v{PX+1}, v{PX+2} row_ror:8 row_mask:0xf bank_mask:0xf
            s_cmp_ge_u32 s3, 6
            s_cselect_b64 vcc, -1, 0
            v_cvt_pk_bf16_f32 v{PX+2}, v{PX+2}, v{PX+2}
            v_cndmask_b32 v{PX}, v{PX}, v{PX+2}, vcc
            ds_write_b16 v{X}, v{PX} offset:{L_Q}
            """)
            g.end()
        if n == SYNC:
            stamp()
            I(f"""
            s_waitcnt lgkmcnt(0)
            s_barrier
            v_and_b32 v{V_T0}, 0xf0, v{V_L16}
            v_mov_b32 v{V_T1}, 0
            ds_read_b128 {r4(Q)}, v{V_T0} offset:{L_Q}
            ds_read_b128 {r4(T)}, v{V_LH} offset:{L_H}
            ds_read_b64 v[{V_G}:{V_G+1}], v{V_T1} offset:{L_G}
            """)
            synced = True
        g.waitn(D - 1)
        kload(n)
        if n == SYNC:
            I("s_waitcnt lgkmcnt(0)")
        if synced:
            k = kgroups_done[0]
            if k < 8 and 4 * k + 3 <= n and g.is_done(f"k{4*k+3}"):
                consume_group(k)
        if w2n < 8 and n == W2POS[w2n]:
            g.waitn(D - 1)
            w2load(w2n); w2n += 1
    assert w2n == 8
    won = 0
    sm_done = False
    def after_step(n):
        nonlocal sm_done, ffn_q
        k = kgroups_done[0]
        if k < 8:
            if g.is_done(f"k{4*k+3}"):
                consume_group(k)
                if k == 7:
                    softmax(); sm_done = True
                    build_a(0); build_a(1)
                    I("s_nop 0")
        if sm_done:
            while vdone[0] <= n and vdone[0] < 32 and g.is_done(f"v{vdone[0]}"):
                pv(vdone[0])
        p = wopairs[0]
        if p < 8 and 2 * p + 1 < won and g.is_done(f"wo{2*p+1}"):
            assert kgroups_done[0] >= 6
            wo_perm(p)
        elif sm_done and ffn_q < 4 and g.is_done("w2_7"):
            ffn_down(ffn_q); ffn_q += 1
    for n in range(32):
        if n == B2AT:
            assert sm_done
            ml_combine()
        g.waitn(D - 1)
        if n < 8:
            assert kgroups_done[0] > n // 4
        else:
            assert vdone[0] > n - 8, (n, vdone[0])
        vload(n)
        after_step(n)
        if won < 16 and n == WOPOS[won]:
            g.waitn(D - 1)
            assert won < 4 or wopairs[0] > (won - 4) // 2, (won, wopairs[0])
            woload(won); won += 1
            after_step(n)
    assert won == 16 and ffn_q == 4
    stamp()
    while vdone[0] < 32:
        g.wait(f"v{vdone[0]}")
        after_step(31)
    assert wopairs[0] == 8
    stamp()
    I("s_nop 6")
    for r in range(4):
        I(f"v_mul_f32_dpp v{T+r}, v{ACC0+r}, v{V_FAC} quad_perm:[0,1,2,3] row_mask:0x3 bank_mask:0xf")
    for r in range(4):
        I(f"v_mul_f32_dpp v{T+r}, v{ACC1+r}, v{V_FAC} quad_perm:[0,1,2,3] row_mask:0xc bank_mask:0xf")
    for r in range(4):
        I(f"ds_add_f32 v{V_T0}, v{T+r} offset:{L_O + 128*r}")
    I("s_waitcnt lgkmcnt(0)\ns_barrier")
    for k in range(4):
        I(f"ds_read_b128 {r4(STG+4*k)}, v{V_T1} offset:{L_O + (k//2)*256 + (k%2)*16}")
    TACC = slot(24)
    for grp in range(2):
        I(f"s_waitcnt lgkmcnt({2 if grp == 0 else 0})")
        for j in range(4):
            I(f"v_cvt_pk_bf16_f32 v{AOP+4*grp+j}, v{STG+8*grp+2*j}, v{STG+8*grp+2*j+1}")
        I("s_nop 1")
        for c in range(8):
            cc = "0" if grp == 0 else r4(TACC + 4 * c)
            I(f"v_mfma_f32_16x16x32_bf16 {r4(TACC+4*c)}, {r4(AOP+4*grp)}, {r4(slot(8)+32*grp+4*c)}, {cc}")
    I("s_nop 0")
    for c in range(8):
        a = TACC + 4 * c
        I(f"v_add_f32_dpp v{XU+c//4}, v{a+1}, v{a} row_ror:8 row_mask:{1 << (c%4):#x} bank_mask:0x3")
    I(f"""
    s_mov_b32 exec_lo, 0x01ff01ff
    s_mov_b32 exec_hi, 0x01ff01ff
    v_add_f32 v{T}, v{XU}, v{F}
    v_add_f32 v{T+1}, v{XU+1}, v{F+1}
    """)
    g.vm(f"buffer_atomic_add_f32 v{T}, v{V_T2}, s[28:31], s82 offen sc0", "at0")
    g.vm(f"buffer_atomic_add_f32 v{T+1}, v{V_T2}, s[28:31], s82 offen offset:256 sc0", "at1")
    I(f"""
    v_add_f32 v{XU}, v{XU}, v{F}
    v_add_f32 v{XU+1}, v{XU+1}, v{F+1}
    s_mov_b32 s88, {f2u(31.0):#x}
    s_mov_b32 s90, 0x00ff00ff
    s_mov_b32 s91, 0x00ff00ff
    """)
    g.wait("at1")
    I(f"""
    v_mov_b32_dpp v{T+2}, v{T} row_newbcast:8 row_mask:0xf bank_mask:0xf
    v_mov_b32_dpp v{T+3}, v{T+1} row_newbcast:8 row_mask:0xf bank_mask:0xf
    v_add_f32 v{T}, v{T}, v{XU}
    v_add_f32 v{T+1}, v{T+1}, v{XU+1}
    v_cmp_eq_f32 vcc, s88, v{T+2}
    v_cmp_eq_f32 s[86:87], s88, v{T+3}
    v_cvt_pk_bf16_f32 v{T}, v{T}, v{T+1}
    s_and_b64 exec, vcc, s[90:91]
    s_cbranch_execz L_nost0
    buffer_store_short v{T}, v{V_W2}, s[36:39], 0 offen
    """)
    g.label("L_nost0")
    I(f"""
    s_and_b64 exec, s[86:87], s[90:91]
    s_cbranch_execz L_nost1
    buffer_store_short_d16_hi v{T}, v{V_W2}, s[36:39], 0 offen offset:8
    """)
    g.label("L_nost1")
    if stamps:
        I("s_mov_b64 exec, -1")
        stamp()
        I(f"""
        s_getreg_b32 s96, hwreg(HW_REG_XCC_ID)
        s_nop 0
        v_writelane_b32 v125, s96, 6
        s_lshl_b32 s88, s2, 9
        s_lshl_b32 s89, s3, 5
        s_add_u32 s88, s88, s89
        s_add_u32 s88, s88, {STAMP_OFF}
        s_mov_b64 exec, 0xff
        buffer_store_dword v125, v{V_T2}, s[28:31], s88 offen
        """)
    probs = check_gen(g)
    for p in probs: print("HAZARD", p, file=sys.stderr)
    body = g.text()
    head = f"""; gated mix of sliding-window decode attention and SwiGLU FFN, one workgroup per (batch, head)
; @launch grid=(256,1,1) block=(512,1,1) lds={LDS_BYTES}
.amdgcn_target "amdgcn-amd-amdhsa--gfx950"
.text
.globl {KNAME}
.p2align 8
.type {KNAME},@function
{KNAME}:
"""
    foot = f"""L_end:
    s_endpgm
.section .rodata,"a"
.p2align 6
.amdhsa_kernel {KNAME}
  .amdhsa_next_free_vgpr 256
  .amdhsa_next_free_sgpr 102
  .amdhsa_accum_offset 256
  .amdhsa_group_segment_fixed_size 0
  .amdhsa_kernarg_size 104
  .amdhsa_user_sgpr_count 2
  .amdhsa_user_sgpr_kernarg_segment_ptr 1
  .amdhsa_system_sgpr_workgroup_id_x 1
  .amdhsa_float_denorm_mode_32 3
.end_amdhsa_kernel
"""
    return head + body + foot, probs

if __name__ == "__main__":
    out = sys.argv[1]
    kw = {}
    for a in sys.argv[2:]:
        k, v = a.split("=")
        kw[k] = eval(v)
    txt, probs = gen(**kw)
    open(out, "w").write(txt)
```

```python
import sys, struct
from asmlib import Gen, check_gen

KNAME = "gated_mix__sliding_block_cached__glu_gated_swiglu__decode_kernel"
HEAD = open("head.txt").read() if False else ""

def f2u(x): return struct.unpack("<I", struct.pack("<f", x))[0]

L_O, L_Q, L_H, L_G, L_CNT, L_ML = 0, 2304, 2560, 2816, 2832, 2880
LDS_BYTES = 3072
ACC_OFF = 2 * 1024 * 1024
EP_OFF = ACC_OFF + 65536
STAMP_OFF = 4 * 1024 * 1024
WS_BYTES = 8 * 1024 * 1024

V_L16, V_WO, V_W2, V_LANE, V_T0, V_T1, V_T2 = 1, 2, 3, 4, 5, 6, 7
Q = 8; MASK = 12; S = 16; A4 = 24; TT = 28; F = 30; ACC0 = 32; ACC1 = 36; AOP = 40
T = 48
STG = 56
W2R = 72
X = 104
V_FAC = 120; V_MC = 121; V_G = 122
V_LH = 124
XU = 126
SLOT = 128
def slot(n): return SLOT + 4 * n
def r4(b): return f"v[{b}:{b+3}]"

def gen(D=4, POLL=11, SYNC=24, W2POS=None, WOPOS=None, B2AT=10, stamps=False, kvpol="nt", wpol="nt"):
    g = Gen()
    I = g.I
    if W2POS is None: W2POS = [8, 10, 12, 14, 16, 18, 20, 22]
    if WOPOS is None: WOPOS = [0, 2, 3, 5, 6, 8, 9, 11, 12, 14, 15, 17, 18, 20, 21, 23]
    nst = [0]
    names = []
    def stamp(name):
        if stamps:
            if name not in names: names.append(name)
            k = names.index(name)
            assert k < 15
            I(f"s_memrealtime s[{96}:{97}]\ns_waitcnt lgkmcnt(0)\nv_writelane_b32 v125, s96, {k}")
    I(f"""
    s_cmp_ge_u32 s2, 256
    s_cbranch_scc1 L_end""")
    if stamps:
        I("v_mov_b32 v125, 0")
        stamp("start")
    I(f"""
    s_load_dwordx16 s[48:63], s[0:1], 0
    s_load_dwordx8 s[64:71], s[0:1], 64
    s_load_dwordx2 s[72:73], s[0:1], 96
    v_mov_b32 v{T+8}, 0
    v_lshrrev_b32 v{V_T0}, 6, v0
    v_and_b32 v{V_LANE}, 63, v0
    v_readfirstlane_b32 s3, v{V_T0}
    v_lshlrev_b32 v{V_L16}, 4, v{V_LANE}
    s_lshr_b32 s44, s2, 5
    s_and_b32 s45, s2, 31
    s_mov_b32 s7, 0x20000
    s_mov_b32 s11, 0x20000
    s_mov_b32 s23, 0x20000
    s_mov_b32 s27, 0x20000
    s_mov_b32 s31, 0x20000
    s_mov_b32 s43, 0x20000
    s_mov_b32 s26, 8192
    s_mov_b32 s30, {WS_BYTES}
    s_mov_b32 s42, 1024
    s_and_b32 s85, s3, 3
    s_lshl_b32 s86, s85, 13
    s_lshr_b32 s87, s3, 2
    s_lshl_b32 s87, s87, 12
    s_or_b32 s86, s86, s87
    s_sub_u32 s6, 0x40000, s86
    s_mov_b32 s10, s6
    s_lshl_b32 s87, s2, 20
    s_add_u32 s86, s86, s87
    s_add_u32 s86, s86, 0xc0000
    s_and_b32 s87, s45, 7
    s_lshl_b32 s87, s87, 2
    s_lshr_b32 s88, s45, 3
    s_add_u32 s87, s87, s88
    s_mul_i32 s87, s87, 172
    s_lshr_b32 s78, s87, 5
    s_add_u32 s87, s87, 172
    s_lshr_b32 s79, s87, 5
    s_sub_u32 s79, s79, s78
    s_lshl_b32 s87, s45, 8
    s_lshl_b32 s88, s85, 7
    s_add_u32 s87, s87, s88          ; 256h + 128u
    s_lshl_b32 s88, s78, 4           ; 16*c0
    s_cmp_lt_u32 s85, 2
    s_cselect_b32 s76, s26, 2752    ; stride
    s_cselect_b32 s87, s87, s88
    s_cselect_b32 s89, 8, s79
    s_lshl_b32 s22, s76, 9
    s_lshl_b32 s88, s44, 6
    s_mul_i32 s88, s88, s76
    s_add_u32 s87, s87, s88
    s_sub_u32 s22, s22, s87
    s_lshl_b32 s88, s44, 7
    s_lshl_b32 s99, s45, 10
    s_add_u32 s99, s99, {EP_OFF}
    s_add_u32 s100, s99, s88
    v_and_b32 v{T+5}, 0x38, v0
    v_lshlrev_b32 v{T+5}, 4, v{T+5}  ; (lane>>3)*128
    v_bfe_u32 v{V_T0}, v0, 3, 1
    v_bfe_u32 v{V_T1}, v0, 4, 2
    v_lshlrev_b32 v{V_T1}, 3, v{V_T1}
    v_lshl_add_u32 v{V_T0}, v{V_T0}, 5, v{V_T1}        ; 32 khalf + 8 g
    v_and_b32 v{V_T2}, 7, v0
    v_lshlrev_b32 v{T+1}, 4, v{V_T2}                   ; i8*16
    v_mad_u32_u24 v{T}, v{V_T0}, s76, v{T+1}
    v_cmp_gt_u32 vcc, s89, v{V_T2}
    v_bfrev_b32 v{T+2}, 1
    v_lshl_add_u32 v{V_W2}, v{V_T0}, 10, v{T+1}
    v_cndmask_b32 v{T}, v{T+2}, v{T}, vcc
    v_and_b32 v{T+2}, 1, v0
    v_lshl_add_u32 v{T+2}, v{T+2}, 5, v{V_T1}          ; 32(m&1) + 8g
    v_lshlrev_b32 v{V_LH}, 1, v{T+2}
    v_bfe_u32 v{T+3}, v0, 1, 3
    v_lshl_add_u32 v{T+3}, v{T+3}, 10, v{V_LH}
    s_cmp_eq_u32 s85, 2
    s_waitcnt lgkmcnt(0)
    s_cselect_b32 s20, s60, s62
    s_cselect_b32 s21, s61, s63
    s_cmp_lt_u32 s85, 2
    s_cselect_b32 s20, s54, s20
    s_cselect_b32 s21, s55, s21
    s_add_u32 s20, s20, s87
    s_addc_u32 s21, s21, 0
    s_mov_b32 s24, s48
    s_mov_b32 s25, s49
    s_add_u32 s4, s50, s86
    s_addc_u32 s5, s51, 0
    s_mov_b32 s28, s72
    s_mov_b32 s29, s73
    s_mov_b32 s40, s66
    s_mov_b32 s41, s67
    """)
    W1RAW = slot(8); W1FR = slot(16); W1ACC = slot(24); XOP = X + 8; Y = X
    g.begin('A', "s_cmp_ge_u32 s3, 4\ns_cbranch_scc1")
    g.vm(f"buffer_load_dwordx4 {r4(XOP)}, v{T+3}, s[24:27], s88 offen", "xop")
    g.vm(f"buffer_load_dword v{T+6}, v{T+5}, s[28:31], s99 offen", "ep")
    g.vm(f"buffer_load_dwordx4 {r4(W1RAW)}, v{T}, s[20:23], 0 offen {wpol}", "s1_0")
    I("s_mov_b32 s77, s76")
    for j in range(1, 8):
        g.vm(f"buffer_load_dwordx4 {r4(W1RAW+4*j)}, v{T}, s[20:23], s77 offen {wpol}", f"s1_{j}")
        if j < 7: I("s_add_u32 s77, s77, s76")
    g.end()
    g.begin('B', "s_cmp_lt_u32 s3, 4\ns_cbranch_scc1")
    I("s_load_dword s98, s[72:73], s100\ns_lshl_b32 s88, s44, 10")
    g.vm(f"buffer_load_dwordx4 {r4(X)}, v{V_L16}, s[24:27], s88 offen", "gx")
    g.vm(f"buffer_load_dwordx4 {r4(X+4)}, v{V_L16}, s[40:43], 0 offen", "gw")
    g.end()

    I("s_mov_b32 s74, 0\ns_mov_b32 s75, 0x8000")
    def kload(n):
        if n % 4 == 0 and n > 0: I("s_add_u32 s74, s74, s75")
        g.vm(f"buffer_load_dwordx4 {r4(slot(n))}, v{V_L16}, s[4:7], s74 offen offset:{(n%4)*1024} {kvpol}", f"k{n}")
    def vload(n):
        if n == 0: I("s_mov_b32 s74, 0")
        if n % 4 == 0 and n > 0: I("s_add_u32 s74, s74, s75")
        g.vm(f"buffer_load_dwordx4 {r4(slot(n%8))}, v{V_L16}, s[8:11], s74 offen offset:{(n%4)*1024} {kvpol}", f"v{n}")
    def w2load(j):
        so = "0" if j < 4 else "s84"
        g.vm(f"buffer_load_dwordx4 {r4(W2R+4*j)}, v{V_W2}, s[16:19], {so} offen offset:{(j%4)*1024} {wpol}", f"w2_{j}")
    def woload(n):
        grp, j = n // 8, n % 8
        if j == 0: I(f"s_movk_i32 s83, {grp*4096}")
        elif j % 2 == 0: I("s_add_u32 s83, s83, s26")
        g.vm(f"buffer_load_dwordx4 {r4(STG+4*(n%4))}, v{V_WO}, s[12:15], s83 offen offset:{(j%2)*2048} {wpol}", f"wo{n}")
    for n in range(D): kload(n)

    I(f"""
    s_add_u32 s8, s52, s86
    s_addc_u32 s9, s53, 0
    s_lshl_b32 s87, s3, 7                 ; 128 w
    s_lshl_b32 s88, s45, 17
    s_add_u32 s88, s88, s87
    s_add_u32 s12, s56, s88
    s_addc_u32 s13, s57, 0
    s_sub_u32 s14, 0x20000, s87
    s_mov_b32 s15, 0x20000
    s_lshl_b32 s88, s78, 13               ; c0*8 rows * 1024
    s_add_u32 s88, s88, s87
    s_add_u32 s16, s64, s88
    s_addc_u32 s17, s65, 0
    s_lshl_b32 s18, s79, 13
    s_sub_u32 s18, s18, s87
    s_mov_b32 s19, 0x20000
    s_mov_b32 s32, s70
    s_mov_b32 s33, s71
    s_mov_b32 s34, 256
    s_mov_b32 s35, 0x20000
    s_lshl_b32 s88, s44, 10
    s_add_u32 s88, s88, s87
    s_add_u32 s36, s68, s88
    s_addc_u32 s37, s69, 0
    s_sub_u32 s38, 8192, s88
    s_mov_b32 s39, 0x20000
    s_mov_b32 s46, 0x05040100
    s_mov_b32 s47, 0x07060302
    s_movk_i32 s84, 4096
    s_mov_b32 s93, {f2u(1.4426950408889634):#x}
    s_mov_b32 s94, {f2u(128 ** -0.5):#x}
    s_mov_b32 s95, 0xffff0000
    s_lshl_b32 s80, s45, 16
    s_lshl_b32 s88, s44, 13
    s_add_u32 s81, s80, s88
    s_lshl_b32 s88, s85, 11
    s_add_u32 s81, s81, s88
    s_lshr_b32 s88, s85, 1
    s_lshl_b32 s88, s88, 12
    s_add_u32 s80, s80, s88
    s_lshl_b32 s88, s44, 8
    s_add_u32 s80, s80, s88
    s_and_b32 s88, s85, 1
    s_lshl_b32 s88, s88, 7
    s_add_u32 s80, s80, s88               ; producer
    s_lshl_b32 s82, s44, 12
    s_add_u32 s82, s82, {ACC_OFF}
    v_bfe_u32 v{V_T0}, v0, 4, 2
    v_lshl_add_u32 v{V_WO}, v{V_T0}, 15, v{T+1}
    v_bfe_u32 v{V_T0}, v0, 3, 1
    v_lshl_add_u32 v{V_WO}, v{V_T0}, 10, v{V_WO}
    v_lshrrev_b32 v{V_T0}, 3, v{V_LANE}
    v_lshl_add_u32 v{T+4}, v{V_T0}, 13, v{T+1}
    ; masks
    v_and_b32 v{V_T0}, 1, v0
    v_lshlrev_b32 v{V_T0}, 4, v{V_T0}
    v_mov_b32 v{V_T1}, 0xffff
    v_lshlrev_b32 v{V_T1}, v{V_T0}, v{V_T1}
    v_bfe_u32 v{V_T0}, v0, 1, 2
    """)
    for r in range(4):
        I(f"v_cmp_eq_u32 vcc, {r}, v{V_T0}\ns_nop 1\nv_cndmask_b32 v{MASK+r}, 0, v{V_T1}, vcc")
    I(f"""
    v_mov_b32 v{T+9}, 0
    v_mov_b32 v{T+10}, 0
    v_mov_b32 v{T+11}, 0
    v_mov_b32 v{F}, 1.0
    v_mov_b32 v{F+1}, 1.0
    v_mov_b32 v{XU}, 0
    v_mov_b32 v{XU+1}, 0
    """)
    stamp("b0")
    g.begin('A', "s_cmp_ge_u32 s3, 4\ns_cbranch_scc1")
    I("""
    s_mov_b32 s88, 0x07060500
    s_mov_b32 s89, 0x07060501
    s_mov_b32 s90, 0x07060502
    s_mov_b32 s91, 0x07060503
    """)
    for jj in range(4):
        g.wait(f"s1_{2*jj+1}")
        for q in range(4):
            for e in range(2):
                I(f"v_perm_b32 v{W1FR+4*(2*q+e)+jj}, v{W1RAW+4*(2*jj+1)+q}, v{W1RAW+4*(2*jj)+q}, s{46+e}")
    for c in range(8):
        I(f"v_mfma_f32_16x16x32_bf16 {r4(W1ACC+4*c)}, {r4(XOP)}, {r4(W1FR+4*c)}, 0")
    I(f"v_add_u32 v{T+6}, 0x01010101, v{T+6}\ns_nop 0")
    for c in range(8):
        a = W1ACC + 4 * c
        I(f"v_add_f32_dpp v{Y+c}, v{a+1}, v{a} row_ror:8 row_mask:0xf bank_mask:0x3")
        I(f"v_add_f32_dpp v{Y+c}, v{a+2}, v{a+3} row_ror:8 row_mask:0xf bank_mask:0xc")
        I(f"v_perm_b32 v{Y+c}, v{Y+c}, v{T+6}, s{88+c%4}")
    g.vm(f"buffer_store_dwordx4 {r4(Y)}, v{T+4}, s[28:31], s80 offen sc1", "ex0")
    g.vm(f"buffer_store_dwordx4 {r4(Y+4)}, v{T+4}, s[28:31], s80 offen offset:2048 sc1", "ex1")
    stamp("s1done")
    g.end()
    g.begin('B', "s_cmp_lt_u32 s3, 4\ns_cbranch_scc1")
    g.wait("gw")
    I(f"""
    s_lshl_b32 s88, s45, 3
    s_add_u32 s101, s88, s3
    s_cmp_lg_u32 s101, 5
    s_cbranch_scc1 L_nozero
    buffer_store_dwordx4 {r4(T+8)}, v{V_L16}, s[28:31], s82 offen sc1
    buffer_store_dwordx4 {r4(T+8)}, v{V_L16}, s[28:31], s82 offen offset:1024 sc1
    buffer_store_dwordx4 {r4(T+8)}, v{V_L16}, s[28:31], s82 offen offset:2048 sc1
    buffer_store_dwordx4 {r4(T+8)}, v{V_L16}, s[28:31], s82 offen offset:3072 sc1
    """)
    g.label("L_nozero")
    for q in range(4):
        I(f"""
        v_lshlrev_b32 v{X+8}, 16, v{X+q}
        v_and_b32 v{X+9}, s95, v{X+q}
        v_lshlrev_b32 v{X+10}, 16, v{X+4+q}
        v_and_b32 v{X+11}, s95, v{X+4+q}
        v_mul_f32 v{X+8}, v{X+8}, v{X+10}
        v_mul_f32 v{X+9}, v{X+9}, v{X+11}
        v_cvt_pk_bf16_f32 v{X+q}, v{X+8}, v{X+9}
        """)
    I(f"""
    v_mov_b32 v{X+8}, 0
    v_mov_b32 v{X+9}, 0x3f803f80
    v_dot2c_f32_bf16 v{X+8}, v{X}, v{X+9}
    v_dot2c_f32_bf16 v{X+8}, v{X+1}, v{X+9}
    v_dot2c_f32_bf16 v{X+8}, v{X+2}, v{X+9}
    v_dot2c_f32_bf16 v{X+8}, v{X+3}, v{X+9}
    s_nop 2
    v_add_f32_dpp v{X+8}, v{X+8}, v{X+8} quad_perm:[1,0,3,2] row_mask:0xf bank_mask:0xf
    s_nop 1
    v_add_f32_dpp v{X+8}, v{X+8}, v{X+8} quad_perm:[2,3,0,1] row_mask:0xf bank_mask:0xf
    s_nop 1
    v_add_f32_dpp v{X+8}, v{X+8}, v{X+8} row_ror:4 row_mask:0xf bank_mask:0xf
    s_nop 1
    v_add_f32_dpp v{X+8}, v{X+8}, v{X+8} row_ror:8 row_mask:0xf bank_mask:0xf
    v_mov_b32 v{X+9}, v{X+8}
    s_nop 1
    v_permlane16_swap_b32 v{X+8}, v{X+9}
    v_add_f32 v{X+8}, v{X+8}, v{X+9}
    v_mov_b32 v{X+9}, v{X+8}
    s_nop 1
    v_permlane32_swap_b32 v{X+8}, v{X+9}
    v_add_f32 v{X+8}, v{X+8}, v{X+9}
    v_cvt_pk_bf16_f32 v{X+8}, v{X+8}, v{X+8}
    v_and_b32 v{X+8}, s95, v{X+8}
    v_mul_f32 v{X+8}, s93, v{X+8}
    v_exp_f32 v{X+8}, -v{X+8}
    s_nop 0
    v_add_f32 v{X+8}, 1.0, v{X+8}
    v_rcp_f32 v{X+8}, v{X+8}
    s_nop 0
    v_cvt_pk_bf16_f32 v{X+8}, v{X+8}, v{X+8}
    v_and_b32 v{X+8}, s95, v{X+8}
    v_sub_f32 v{X+9}, 1.0, v{X+8}
    v_cvt_pk_bf16_f32 v{X+9}, v{X+9}, v{X+9}
    v_and_b32 v{X+9}, s95, v{X+9}
    ds_write_b64 v{T+8}, v[{X+8}:{X+9}] offset:{L_G}
    """)
    stamp("s1done")
    g.end()

    kgroups_done = [0]
    def consume_group(k):
        s0 = 4 * k
        for i in range(4):
            I(f"v_dot2_f32_bf16 v{A4+i}, v{slot(s0+i)}, v{Q}, 0")
        for q in range(1, 4):
            for i in range(4):
                I(f"v_dot2c_f32_bf16 v{A4+i}, v{slot(s0+i)+q}, v{Q+q}")
        I(f"""
        v_add_f32_dpp v{TT}, v{A4}, v{A4} row_ror:8 row_mask:0xf bank_mask:0x3
        v_add_f32_dpp v{TT}, v{A4+1}, v{A4+1} row_ror:8 row_mask:0xf bank_mask:0xc
        v_add_f32_dpp v{TT+1}, v{A4+2}, v{A4+2} row_ror:8 row_mask:0xf bank_mask:0x3
        v_add_f32_dpp v{TT+1}, v{A4+3}, v{A4+3} row_ror:8 row_mask:0xf bank_mask:0xc
        v_add_f32_dpp v{S+k}, v{TT}, v{TT} row_half_mirror row_mask:0xf bank_mask:0x5
        s_nop 0
        v_add_f32_dpp v{S+k}, v{TT+1}, v{TT+1} row_half_mirror row_mask:0xf bank_mask:0xa
        s_nop 1
        v_add_f32_dpp v{S+k}, v{S+k}, v{S+k} quad_perm:[1,0,3,2] row_mask:0xf bank_mask:0xf
        s_nop 1
        v_add_f32_dpp v{S+k}, v{S+k}, v{S+k} quad_perm:[2,3,0,1] row_mask:0xf bank_mask:0xf
        """)
        if k % 2 == 1:
            a, b = S + k - 1, S + k
            I(f"""
            v_cvt_pk_bf16_f32 v{TT}, v{a}, v{b}
            v_lshlrev_b32 v{a}, 16, v{TT}
            v_and_b32 v{b}, s95, v{TT}
            v_mul_f32 v{a}, s94, v{a}
            v_mul_f32 v{b}, s94, v{b}
            v_cvt_pk_bf16_f32 v{TT}, v{a}, v{b}
            v_lshlrev_b32 v{a}, 16, v{TT}
            v_and_b32 v{b}, s95, v{TT}
            """)
        kgroups_done[0] = k + 1

    def allred(v, t, op):
        I(f"""
        s_nop 1
        {op}_dpp v{v}, v{v}, v{v} row_ror:4 row_mask:0xf bank_mask:0xf
        s_nop 1
        {op}_dpp v{v}, v{v}, v{v} row_ror:8 row_mask:0xf bank_mask:0xf
        v_mov_b32 v{t}, v{v}
        s_nop 1
        v_permlane16_swap_b32 v{v}, v{t}
        {op} v{v}, v{v}, v{t}
        v_mov_b32 v{t}, v{v}
        s_nop 1
        v_permlane32_swap_b32 v{v}, v{t}
        {op} v{v}, v{v}, v{t}
        """)

    def softmax():
        m = TT
        I(f"""
        v_max3_f32 v{m}, v{S}, v{S+1}, v{S+2}
        v_max3_f32 v{m}, v{m}, v{S+3}, v{S+4}
        v_max3_f32 v{m}, v{m}, v{S+5}, v{S+6}
        v_max_f32 v{m}, v{m}, v{S+7}
        """)
        allred(m, A4, "v_max_f32")
        I(f"v_mul_f32 v{m}, s93, v{m}")
        for k in range(8):
            I(f"v_fma_f32 v{S+k}, v{S+k}, s93, -v{m}")
        for k in range(8):
            I(f"v_exp_f32 v{S+k}, v{S+k}")
        l = TT + 1
        I(f"v_add_f32 v{l}, v{S}, v{S+1}")
        for k in range(2, 8):
            I(f"v_add_f32 v{l}, v{l}, v{S+k}")
        for k in range(8):
            I(f"v_cvt_pk_bf16_f32 v{S+k}, v{S+k}, v{S+k}")
        allred(l, A4, "v_add_f32")
        I(f"""
        s_lshl_b32 s88, s3, 3
        v_mov_b32 v{A4}, s88
        v_mov_b32 v{V_MC}, v{m}
        ds_write_b64 v{A4}, v[{TT}:{TT+1}] offset:{L_ML}
        """)

    def ffn_down(q):
        for e in range(2):
            for jj in range(4):
                I(f"v_perm_b32 v{X+4*e+jj}, v{W2R+4*(2*jj+1)+q}, v{W2R+4*(2*jj)+q}, s{46+e}")
        I("s_nop 1")
        for e in range(2):
            I(f"v_mfma_f32_16x16x32_bf16 {r4(X+8+4*e)}, {r4(T)}, {r4(X+4*e)}, 0")
        I("s_nop 7")
        for e in range(2):
            c = 2 * q + e
            a = X + 8 + 4 * e
            I(f"v_add_f32_dpp v{F+c//4}, v{a+1}, v{a} row_ror:8 row_mask:{1 << (c%4):#x} bank_mask:0x3")
        if q == 3:
            I("s_nop 1")
            for u in range(2):
                I(f"v_mul_f32_dpp v{F+u}, v{F+u}, v{V_G+1} quad_perm:[0,1,2,3] row_mask:0xf bank_mask:0x3")

    def build_a(t):
        k, half = t // 2, t % 2
        for r in range(4):
            mir = (r >= 2) != (half == 1)
            d = AOP + 4 * (t % 2) + r
            if mir:
                I(f"v_and_b32_dpp v{d}, v{S+k}, v{MASK+r} row_half_mirror row_mask:0xf bank_mask:0xf")
            else:
                I(f"v_and_b32 v{d}, v{S+k}, v{MASK+r}")

    vdone = [0]
    def pv(n):
        t = n // 2
        acc = ACC0 if n % 2 == 0 else ACC1
        c = "0" if n < 2 else r4(acc)
        I(f"v_mfma_f32_16x16x32_bf16 {r4(acc)}, {r4(AOP+4*(t%2))}, {r4(slot(n%8))}, {c}")
        vdone[0] = n + 1
        if n % 2 == 1 and t + 2 < 16:
            build_a(t + 2)

    wopairs = [0]
    def wo_perm(p):
        grp, jj = p // 4, p % 4
        a, b = STG + 4 * ((2 * p) % 4), STG + 4 * ((2 * p + 1) % 4)
        for q in range(4):
            for e in range(2):
                I(f"v_perm_b32 v{slot(8)+32*grp+4*(2*q+e)+jj}, v{b+q}, v{a+q}, s{46+e}")
        wopairs[0] = p + 1

    def zcheck_issue():
        I("s_lshl_b32 s99, s44, 5\ns_load_dword s98, s[70:71], s99")
    def ml_combine():
        I(f"""
        s_waitcnt lgkmcnt(0)
        s_cmp_eq_u32 s98, 1
        s_cbranch_scc1 L_zok
        s_mov_b32 s92, 200000
        v_mov_b32 v{A4}, 0
        s_mov_b64 exec, 1""")
        g.label("L_zpoll")
        I(f"""
        buffer_load_dword v{A4+1}, v{A4}, s[32:35], s99 offen sc1
        s_waitcnt vmcnt(0)
        v_cmp_eq_u32 vcc, 1, v{A4+1}
        s_cbranch_vccnz L_zdone
        s_sub_u32 s92, s92, 1
        s_cbranch_scc0 L_zpoll""")
        g.label("L_zdone")
        I("s_mov_b64 exec, -1")
        g.label("L_zok")
        I(f"""
        s_barrier
        v_and_b32 v{A4}, 7, v0
        v_lshlrev_b32 v{A4}, 3, v{A4}
        ds_read_b64 v[{A4}:{A4+1}], v{A4} offset:{L_ML}
        s_waitcnt lgkmcnt(0)
        v_max_f32_dpp v{A4+2}, v{A4}, v{A4} quad_perm:[1,0,3,2] row_mask:0xf bank_mask:0xf
        s_nop 1
        v_max_f32_dpp v{A4+2}, v{A4+2}, v{A4+2} quad_perm:[2,3,0,1] row_mask:0xf bank_mask:0xf
        s_nop 1
        v_max_f32_dpp v{A4+2}, v{A4+2}, v{A4+2} row_half_mirror row_mask:0xf bank_mask:0xf
        v_sub_f32 v{A4}, v{A4}, v{A4+2}
        v_sub_f32 v{V_MC}, v{V_MC}, v{A4+2}
        v_exp_f32 v{A4}, v{A4}
        v_exp_f32 v{V_MC}, v{V_MC}
        v_mul_f32 v{A4}, v{A4}, v{A4+1}
        v_mul_f32 v{V_MC}, v{V_MC}, v{V_G}
        s_nop 0
        v_add_f32_dpp v{A4}, v{A4}, v{A4} quad_perm:[1,0,3,2] row_mask:0xf bank_mask:0xf
        s_nop 1
        v_add_f32_dpp v{A4}, v{A4}, v{A4} quad_perm:[2,3,0,1] row_mask:0xf bank_mask:0xf
        s_nop 1
        v_add_f32_dpp v{A4}, v{A4}, v{A4} row_half_mirror row_mask:0xf bank_mask:0xf
        v_rcp_f32 v{A4}, v{A4}
        s_nop 0
        v_mul_f32 v{V_FAC}, v{V_MC}, v{A4}
        v_lshlrev_b32 v{V_T2}, 2, v{V_LANE}
        s_mul_i32 s88, s3, 288
        v_add_u32 v{V_T0}, s88, v{V_T2}
        v_bfe_u32 v{V_T1}, v0, 1, 3
        v_mul_u32_u24 v{V_T1}, 288, v{V_T1}
        v_and_b32 v{A4}, 1, v0
        v_lshl_add_u32 v{V_T1}, v{A4}, 7, v{V_T1}
        v_and_b32 v{A4}, 48, v0
        v_add_u32 v{V_T1}, v{A4}, v{V_T1}
        v_and_b32 v{V_W2}, 15, v0
        v_lshlrev_b32 v{V_W2}, 4, v{V_W2}
        v_lshrrev_b32 v{A4}, 4, v{V_LANE}
        v_lshl_add_u32 v{V_W2}, v{A4}, 1, v{V_W2}
        s_lshl_b32 s88, s3, 9
        s_add_u32 s82, s82, s88
        """)

    w2n = 0
    synced = False
    ffn_q = 0
    PX = slot(30)
    for n in range(D, 32):
        if n == 2 * D:
            g.begin('B', "s_cmp_lt_u32 s3, 4\ns_cbranch_scc1")
            I(f"""
            s_cmp_lg_u32 s101, 5
            s_cbranch_scc1 L_noflag
            s_waitcnt vmcnt(0)
            v_mov_b32 v{X}, 1
            s_lshl_b32 s88, s44, 5
            s_mov_b64 exec, 1
            buffer_store_dword v{X}, v{T+8}, s[32:35], s88 offen sc1
            s_mov_b64 exec, -1
            """)
            g.label("L_noflag")
            g.end()
        if n == POLL:
            g.begin('B', "s_cmp_lt_u32 s3, 4\ns_cbranch_scc1")
            g.vm(f"buffer_load_dwordx4 {r4(PX)}, v{V_L16}, s[28:31], s81 offen sc1", "px0")
            g.vm(f"buffer_load_dwordx4 {r4(PX+4)}, v{V_L16}, s[28:31], s81 offen offset:1024 sc1", "px1")
            g.end()
        if n == POLL + D:
            g.begin('B', "s_cmp_lt_u32 s3, 4\ns_cbranch_scc1")
            I(f"""
            v_and_b32 v{X}, 15, v0
            v_lshlrev_b32 v{X}, 4, v{X}
            v_bfe_u32 v{X+1}, v0, 4, 1
            v_lshl_add_u32 v{X}, v{X+1}, 2, v{X}
            v_bfe_u32 v{X+1}, v0, 5, 1
            v_lshl_add_u32 v{X}, v{X+1}, 1, v{X}
            s_and_b32 s88, s3, 1
            s_lshl_b32 s88, s88, 3
            s_and_b32 s89, s3, 2
            s_lshl_b32 s89, s89, 7
            s_add_u32 s88, s88, s89
            v_add_u32 v{X}, s88, v{X}
            """)
            g.wait("px1")
            stamp("x1")
            I(f"""
            s_waitcnt lgkmcnt(0)
            s_add_u32 s98, s98, 0x01010101
            s_mov_b32 s92, 200000
            s_mov_b32 s88, 0x0c0c0400
            s_mov_b32 s89, 0x04000c0c""")
            g.label("L_poll")
            I(f"""
            v_perm_b32 v{X+2}, v{PX+1}, v{PX}, s88
            v_perm_b32 v{X+3}, v{PX+3}, v{PX+2}, s89
            v_perm_b32 v{X+4}, v{PX+5}, v{PX+4}, s88
            v_perm_b32 v{X+5}, v{PX+7}, v{PX+6}, s89
            v_or_b32 v{X+2}, v{X+2}, v{X+3}
            v_or_b32 v{X+4}, v{X+4}, v{X+5}
            v_cmp_ne_u32 vcc, s98, v{X+2}
            v_cmp_ne_u32 s[86:87], s98, v{X+4}
            s_or_b64 vcc, vcc, s[86:87]
            s_cbranch_scc0 L_polled
            s_sub_u32 s92, s92, 1
            s_cbranch_scc1 L_polled
            buffer_load_dwordx4 {r4(PX)}, v{V_L16}, s[28:31], s81 offen sc1
            buffer_load_dwordx4 {r4(PX+4)}, v{V_L16}, s[28:31], s81 offen offset:1024 sc1
            s_waitcnt vmcnt(0)
            s_branch L_poll""")
            g.label("L_polled")
            stamp("x2")
            I(f"""
            v_pk_add_f32 v[{PX}:{PX+1}], v[{PX}:{PX+1}], v[{PX+4}:{PX+5}]
            v_pk_add_f32 v[{PX+2}:{PX+3}], v[{PX+2}:{PX+3}], v[{PX+6}:{PX+7}]
            s_nop 0
            v_permlane32_swap_b32 v{PX}, v{PX+1}
            v_permlane32_swap_b32 v{PX+2}, v{PX+3}
            v_add_f32 v{PX}, v{PX}, v{PX+1}
            v_add_f32 v{PX+2}, v{PX+2}, v{PX+3}
            s_nop 1
            v_permlane16_swap_b32 v{PX}, v{PX+2}
            v_add_f32 v{PX}, v{PX}, v{PX+2}
            v_cvt_pk_bf16_f32 v{PX}, v{PX}, v{PX}
            v_and_b32 v{PX+1}, s95, v{PX}
            v_mul_f32 v{PX+2}, s93, v{PX+1}
            v_exp_f32 v{PX+2}, -v{PX+2}
            s_nop 0
            v_add_f32 v{PX+2}, 1.0, v{PX+2}
            v_rcp_f32 v{PX+2}, v{PX+2}
            s_nop 0
            v_mul_f32 v{PX+2}, v{PX+2}, v{PX+1}
            v_cvt_pk_bf16_f32 v{PX+2}, v{PX+2}, v{PX+2}
            v_and_b32 v{PX+2}, s95, v{PX+2}
            v_mul_f32_dpp v{PX+2}, v{PX+1}, v{PX+2} row_ror:8 row_mask:0xf bank_mask:0xf
            s_cmp_ge_u32 s3, 6
            s_cselect_b64 vcc, -1, 0
            v_cvt_pk_bf16_f32 v{PX+2}, v{PX+2}, v{PX+2}
            v_cndmask_b32 v{PX}, v{PX}, v{PX+2}, vcc
            ds_write_b16 v{X}, v{PX} offset:{L_Q}
            """)
            g.end()
        if n == SYNC:
            stamp("sync")
            I(f"""
            s_waitcnt lgkmcnt(0)
            s_barrier""")
            stamp("synced")
            I(f"""
            v_and_b32 v{V_T0}, 0xf0, v{V_L16}
            v_mov_b32 v{V_T1}, 0
            ds_read_b128 {r4(Q)}, v{V_T0} offset:{L_Q}
            ds_read_b128 {r4(T)}, v{V_LH} offset:{L_H}
            ds_read_b64 v[{V_G}:{V_G+1}], v{V_T1} offset:{L_G}
            """)
            I(f"""
            s_cmp_lg_u32 s3, 4
            s_cbranch_scc1 L_nobump
            v_mov_b32 v{X}, s98
            s_mov_b64 exec, 1
            buffer_store_dword v{X}, v{V_T1}, s[28:31], s100 offen
            s_mov_b64 exec, -1
            """)
            g.label("L_nobump")
            synced = True
        g.waitn(D - 1)
        kload(n)
        if n == SYNC:
            I("s_waitcnt lgkmcnt(0)")
        if synced:
            k = kgroups_done[0]
            if k < 8 and 4 * k + 3 <= n and g.is_done(f"k{4*k+3}"):
                consume_group(k)
        if w2n < 8 and n == W2POS[w2n]:
            g.waitn(D - 1)
            w2load(w2n); w2n += 1
    assert w2n == 8
    won = 0
    sm_done = False
    def after_step(n):
        nonlocal sm_done, ffn_q
        k = kgroups_done[0]
        if k < 8:
            if g.is_done(f"k{4*k+3}"):
                consume_group(k)
                if k == 7:
                    softmax(); sm_done = True; stamp("smax")
                    build_a(0); build_a(1)
                    I("s_nop 0")
        if sm_done:
            while vdone[0] <= n and vdone[0] < 32 and g.is_done(f"v{vdone[0]}"):
                pv(vdone[0])
        p = wopairs[0]
        if p < 8 and 2 * p + 1 < won and g.is_done(f"wo{2*p+1}"):
            assert kgroups_done[0] >= 6
            wo_perm(p)
        elif sm_done and ffn_q < 4 and g.is_done("w2_7"):
            ffn_down(ffn_q); ffn_q += 1
    for n in range(32):
        if n == B2AT - 3:
            zcheck_issue()
        if n == B2AT:
            assert sm_done
            ml_combine()
        g.waitn(D - 1)
        if n < 8:
            assert kgroups_done[0] > n // 4
        else:
            assert vdone[0] > n - 8, (n, vdone[0])
        vload(n)
        after_step(n)
        if won < 16 and n == WOPOS[won]:
            g.waitn(D - 1)
            assert won < 4 or wopairs[0] > (won - 4) // 2, (won, wopairs[0])
            woload(won); won += 1
            after_step(n)
    assert won == 16 and ffn_q == 4
    stamp("issued")
    while vdone[0] < 32:
        g.wait(f"v{vdone[0]}")
        after_step(31)
    assert wopairs[0] == 8
    stamp("lastv")
    I(f"""
    s_nop 7
    v_permlane32_swap_b32 v{ACC1}, v{ACC0+1}
    v_permlane32_swap_b32 v{ACC1+2}, v{ACC0+3}
    s_nop 0
    v_add_f32_dpp v{T}, v{ACC0}, v{ACC0+1} quad_perm:[0,1,2,3] row_mask:0x3 bank_mask:0xf
    v_add_f32_dpp v{T+1}, v{ACC0+2}, v{ACC0+3} quad_perm:[0,1,2,3] row_mask:0x3 bank_mask:0xf
    v_add_f32_dpp v{T}, v{ACC1+1}, v{ACC1} quad_perm:[0,1,2,3] row_mask:0xc bank_mask:0xf
    v_add_f32_dpp v{T+1}, v{ACC1+3}, v{ACC1+2} quad_perm:[0,1,2,3] row_mask:0xc bank_mask:0xf
    v_mul_f32 v{T}, v{T}, v{V_FAC}
    v_mul_f32 v{T+1}, v{T+1}, v{V_FAC}
    v_cvt_pk_bf16_f32 v{T}, v{T}, v{T+1}
    ds_write_b32 v{V_T0}, v{T} offset:{L_O}
    s_waitcnt lgkmcnt(0)
    s_barrier
    """)
    stamp("b3")
    I(f"ds_read_b128 {r4(AOP)}, v{V_T1} offset:{L_O}")
    I(f"ds_read_b128 {r4(AOP+4)}, v{V_T1} offset:{L_O+64}")
    TACC = slot(24)
    E = STG
    I("s_waitcnt lgkmcnt(0)")
    def estep(c):
        a = TACC + 4 * c
        I(f"v_add_f32_dpp v{E+c}, v{a}, v{a+2} quad_perm:[0,1,2,3] row_mask:0xf bank_mask:0x3")
        I(f"v_add_f32_dpp v{E+c}, v{a+1}, v{a+3} quad_perm:[0,1,2,3] row_mask:0xf bank_mask:0xc")
    def s32(c):
        I(f"v_permlane32_swap_b32 v{E+c}, v{E+c+2}\nv_add_f32 v{E+c}, v{E+c}, v{E+c+2}")
    def s16(u):
        c = 4 * u
        I(f"v_permlane16_swap_b32 v{E+c}, v{E+c+1}\nv_add_f32 v{E+c}, v{E+c}, v{E+c+1}")
    def fin(u):
        c = 4 * u
        I(f"v_add_f32_dpp v{XU+u}, v{E+c}, v{E+c} row_ror:8 row_mask:0xf bank_mask:0x3")
    order = [0, 2, 1, 3, 4, 6, 5, 7]
    for idx, c in enumerate(order):
        for grp in range(2):
            cc = "0" if grp == 0 else r4(TACC + 4 * c)
            I(f"v_mfma_f32_16x16x32_bf16 {r4(TACC+4*c)}, {r4(AOP+4*grp)}, {r4(slot(8)+32*grp+4*c)}, {cc}")
        if idx >= 4: estep(order[idx - 4])
    s32(0)
    estep(4)
    s32(1)
    estep(6)
    s16(0)
    estep(5)
    s32(4)
    estep(7)
    fin(0)
    I("s_nop 0")
    s32(5)
    I("s_nop 1")
    s16(1)
    I("s_nop 1")
    fin(1)
    stamp("preat")
    I(f"""
    s_mov_b32 exec_lo, 0x01ff01ff
    s_mov_b32 exec_hi, 0x01ff01ff
    v_add_f32 v{T}, v{XU}, v{F}
    v_add_f32 v{T+1}, v{XU+1}, v{F+1}
    """)
    g.vm(f"buffer_atomic_add_f32 v{T}, v{V_T2}, s[28:31], s82 offen sc0", "at0")
    g.vm(f"buffer_atomic_add_f32 v{T+1}, v{V_T2}, s[28:31], s82 offen offset:256 sc0", "at1")
    I(f"""
    v_add_f32 v{XU}, v{XU}, v{F}
    v_add_f32 v{XU+1}, v{XU+1}, v{F+1}
    s_mov_b32 s88, {f2u(31.0):#x}
    s_mov_b32 s90, 0x00ff00ff
    s_mov_b32 s91, 0x00ff00ff
    """)
    g.wait("at1")
    I(f"""
    v_mov_b32_dpp v{T+2}, v{T} row_newbcast:8 row_mask:0xf bank_mask:0xf
    v_mov_b32_dpp v{T+3}, v{T+1} row_newbcast:8 row_mask:0xf bank_mask:0xf
    v_add_f32 v{T}, v{T}, v{XU}
    v_add_f32 v{T+1}, v{T+1}, v{XU+1}
    v_cmp_eq_f32 vcc, s88, v{T+2}
    v_cmp_eq_f32 s[86:87], s88, v{T+3}
    v_cvt_pk_bf16_f32 v{T}, v{T}, v{T+1}
    s_and_b64 exec, vcc, s[90:91]
    s_cbranch_execz L_nost0
    buffer_store_short v{T}, v{V_W2}, s[36:39], 0 offen
    """)
    g.label("L_nost0")
    I(f"""
    s_and_b64 exec, s[86:87], s[90:91]
    s_cbranch_execz L_nost1
    buffer_store_short_d16_hi v{T}, v{V_W2}, s[36:39], 0 offen offset:8
    """)
    g.label("L_nost1")
    if stamps:
        I("s_mov_b64 exec, -1")
        stamp("end")
        I(f"""
        s_getreg_b32 s96, hwreg(HW_REG_XCC_ID)
        s_nop 0
        v_writelane_b32 v125, s96, 15
        s_lshl_b32 s88, s2, 9
        s_lshl_b32 s89, s3, 6
        s_add_u32 s88, s88, s89
        s_add_u32 s88, s88, {STAMP_OFF}
        s_mov_b64 exec, 0xffff
        buffer_store_dword v125, v{V_T2}, s[28:31], s88 offen
        """)
    probs = check_gen(g)
    for p in probs: print("HAZARD", p, file=sys.stderr)
    body = g.text()
    head = f"""; gated mix of sliding-window decode attention and SwiGLU FFN, one workgroup per (batch, head)
; @launch grid=(256,1,1) block=(512,1,1) lds={LDS_BYTES}
.amdgcn_target "amdgcn-amd-amdhsa--gfx950"
.text
.globl {KNAME}
.p2align 8
.type {KNAME},@function
{KNAME}:
"""
    foot = f"""L_end:
    s_endpgm
.section .rodata,"a"
.p2align 6
.amdhsa_kernel {KNAME}
  .amdhsa_next_free_vgpr 256
  .amdhsa_next_free_sgpr 102
  .amdhsa_accum_offset 256
  .amdhsa_group_segment_fixed_size 0
  .amdhsa_kernarg_size 104
  .amdhsa_user_sgpr_count 2
  .amdhsa_user_sgpr_kernarg_segment_ptr 1
  .amdhsa_system_sgpr_workgroup_id_x 1
  .amdhsa_float_denorm_mode_32 3
.end_amdhsa_kernel
"""
    return head + body + foot, probs

if __name__ == "__main__":
    out = sys.argv[1]
    kw = {}
    for a in sys.argv[2:]:
        k, v = a.split("=")
        kw[k] = eval(v)
    txt, probs = gen(**kw)
    open(out, "w").write(txt)
```

```python
import sys, struct
from asmlib import Gen, check_gen

KNAME = "gated_mix__sliding_block_cached__glu_gated_swiglu__decode_kernel"
HEAD = open("head.txt").read() if False else ""

def f2u(x): return struct.unpack("<I", struct.pack("<f", x))[0]

L_O, L_Q, L_H, L_G, L_CNT, L_ML = 0, 2304, 2560, 2816, 2832, 2880
LDS_BYTES = 3072
ACC_OFF = 2 * 1024 * 1024
EP_OFF = ACC_OFF + 65536
STAMP_OFF = 4 * 1024 * 1024
WS_BYTES = 8 * 1024 * 1024

V_L16, V_WO, V_W2, V_LANE, V_T0, V_T1, V_T2 = 1, 2, 3, 4, 5, 6, 7
Q = 8; MASK = 12; S = 16; A4 = 24; TT = 28; F = 30; ACC0 = 32; ACC1 = 36; AOP = 40
T = 48
STG = 56
W2R = 72
X = 104
V_FAC = 120; V_MC = 121; V_G = 122
V_LH = 124
XU = 126
SLOT = 128
def slot(n): return SLOT + 4 * n
def r4(b): return f"v[{b}:{b+3}]"

def gen(D=4, POLL=11, SYNC=24, W2POS=None, WOPOS=None, B2AT=10, stamps=False, kvpol="nt", wpol="nt", spol="", fine=False, VR=8, kill="", xs="sc1 nt", xl="sc1 nt", xlay=1, EXTRA=0, DK=None, DKEND=32):
    g = Gen()
    I = g.I
    if W2POS is None: W2POS = [8, 10, 12, 14, 16, 18, 20, 22]
    if WOPOS is None: WOPOS = [0, 2, 3, 5, 6, 8, 9, 11, 12, 14, 15, 17, 18, 20, 21, 23]
    nst = [0]
    names = []
    def stamp(name):
        if stamps:
            if name not in names: names.append(name)
            k = names.index(name)
            assert k < 15
            I(f"s_memrealtime s[{96}:{97}]\ns_waitcnt lgkmcnt(0)\nv_writelane_b32 v125, s96, {k}")
    I(f"""
    s_cmp_ge_u32 s2, 256
    s_cbranch_scc1 L_end""")
    if stamps:
        I("v_mov_b32 v125, 0")
        stamp("start")
    I(f"""
    s_load_dwordx16 s[48:63], s[0:1], 0
    s_load_dwordx8 s[64:71], s[0:1], 64
    s_load_dwordx2 s[72:73], s[0:1], 96
    v_mov_b32 v{T+8}, 0
    v_lshrrev_b32 v{V_T0}, 6, v0
    v_and_b32 v{V_LANE}, 63, v0
    v_readfirstlane_b32 s3, v{V_T0}
    v_lshlrev_b32 v{V_L16}, 4, v{V_LANE}
    s_lshr_b32 s44, s2, 5
    s_and_b32 s45, s2, 31
    s_mov_b32 s7, 0x20000
    s_mov_b32 s11, 0x20000
    s_mov_b32 s23, 0x20000
    s_mov_b32 s27, 0x20000
    s_mov_b32 s31, 0x20000
    s_mov_b32 s43, 0x20000
    s_mov_b32 s26, 8192
    s_mov_b32 s30, {WS_BYTES}
    s_mov_b32 s42, 1024
    s_and_b32 s85, s3, 3
    s_lshl_b32 s86, s85, 13
    s_lshr_b32 s87, s3, 2
    s_lshl_b32 s87, s87, 12
    s_or_b32 s86, s86, s87
    s_sub_u32 s6, 0x40000, s86
    s_mov_b32 s10, s6
    s_lshl_b32 s87, s2, 20
    s_add_u32 s86, s86, s87
    s_add_u32 s86, s86, 0xc0000
    s_and_b32 s87, s45, 7
    s_lshl_b32 s87, s87, 2
    s_lshr_b32 s88, s45, 3
    s_add_u32 s87, s87, s88
    s_mul_i32 s87, s87, 172
    s_lshr_b32 s78, s87, 5
    s_add_u32 s87, s87, 172
    s_lshr_b32 s79, s87, 5
    s_sub_u32 s79, s79, s78
    s_lshl_b32 s87, s45, 8
    s_lshl_b32 s88, s85, 7
    s_add_u32 s87, s87, s88          ; 256h + 128u
    s_lshl_b32 s88, s78, 4           ; 16*c0
    s_cmp_lt_u32 s85, 2
    s_cselect_b32 s76, s26, 2752    ; stride
    s_cselect_b32 s87, s87, s88
    s_cselect_b32 s89, 8, s79
    s_lshl_b32 s22, s76, 9
    s_lshl_b32 s88, s44, 6
    s_mul_i32 s88, s88, s76
    s_add_u32 s87, s87, s88
    s_sub_u32 s22, s22, s87
    s_lshl_b32 s88, s44, 7
    s_lshl_b32 s99, s45, 10
    s_add_u32 s99, s99, {EP_OFF}
    s_add_u32 s100, s99, s88
    v_and_b32 v{T+5}, 0x38, v0
    v_lshlrev_b32 v{T+5}, 4, v{T+5}  ; (lane>>3)*128
    v_bfe_u32 v{V_T0}, v0, 3, 1
    v_bfe_u32 v{V_T1}, v0, 4, 2
    v_lshlrev_b32 v{V_T1}, 3, v{V_T1}
    v_lshl_add_u32 v{V_T0}, v{V_T0}, 5, v{V_T1}        ; 32 khalf + 8 g
    v_and_b32 v{V_T2}, 7, v0
    v_lshlrev_b32 v{T+1}, 4, v{V_T2}                   ; i8*16
    v_mad_u32_u24 v{T}, v{V_T0}, s76, v{T+1}
    v_cmp_gt_u32 vcc, s89, v{V_T2}
    v_bfrev_b32 v{T+2}, 1
    v_lshl_add_u32 v{V_W2}, v{V_T0}, 10, v{T+1}
    v_cndmask_b32 v{T}, v{T+2}, v{T}, vcc
    v_and_b32 v{T+2}, 1, v0
    v_lshl_add_u32 v{T+2}, v{T+2}, 5, v{V_T1}          ; 32(m&1) + 8g
    v_lshlrev_b32 v{V_LH}, 1, v{T+2}
    v_bfe_u32 v{T+3}, v0, 1, 3
    v_lshl_add_u32 v{T+3}, v{T+3}, 10, v{V_LH}
    s_cmp_eq_u32 s85, 2
    s_waitcnt lgkmcnt(0)
    s_cselect_b32 s20, s60, s62
    s_cselect_b32 s21, s61, s63
    s_cmp_lt_u32 s85, 2
    s_cselect_b32 s20, s54, s20
    s_cselect_b32 s21, s55, s21
    s_add_u32 s20, s20, s87
    s_addc_u32 s21, s21, 0
    s_mov_b32 s24, s48
    s_mov_b32 s25, s49
    s_add_u32 s4, s50, s86
    s_addc_u32 s5, s51, 0
    s_mov_b32 s28, s72
    s_mov_b32 s29, s73
    s_mov_b32 s40, s66
    s_mov_b32 s41, s67
    """)
    if "s" in kill: I("s_mov_b32 s22, 0")
    W1RAW = slot(8); W1FR = slot(16); W1ACC = slot(24); XOP = X + 8; Y = X
    g.begin('A', "s_cmp_ge_u32 s3, 4\ns_cbranch_scc1")
    g.vm(f"buffer_load_dwordx4 {r4(XOP)}, v{T+3}, s[24:27], s88 offen {spol}", "xop")
    g.vm(f"buffer_load_dword v{T+6}, v{T+5}, s[28:31], s99 offen {spol}", "ep")
    g.vm(f"buffer_load_dwordx4 {r4(W1RAW)}, v{T}, s[20:23], 0 offen {wpol}", "s1_0")
    I("s_mov_b32 s77, s76")
    for j in range(1, 8):
        g.vm(f"buffer_load_dwordx4 {r4(W1RAW+4*j)}, v{T}, s[20:23], s77 offen {wpol}", f"s1_{j}")
        if j < 7: I("s_add_u32 s77, s77, s76")
    g.end()
    g.begin('B', "s_cmp_lt_u32 s3, 4\ns_cbranch_scc1")
    I("s_load_dword s98, s[72:73], s100\ns_lshl_b32 s88, s44, 10")
    g.vm(f"buffer_load_dwordx4 {r4(X)}, v{V_L16}, s[24:27], s88 offen {spol}", "gx")
    g.vm(f"buffer_load_dwordx4 {r4(X+4)}, v{V_L16}, s[40:43], 0 offen {spol}", "gw")
    g.end()

    I("s_mov_b32 s74, 0\ns_mov_b32 s75, 0x8000")
    def kload(n):
        if n % 4 == 0 and n > 0: I("s_add_u32 s74, s74, s75")
        g.vm(f"buffer_load_dwordx4 {r4(slot(n))}, v{V_L16}, s[4:7], s74 offen offset:{(n%4)*1024} {kvpol}", f"k{n}")
    def vload(n):
        if n == 0: I("s_mov_b32 s74, 0")
        if n % 4 == 0 and n > 0: I("s_add_u32 s74, s74, s75")
        g.vm(f"buffer_load_dwordx4 {r4(slot(n%8))}, v{V_L16}, s[8:11], s74 offen offset:{(n%4)*1024} {kvpol}", f"v{n}")
    def w2load(j):
        so = "0" if j < 4 else "s84"
        g.vm(f"buffer_load_dwordx4 {r4(W2R+4*j)}, v{V_W2}, s[16:19], {so} offen offset:{(j%4)*1024} {wpol}", f"w2_{j}")
    def woload(n):
        grp, j = n // 8, n % 8
        if j == 0: I(f"s_movk_i32 s83, {grp*4096}")
        elif j % 2 == 0: I("s_add_u32 s83, s83, s26")
        g.vm(f"buffer_load_dwordx4 {r4(STG+4*(n%4))}, v{V_WO}, s[12:15], s83 offen offset:{(j%2)*2048} {wpol}", f"wo{n}")
    for n in range(D): kload(n)

    if xlay == 0:
        xv = f"""    ; producer voffset in T+4
    v_lshrrev_b32 v{V_T0}, 3, v{V_LANE}
    v_lshl_add_u32 v{T+4}, v{V_T0}, 13, v{T+1}
"""
        XST, XSO, XLD, XL1 = T + 4, 2048, V_L16, "s81 offen offset:1024"
    else:
        xv = f"""
    v_bfe_u32 v{V_T0}, v0, 4, 2
    v_lshl_add_u32 v{T+4}, v{V_T0}, 13, v{T+1}
    v_bfe_u32 v{V_T0}, v0, 3, 1
    v_lshl_add_u32 v{T+4}, v{V_T0}, 11, v{T+4}
    """
        XST, XSO, XLD, XL1 = V_L16, 1024, T + 4, "s77 offen"
    if xlay == 0:
        xo = """    s_lshl_b32 s80, s45, 16
    s_lshl_b32 s88, s44, 13
    s_add_u32 s81, s80, s88
    s_lshl_b32 s88, s85, 11
    s_add_u32 s81, s81, s88
    s_lshr_b32 s88, s85, 1
    s_lshl_b32 s88, s88, 12
    s_add_u32 s80, s80, s88
    s_lshl_b32 s88, s44, 8
    s_add_u32 s80, s80, s88
    s_and_b32 s88, s85, 1
    s_lshl_b32 s88, s88, 7
    s_add_u32 s80, s80, s88               ; producer
"""
    else:
        xo = """
    s_lshl_b32 s81, s45, 16
    s_lshl_b32 s88, s44, 13
    s_add_u32 s80, s81, s88
    s_lshl_b32 s88, s85, 11
    s_add_u32 s80, s80, s88               ; producer: h*64K + b*8192 + u*2048
    s_lshr_b32 s88, s85, 1
    s_lshl_b32 s88, s88, 12
    s_add_u32 s81, s81, s88
    s_and_b32 s88, s85, 1
    s_lshl_b32 s88, s88, 10
    s_add_u32 s81, s81, s88
    s_lshl_b32 s88, s44, 7
    s_add_u32 s81, s81, s88
    s_add_u32 s77, s81, 0x8000
    """
    I(f"""
    s_add_u32 s8, s52, s86
    s_addc_u32 s9, s53, 0
    s_lshl_b32 s87, s3, 7                 ; 128 w
    s_lshl_b32 s88, s45, 17
    s_add_u32 s88, s88, s87
    s_add_u32 s12, s56, s88
    s_addc_u32 s13, s57, 0
    s_sub_u32 s14, 0x20000, s87
    s_mov_b32 s15, 0x20000
    s_lshl_b32 s88, s78, 13               ; c0*8 rows * 1024
    s_add_u32 s88, s88, s87
    s_add_u32 s16, s64, s88
    s_addc_u32 s17, s65, 0
    s_lshl_b32 s18, s79, 13
    s_sub_u32 s18, s18, s87
    s_mov_b32 s19, 0x20000
    s_mov_b32 s32, s70
    s_mov_b32 s33, s71
    s_mov_b32 s34, 256
    s_mov_b32 s35, 0x20000
    s_lshl_b32 s88, s44, 10
    s_add_u32 s88, s88, s87
    s_add_u32 s36, s68, s88
    s_addc_u32 s37, s69, 0
    s_sub_u32 s38, 8192, s88
    s_mov_b32 s39, 0x20000
    s_mov_b32 s46, 0x05040100
    s_mov_b32 s47, 0x07060302
    s_movk_i32 s84, 4096
    s_mov_b32 s93, {f2u(1.4426950408889634):#x}
    s_mov_b32 s94, {f2u(128 ** -0.5):#x}
    s_mov_b32 s95, 0xffff0000
    {xo}
    s_lshl_b32 s82, s44, 12
    s_add_u32 s82, s82, {ACC_OFF}
    v_bfe_u32 v{V_T0}, v0, 4, 2
    v_lshl_add_u32 v{V_WO}, v{V_T0}, 15, v{T+1}
    v_bfe_u32 v{V_T0}, v0, 3, 1
    v_lshl_add_u32 v{V_WO}, v{V_T0}, 10, v{V_WO}
    {xv}
    ; masks
    v_and_b32 v{V_T0}, 1, v0
    v_lshlrev_b32 v{V_T0}, 4, v{V_T0}
    v_mov_b32 v{V_T1}, 0xffff
    v_lshlrev_b32 v{V_T1}, v{V_T0}, v{V_T1}
    v_bfe_u32 v{V_T0}, v0, 1, 2
    """)
    if "o" in kill: I("s_mov_b32 s14, 0")
    if "2" in kill: I("s_mov_b32 s18, 0")
    if "x" in kill or "w" in kill: I(f"s_mov_b32 s80, {WS_BYTES}")
    if "h" in kill: I(f"s_cmp_lt_u32 s3, 2\ns_cselect_b32 s80, s80, {WS_BYTES}")
    if "q" in kill: I(f"s_cmp_lt_u32 s3, 1\ns_cselect_b32 s80, s80, {WS_BYTES}")
    if "e" in kill: XSO = 0
    if "x" in kill or "r" in kill: I(f"s_mov_b32 s81, {WS_BYTES}\ns_mov_b32 s77, {WS_BYTES}")
    for r in range(4):
        I(f"v_cmp_eq_u32 vcc, {r}, v{V_T0}\ns_nop 1\nv_cndmask_b32 v{MASK+r}, 0, v{V_T1}, vcc")
    I(f"""
    v_mov_b32 v{T+9}, 0
    v_mov_b32 v{T+10}, 0
    v_mov_b32 v{T+11}, 0
    v_mov_b32 v{F}, 1.0
    v_mov_b32 v{F+1}, 1.0
    v_mov_b32 v{XU}, 0
    v_mov_b32 v{XU+1}, 0
    """)
    stamp("b0")
    g.begin('A', "s_cmp_ge_u32 s3, 4\ns_cbranch_scc1")
    I("""
    s_mov_b32 s88, 0x07060500
    s_mov_b32 s89, 0x07060501
    s_mov_b32 s90, 0x07060502
    s_mov_b32 s91, 0x07060503
    """)
    if fine:
        g.wait("xop"); stamp("x1")
        g.wait("ep"); stamp("x2")
    for jj in range(4):
        g.wait(f"s1_{2*jj+1}")
        if fine and jj == 0: stamp("f1")
        if fine and jj == 3: stamp("f2")
        for q in range(4):
            for e in range(2):
                I(f"v_perm_b32 v{W1FR+4*(2*q+e)+jj}, v{W1RAW+4*(2*jj+1)+q}, v{W1RAW+4*(2*jj)+q}, s{46+e}")
    for c in range(8):
        I(f"v_mfma_f32_16x16x32_bf16 {r4(W1ACC+4*c)}, {r4(XOP)}, {r4(W1FR+4*c)}, 0")
    I(f"v_add_u32 v{T+6}, 0x01010101, v{T+6}\ns_nop 0")
    for c in range(8):
        a = W1ACC + 4 * c
        I(f"v_add_f32_dpp v{Y+c}, v{a+1}, v{a} row_ror:8 row_mask:0xf bank_mask:0x3")
        I(f"v_add_f32_dpp v{Y+c}, v{a+2}, v{a+3} row_ror:8 row_mask:0xf bank_mask:0xc")
        I(f"v_perm_b32 v{Y+c}, v{Y+c}, v{T+6}, s{88+c%4}")
    g.vm(f"buffer_store_dwordx4 {r4(Y)}, v{XST}, s[28:31], s80 offen {xs}", "ex0")
    g.vm(f"buffer_store_dwordx4 {r4(Y+4)}, v{XST}, s[28:31], s80 offen offset:{XSO} {xs}", "ex1")
    stamp("s1done")
    g.end()
    g.begin('B', "s_cmp_lt_u32 s3, 4\ns_cbranch_scc1")
    if fine:
        g.wait("gx"); stamp("f1")
    g.wait("gw")
    if fine: stamp("f2")
    I(f"""
    s_lshl_b32 s88, s45, 3
    s_add_u32 s101, s88, s3
    s_cmp_lg_u32 s101, 5
    s_cbranch_scc1 L_nozero
    buffer_store_dwordx4 {r4(T+8)}, v{V_L16}, s[28:31], s82 offen sc1
    buffer_store_dwordx4 {r4(T+8)}, v{V_L16}, s[28:31], s82 offen offset:1024 sc1
    buffer_store_dwordx4 {r4(T+8)}, v{V_L16}, s[28:31], s82 offen offset:2048 sc1
    buffer_store_dwordx4 {r4(T+8)}, v{V_L16}, s[28:31], s82 offen offset:3072 sc1
    """)
    g.label("L_nozero")
    for q in range(4):
        I(f"""
        v_lshlrev_b32 v{X+8}, 16, v{X+q}
        v_and_b32 v{X+9}, s95, v{X+q}
        v_lshlrev_b32 v{X+10}, 16, v{X+4+q}
        v_and_b32 v{X+11}, s95, v{X+4+q}
        v_mul_f32 v{X+8}, v{X+8}, v{X+10}
        v_mul_f32 v{X+9}, v{X+9}, v{X+11}
        v_cvt_pk_bf16_f32 v{X+q}, v{X+8}, v{X+9}
        """)
    I(f"""
    v_mov_b32 v{X+8}, 0
    v_mov_b32 v{X+9}, 0x3f803f80
    v_dot2c_f32_bf16 v{X+8}, v{X}, v{X+9}
    v_dot2c_f32_bf16 v{X+8}, v{X+1}, v{X+9}
    v_dot2c_f32_bf16 v{X+8}, v{X+2}, v{X+9}
    v_dot2c_f32_bf16 v{X+8}, v{X+3}, v{X+9}
    s_nop 2
    v_add_f32_dpp v{X+8}, v{X+8}, v{X+8} quad_perm:[1,0,3,2] row_mask:0xf bank_mask:0xf
    s_nop 1
    v_add_f32_dpp v{X+8}, v{X+8}, v{X+8} quad_perm:[2,3,0,1] row_mask:0xf bank_mask:0xf
    s_nop 1
    v_add_f32_dpp v{X+8}, v{X+8}, v{X+8} row_ror:4 row_mask:0xf bank_mask:0xf
    s_nop 1
    v_add_f32_dpp v{X+8}, v{X+8}, v{X+8} row_ror:8 row_mask:0xf bank_mask:0xf
    v_mov_b32 v{X+9}, v{X+8}
    s_nop 1
    v_permlane16_swap_b32 v{X+8}, v{X+9}
    v_add_f32 v{X+8}, v{X+8}, v{X+9}
    v_mov_b32 v{X+9}, v{X+8}
    s_nop 1
    v_permlane32_swap_b32 v{X+8}, v{X+9}
    v_add_f32 v{X+8}, v{X+8}, v{X+9}
    v_cvt_pk_bf16_f32 v{X+8}, v{X+8}, v{X+8}
    v_and_b32 v{X+8}, s95, v{X+8}
    v_mul_f32 v{X+8}, s93, v{X+8}
    v_exp_f32 v{X+8}, -v{X+8}
    s_nop 0
    v_add_f32 v{X+8}, 1.0, v{X+8}
    v_rcp_f32 v{X+8}, v{X+8}
    s_nop 0
    v_cvt_pk_bf16_f32 v{X+8}, v{X+8}, v{X+8}
    v_and_b32 v{X+8}, s95, v{X+8}
    v_sub_f32 v{X+9}, 1.0, v{X+8}
    v_cvt_pk_bf16_f32 v{X+9}, v{X+9}, v{X+9}
    v_and_b32 v{X+9}, s95, v{X+9}
    ds_write_b64 v{T+8}, v[{X+8}:{X+9}] offset:{L_G}
    """)
    stamp("s1done")
    g.end()

    kgroups_done = [0]
    def consume_group(k):
        s0 = 4 * k
        for i in range(4):
            I(f"v_dot2_f32_bf16 v{A4+i}, v{slot(s0+i)}, v{Q}, 0")
        for q in range(1, 4):
            for i in range(4):
                I(f"v_dot2c_f32_bf16 v{A4+i}, v{slot(s0+i)+q}, v{Q+q}")
        I(f"""
        v_add_f32_dpp v{TT}, v{A4}, v{A4} row_ror:8 row_mask:0xf bank_mask:0x3
        v_add_f32_dpp v{TT}, v{A4+1}, v{A4+1} row_ror:8 row_mask:0xf bank_mask:0xc
        v_add_f32_dpp v{TT+1}, v{A4+2}, v{A4+2} row_ror:8 row_mask:0xf bank_mask:0x3
        v_add_f32_dpp v{TT+1}, v{A4+3}, v{A4+3} row_ror:8 row_mask:0xf bank_mask:0xc
        v_add_f32_dpp v{S+k}, v{TT}, v{TT} row_half_mirror row_mask:0xf bank_mask:0x5
        s_nop 0
        v_add_f32_dpp v{S+k}, v{TT+1}, v{TT+1} row_half_mirror row_mask:0xf bank_mask:0xa
        s_nop 1
        v_add_f32_dpp v{S+k}, v{S+k}, v{S+k} quad_perm:[1,0,3,2] row_mask:0xf bank_mask:0xf
        s_nop 1
        v_add_f32_dpp v{S+k}, v{S+k}, v{S+k} quad_perm:[2,3,0,1] row_mask:0xf bank_mask:0xf
        """)
        if k % 2 == 1:
            a, b = S + k - 1, S + k
            I(f"""
            v_cvt_pk_bf16_f32 v{TT}, v{a}, v{b}
            v_lshlrev_b32 v{a}, 16, v{TT}
            v_and_b32 v{b}, s95, v{TT}
            v_mul_f32 v{a}, s94, v{a}
            v_mul_f32 v{b}, s94, v{b}
            v_cvt_pk_bf16_f32 v{TT}, v{a}, v{b}
            v_lshlrev_b32 v{a}, 16, v{TT}
            v_and_b32 v{b}, s95, v{TT}
            """)
        kgroups_done[0] = k + 1

    def allred(v, t, op):
        I(f"""
        s_nop 1
        {op}_dpp v{v}, v{v}, v{v} row_ror:4 row_mask:0xf bank_mask:0xf
        s_nop 1
        {op}_dpp v{v}, v{v}, v{v} row_ror:8 row_mask:0xf bank_mask:0xf
        v_mov_b32 v{t}, v{v}
        s_nop 1
        v_permlane16_swap_b32 v{v}, v{t}
        {op} v{v}, v{v}, v{t}
        v_mov_b32 v{t}, v{v}
        s_nop 1
        v_permlane32_swap_b32 v{v}, v{t}
        {op} v{v}, v{v}, v{t}
        """)

    def softmax():
        m = TT
        I(f"""
        v_max3_f32 v{m}, v{S}, v{S+1}, v{S+2}
        v_max3_f32 v{m}, v{m}, v{S+3}, v{S+4}
        v_max3_f32 v{m}, v{m}, v{S+5}, v{S+6}
        v_max_f32 v{m}, v{m}, v{S+7}
        """)
        allred(m, A4, "v_max_f32")
        I(f"v_mul_f32 v{m}, s93, v{m}")
        for k in range(8):
            I(f"v_fma_f32 v{S+k}, v{S+k}, s93, -v{m}")
        for k in range(8):
            I(f"v_exp_f32 v{S+k}, v{S+k}")
        l = TT + 1
        I(f"v_add_f32 v{l}, v{S}, v{S+1}")
        for k in range(2, 8):
            I(f"v_add_f32 v{l}, v{l}, v{S+k}")
        for k in range(8):
            I(f"v_cvt_pk_bf16_f32 v{S+k}, v{S+k}, v{S+k}")
        allred(l, A4, "v_add_f32")
        I(f"""
        s_lshl_b32 s88, s3, 3
        v_mov_b32 v{A4}, s88
        v_mov_b32 v{V_MC}, v{m}
        ds_write_b64 v{A4}, v[{TT}:{TT+1}] offset:{L_ML}
        """)

    def ffn_down(q):
        for e in range(2):
            for jj in range(4):
                I(f"v_perm_b32 v{X+4*e+jj}, v{W2R+4*(2*jj+1)+q}, v{W2R+4*(2*jj)+q}, s{46+e}")
        I("s_nop 1")
        for e in range(2):
            I(f"v_mfma_f32_16x16x32_bf16 {r4(X+8+4*e)}, {r4(T)}, {r4(X+4*e)}, 0")
        I("s_nop 7")
        for e in range(2):
            c = 2 * q + e
            a = X + 8 + 4 * e
            I(f"v_add_f32_dpp v{F+c//4}, v{a+1}, v{a} row_ror:8 row_mask:{1 << (c%4):#x} bank_mask:0x3")
        if q == 3:
            I("s_nop 1")
            for u in range(2):
                I(f"v_mul_f32_dpp v{F+u}, v{F+u}, v{V_G+1} quad_perm:[0,1,2,3] row_mask:0xf bank_mask:0x3")

    def build_a(t):
        k, half = t // 2, t % 2
        for r in range(4):
            mir = (r >= 2) != (half == 1)
            d = AOP + 4 * (t % 2) + r
            if mir:
                I(f"v_and_b32_dpp v{d}, v{S+k}, v{MASK+r} row_half_mirror row_mask:0xf bank_mask:0xf")
            else:
                I(f"v_and_b32 v{d}, v{S+k}, v{MASK+r}")

    vdone = [0]
    def pv(n):
        t = n // 2
        acc = ACC0 if n % 2 == 0 else ACC1
        c = "0" if n < 2 else r4(acc)
        I(f"v_mfma_f32_16x16x32_bf16 {r4(acc)}, {r4(AOP+4*(t%2))}, {r4(slot(n%8))}, {c}")
        vdone[0] = n + 1
        if n % 2 == 1 and t + 2 < 16:
            build_a(t + 2)

    wopairs = [0]
    def wo_perm(p):
        grp, jj = p // 4, p % 4
        a, b = STG + 4 * ((2 * p) % 4), STG + 4 * ((2 * p + 1) % 4)
        for q in range(4):
            for e in range(2):
                I(f"v_perm_b32 v{slot(8)+32*grp+4*(2*q+e)+jj}, v{b+q}, v{a+q}, s{46+e}")
        wopairs[0] = p + 1

    def zcheck_issue():
        I("s_lshl_b32 s99, s44, 5\ns_load_dword s98, s[70:71], s99")
    def ml_combine():
        I(f"""
        s_waitcnt lgkmcnt(0)
        s_cmp_eq_u32 s98, 1
        s_cbranch_scc1 L_zok
        s_mov_b32 s92, 200000
        v_mov_b32 v{A4}, 0
        s_mov_b64 exec, 1""")
        g.label("L_zpoll")
        I(f"""
        buffer_load_dword v{A4+1}, v{A4}, s[32:35], s99 offen sc1
        s_waitcnt vmcnt(0)
        v_cmp_eq_u32 vcc, 1, v{A4+1}
        s_cbranch_vccnz L_zdone
        s_sub_u32 s92, s92, 1
        s_cbranch_scc0 L_zpoll""")
        g.label("L_zdone")
        I("s_mov_b64 exec, -1")
        g.label("L_zok")
        I(f"""
        s_barrier
        v_and_b32 v{A4}, 7, v0
        v_lshlrev_b32 v{A4}, 3, v{A4}
        ds_read_b64 v[{A4}:{A4+1}], v{A4} offset:{L_ML}
        s_waitcnt lgkmcnt(0)
        v_max_f32_dpp v{A4+2}, v{A4}, v{A4} quad_perm:[1,0,3,2] row_mask:0xf bank_mask:0xf
        s_nop 1
        v_max_f32_dpp v{A4+2}, v{A4+2}, v{A4+2} quad_perm:[2,3,0,1] row_mask:0xf bank_mask:0xf
        s_nop 1
        v_max_f32_dpp v{A4+2}, v{A4+2}, v{A4+2} row_half_mirror row_mask:0xf bank_mask:0xf
        v_sub_f32 v{A4}, v{A4}, v{A4+2}
        v_sub_f32 v{V_MC}, v{V_MC}, v{A4+2}
        v_exp_f32 v{A4}, v{A4}
        v_exp_f32 v{V_MC}, v{V_MC}
        v_mul_f32 v{A4}, v{A4}, v{A4+1}
        v_mul_f32 v{V_MC}, v{V_MC}, v{V_G}
        s_nop 0
        v_add_f32_dpp v{A4}, v{A4}, v{A4} quad_perm:[1,0,3,2] row_mask:0xf bank_mask:0xf
        s_nop 1
        v_add_f32_dpp v{A4}, v{A4}, v{A4} quad_perm:[2,3,0,1] row_mask:0xf bank_mask:0xf
        s_nop 1
        v_add_f32_dpp v{A4}, v{A4}, v{A4} row_half_mirror row_mask:0xf bank_mask:0xf
        v_rcp_f32 v{A4}, v{A4}
        s_nop 0
        v_mul_f32 v{V_FAC}, v{V_MC}, v{A4}
        v_lshlrev_b32 v{V_T2}, 2, v{V_LANE}
        s_mul_i32 s88, s3, 288
        v_add_u32 v{V_T0}, s88, v{V_T2}
        v_bfe_u32 v{V_T1}, v0, 1, 3
        v_mul_u32_u24 v{V_T1}, 288, v{V_T1}
        v_and_b32 v{A4}, 1, v0
        v_lshl_add_u32 v{V_T1}, v{A4}, 7, v{V_T1}
        v_and_b32 v{A4}, 48, v0
        v_add_u32 v{V_T1}, v{A4}, v{V_T1}
        v_and_b32 v{V_W2}, 15, v0
        v_lshlrev_b32 v{V_W2}, 4, v{V_W2}
        v_lshrrev_b32 v{A4}, 4, v{V_LANE}
        v_lshl_add_u32 v{V_W2}, v{A4}, 1, v{V_W2}
        s_lshl_b32 s88, s3, 9
        s_add_u32 s82, s82, s88
        """)

    def dk(n):
        return DK if (DK and n < DKEND) else D
    if EXTRA:
        for n in range(D, D + EXTRA):
            g.begin('B', "s_cmp_lt_u32 s3, 4\ns_cbranch_scc1")
            g.waitn(D - 1)
            g.end()
            kload(n)
    w2n = 0
    synced = False
    ffn_q = 0
    PX = slot(30)
    for n in range(D + EXTRA, 32):
        if n == max(2 * D, D + EXTRA):
            g.begin('B', "s_cmp_lt_u32 s3, 4\ns_cbranch_scc1")
            I(f"""
            s_cmp_lg_u32 s101, 5
            s_cbranch_scc1 L_noflag
            s_waitcnt vmcnt(0)
            v_mov_b32 v{X}, 1
            s_lshl_b32 s88, s44, 5
            s_mov_b64 exec, 1
            buffer_store_dword v{X}, v{T+8}, s[32:35], s88 offen sc1
            s_mov_b64 exec, -1
            """)
            g.label("L_noflag")
            g.end()
        if n == POLL:
            g.begin('B', "s_cmp_lt_u32 s3, 4\ns_cbranch_scc1")
            g.vm(f"buffer_load_dwordx4 {r4(PX)}, v{XLD}, s[28:31], s81 offen {xl}", "px0")
            g.vm(f"buffer_load_dwordx4 {r4(PX+4)}, v{XLD}, s[28:31], {XL1} {xl}", "px1")
            g.end()
        if n == POLL + D:
            g.begin('B', "s_cmp_lt_u32 s3, 4\ns_cbranch_scc1")
            I(f"""
            v_and_b32 v{X}, 15, v0
            v_lshlrev_b32 v{X}, 4, v{X}
            v_bfe_u32 v{X+1}, v0, 4, 1
            v_lshl_add_u32 v{X}, v{X+1}, 2, v{X}
            v_bfe_u32 v{X+1}, v0, 5, 1
            v_lshl_add_u32 v{X}, v{X+1}, 1, v{X}
            s_and_b32 s88, s3, 1
            s_lshl_b32 s88, s88, 3
            s_and_b32 s89, s3, 2
            s_lshl_b32 s89, s89, 7
            s_add_u32 s88, s88, s89
            v_add_u32 v{X}, s88, v{X}
            """)
            g.wait("px1")
            stamp("x1")
            I(f"""
            s_waitcnt lgkmcnt(0)
            s_add_u32 s98, s98, 0x01010101
            s_mov_b32 s92, {0 if ("x" in kill or "w" in kill or "r" in kill) else 200000}
            s_mov_b32 s88, 0x0c0c0400
            s_mov_b32 s89, 0x04000c0c""")
            g.label("L_poll")
            I(f"""
            v_perm_b32 v{X+2}, v{PX+1}, v{PX}, s88
            v_perm_b32 v{X+3}, v{PX+3}, v{PX+2}, s89
            v_perm_b32 v{X+4}, v{PX+5}, v{PX+4}, s88
            v_perm_b32 v{X+5}, v{PX+7}, v{PX+6}, s89
            v_or_b32 v{X+2}, v{X+2}, v{X+3}
            v_or_b32 v{X+4}, v{X+4}, v{X+5}
            v_cmp_ne_u32 vcc, s98, v{X+2}
            v_cmp_ne_u32 s[86:87], s98, v{X+4}
            s_or_b64 vcc, vcc, s[86:87]
            s_cbranch_scc0 L_polled
            s_sub_u32 s92, s92, 1
            s_cbranch_scc1 L_polled
            buffer_load_dwordx4 {r4(PX)}, v{XLD}, s[28:31], s81 offen {xl}
            buffer_load_dwordx4 {r4(PX+4)}, v{XLD}, s[28:31], {XL1} {xl}
            s_waitcnt vmcnt(0)
            s_branch L_poll""")
            g.label("L_polled")
            stamp("x2")
            I(f"""
            v_pk_add_f32 v[{PX}:{PX+1}], v[{PX}:{PX+1}], v[{PX+4}:{PX+5}]
            v_pk_add_f32 v[{PX+2}:{PX+3}], v[{PX+2}:{PX+3}], v[{PX+6}:{PX+7}]
            s_nop 0
            v_permlane32_swap_b32 v{PX}, v{PX+1}
            v_permlane32_swap_b32 v{PX+2}, v{PX+3}
            v_add_f32 v{PX}, v{PX}, v{PX+1}
            v_add_f32 v{PX+2}, v{PX+2}, v{PX+3}
            s_nop 1
            v_permlane16_swap_b32 v{PX}, v{PX+2}
            v_add_f32 v{PX}, v{PX}, v{PX+2}
            v_cvt_pk_bf16_f32 v{PX}, v{PX}, v{PX}
            v_and_b32 v{PX+1}, s95, v{PX}
            v_mul_f32 v{PX+2}, s93, v{PX+1}
            v_exp_f32 v{PX+2}, -v{PX+2}
            s_nop 0
            v_add_f32 v{PX+2}, 1.0, v{PX+2}
            v_rcp_f32 v{PX+2}, v{PX+2}
            s_nop 0
            v_mul_f32 v{PX+2}, v{PX+2}, v{PX+1}
            v_cvt_pk_bf16_f32 v{PX+2}, v{PX+2}, v{PX+2}
            v_and_b32 v{PX+2}, s95, v{PX+2}
            v_mul_f32_dpp v{PX+2}, v{PX+1}, v{PX+2} row_ror:8 row_mask:0xf bank_mask:0xf
            s_cmp_ge_u32 s3, 6
            s_cselect_b64 vcc, -1, 0
            v_cvt_pk_bf16_f32 v{PX+2}, v{PX+2}, v{PX+2}
            v_cndmask_b32 v{PX}, v{PX}, v{PX+2}, vcc
            ds_write_b16 v{X}, v{PX} offset:{L_Q}
            """)
            g.end()
        if n == SYNC:
            stamp("sync")
            I(f"""
            s_waitcnt lgkmcnt(0)
            s_barrier""")
            stamp("synced")
            I(f"""
            v_and_b32 v{V_T0}, 0xf0, v{V_L16}
            v_mov_b32 v{V_T1}, 0
            ds_read_b128 {r4(Q)}, v{V_T0} offset:{L_Q}
            ds_read_b128 {r4(T)}, v{V_LH} offset:{L_H}
            ds_read_b64 v[{V_G}:{V_G+1}], v{V_T1} offset:{L_G}
            """)
            I(f"""
            s_cmp_lg_u32 s3, 4
            s_cbranch_scc1 L_nobump
            v_mov_b32 v{X}, s98
            s_mov_b64 exec, 1
            buffer_store_dword v{X}, v{V_T1}, s[28:31], s100 offen
            s_mov_b64 exec, -1
            """)
            g.label("L_nobump")
            synced = True
        g.waitn(dk(n) - 1)
        kload(n)
        if n == SYNC:
            I("s_waitcnt lgkmcnt(0)")
        if synced:
            k = kgroups_done[0]
            if k < 8 and 4 * k + 3 <= n and g.is_done(f"k{4*k+3}"):
                consume_group(k)
        if w2n < 8 and n == W2POS[w2n]:
            g.waitn(dk(n) - 1)
            w2load(w2n); w2n += 1
    assert w2n == 8
    won = 0
    sm_done = False
    def after_step(n):
        nonlocal sm_done, ffn_q
        k = kgroups_done[0]
        if k < 8:
            if g.is_done(f"k{4*k+3}"):
                consume_group(k)
                if k == 7:
                    softmax(); sm_done = True; stamp("smax")
                    build_a(0); build_a(1)
                    I("s_nop 0")
        if sm_done:
            while vdone[0] <= n and vdone[0] < 32 and g.is_done(f"v{vdone[0]}"):
                pv(vdone[0])
        p = wopairs[0]
        if p < 8 and 2 * p + 1 < won and g.is_done(f"wo{2*p+1}"):
            assert kgroups_done[0] >= 6
            wo_perm(p)
        elif sm_done and ffn_q < 4 and g.is_done("w2_7"):
            ffn_down(ffn_q); ffn_q += 1
    for n in range(32):
        if n == B2AT - 3:
            zcheck_issue()
        if n == B2AT:
            assert sm_done
            ml_combine()
        g.waitn(D - 1)
        if n < 8:
            assert kgroups_done[0] > n // 4
        else:
            assert vdone[0] > n - 8, (n, vdone[0])
        vload(n)
        after_step(n)
        if won < 16 and n == WOPOS[won]:
            g.waitn(D - 1)
            assert won < 4 or wopairs[0] > (won - 4) // 2, (won, wopairs[0])
            woload(won); won += 1
            after_step(n)
    assert won == 16 and ffn_q == 4
    stamp("issued")
    while vdone[0] < 32:
        g.wait(f"v{vdone[0]}")
        after_step(31)
    assert wopairs[0] == 8
    stamp("lastv")
    I(f"""
    s_nop 7
    v_permlane32_swap_b32 v{ACC1}, v{ACC0+1}
    v_permlane32_swap_b32 v{ACC1+2}, v{ACC0+3}
    s_nop 0
    v_add_f32_dpp v{T}, v{ACC0}, v{ACC0+1} quad_perm:[0,1,2,3] row_mask:0x3 bank_mask:0xf
    v_add_f32_dpp v{T+1}, v{ACC0+2}, v{ACC0+3} quad_perm:[0,1,2,3] row_mask:0x3 bank_mask:0xf
    v_add_f32_dpp v{T}, v{ACC1+1}, v{ACC1} quad_perm:[0,1,2,3] row_mask:0xc bank_mask:0xf
    v_add_f32_dpp v{T+1}, v{ACC1+3}, v{ACC1+2} quad_perm:[0,1,2,3] row_mask:0xc bank_mask:0xf
    v_mul_f32 v{T}, v{T}, v{V_FAC}
    v_mul_f32 v{T+1}, v{T+1}, v{V_FAC}
    v_cvt_pk_bf16_f32 v{T}, v{T}, v{T+1}
    ds_write_b32 v{V_T0}, v{T} offset:{L_O}
    s_waitcnt lgkmcnt(0)
    s_barrier
    """)
    stamp("b3")
    I(f"ds_read_b128 {r4(AOP)}, v{V_T1} offset:{L_O}")
    I(f"ds_read_b128 {r4(AOP+4)}, v{V_T1} offset:{L_O+64}")
    TACC = slot(24)
    E = STG
    I("s_waitcnt lgkmcnt(0)")
    def estep(c):
        a = TACC + 4 * c
        I(f"v_add_f32_dpp v{E+c}, v{a}, v{a+2} quad_perm:[0,1,2,3] row_mask:0xf bank_mask:0x3")
        I(f"v_add_f32_dpp v{E+c}, v{a+1}, v{a+3} quad_perm:[0,1,2,3] row_mask:0xf bank_mask:0xc")
    def s32(c):
        I(f"v_permlane32_swap_b32 v{E+c}, v{E+c+2}\nv_add_f32 v{E+c}, v{E+c}, v{E+c+2}")
    def s16(u):
        c = 4 * u
        I(f"v_permlane16_swap_b32 v{E+c}, v{E+c+1}\nv_add_f32 v{E+c}, v{E+c}, v{E+c+1}")
    def fin(u):
        c = 4 * u
        I(f"v_add_f32_dpp v{XU+u}, v{E+c}, v{E+c} row_ror:8 row_mask:0xf bank_mask:0x3")
    order = [0, 2, 1, 3, 4, 6, 5, 7]
    for idx, c in enumerate(order):
        for grp in range(2):
            cc = "0" if grp == 0 else r4(TACC + 4 * c)
            I(f"v_mfma_f32_16x16x32_bf16 {r4(TACC+4*c)}, {r4(AOP+4*grp)}, {r4(slot(8)+32*grp+4*c)}, {cc}")
        if idx >= 4: estep(order[idx - 4])
    s32(0)
    estep(4)
    s32(1)
    estep(6)
    s16(0)
    estep(5)
    s32(4)
    estep(7)
    fin(0)
    I("s_nop 0")
    s32(5)
    I("s_nop 1")
    s16(1)
    I("s_nop 1")
    fin(1)
    stamp("preat")
    I(f"""
    s_mov_b32 exec_lo, 0x01ff01ff
    s_mov_b32 exec_hi, 0x01ff01ff
    v_add_f32 v{T}, v{XU}, v{F}
    v_add_f32 v{T+1}, v{XU+1}, v{F+1}
    """)
    g.vm(f"buffer_atomic_add_f32 v{T}, v{V_T2}, s[28:31], s82 offen sc0", "at0")
    g.vm(f"buffer_atomic_add_f32 v{T+1}, v{V_T2}, s[28:31], s82 offen offset:256 sc0", "at1")
    I(f"""
    v_add_f32 v{XU}, v{XU}, v{F}
    v_add_f32 v{XU+1}, v{XU+1}, v{F+1}
    s_mov_b32 s88, {f2u(31.0):#x}
    s_mov_b32 s90, 0x00ff00ff
    s_mov_b32 s91, 0x00ff00ff
    """)
    g.wait("at1")
    I(f"""
    v_mov_b32_dpp v{T+2}, v{T} row_newbcast:8 row_mask:0xf bank_mask:0xf
    v_mov_b32_dpp v{T+3}, v{T+1} row_newbcast:8 row_mask:0xf bank_mask:0xf
    v_add_f32 v{T}, v{T}, v{XU}
    v_add_f32 v{T+1}, v{T+1}, v{XU+1}
    v_cmp_eq_f32 vcc, s88, v{T+2}
    v_cmp_eq_f32 s[86:87], s88, v{T+3}
    v_cvt_pk_bf16_f32 v{T}, v{T}, v{T+1}
    s_and_b64 exec, vcc, s[90:91]
    s_cbranch_execz L_nost0
    buffer_store_short v{T}, v{V_W2}, s[36:39], 0 offen
    """)
    g.label("L_nost0")
    I(f"""
    s_and_b64 exec, s[86:87], s[90:91]
    s_cbranch_execz L_nost1
    buffer_store_short_d16_hi v{T}, v{V_W2}, s[36:39], 0 offen offset:8
    """)
    g.label("L_nost1")
    if stamps:
        I("s_mov_b64 exec, -1")
        stamp("end")
        I(f"""
        s_getreg_b32 s96, hwreg(HW_REG_XCC_ID)
        s_nop 0
        v_writelane_b32 v125, s96, 15
        s_lshl_b32 s88, s2, 9
        s_lshl_b32 s89, s3, 6
        s_add_u32 s88, s88, s89
        s_add_u32 s88, s88, {STAMP_OFF}
        s_mov_b64 exec, 0xffff
        buffer_store_dword v125, v{V_T2}, s[28:31], s88 offen
        """)
    probs = check_gen(g)
    for p in probs: print("HAZARD", p, file=sys.stderr)
    body = g.text()
    head = f"""; gated mix of sliding-window decode attention and SwiGLU FFN, one workgroup per (batch, head)
; @launch grid=(256,1,1) block=(512,1,1) lds={LDS_BYTES}
.amdgcn_target "amdgcn-amd-amdhsa--gfx950"
.text
.globl {KNAME}
.p2align 8
.type {KNAME},@function
{KNAME}:
"""
    foot = f"""L_end:
    s_endpgm
.section .rodata,"a"
.p2align 6
.amdhsa_kernel {KNAME}
  .amdhsa_next_free_vgpr 256
  .amdhsa_next_free_sgpr 102
  .amdhsa_accum_offset 256
  .amdhsa_group_segment_fixed_size 0
  .amdhsa_kernarg_size 104
  .amdhsa_user_sgpr_count 2
  .amdhsa_user_sgpr_kernarg_segment_ptr 1
  .amdhsa_system_sgpr_workgroup_id_x 1
  .amdhsa_float_denorm_mode_32 3
.end_amdhsa_kernel
"""
    return head + body + foot, probs

if __name__ == "__main__":
    out = sys.argv[1]
    kw = {}
    for a in sys.argv[2:]:
        k, v = a.split("=")
        kw[k] = eval(v)
    txt, probs = gen(**kw)
    open(out, "w").write(txt)
```

```python
import re

class Gen:
    def __init__(self):
        self.items = []
        self.role = None
        self.q = []
        self.ndone = {}
        self.roles = ['A', 'B']
        self.done = {r: 0 for r in self.roles}
        self.nlabel = 0

    def I(self, s):
        for line in s.strip("\n").split("\n"):
            line = line.strip()
            if line:
                self.items.append((line, self.role))

    def label(self, name):
        self.items.append((name + ":", None))

    def begin(self, role, cond_skip):
        assert self.role is None
        self.nlabel += 1
        self.cur_label = f"L_skip{self.nlabel}"
        self.I(cond_skip + " " + self.cur_label)
        self.role = role

    def end(self):
        self.role = None
        self.label(self.cur_label)

    def vm(self, text, tag):
        self.I(text)
        self.q.append((tag, self.role))

    def _paths(self):
        return [self.role] if self.role else self.roles

    def _idx(self, tag, p):
        idx = [i for i, (t, r) in enumerate(self.q) if t == tag and (r is None or r == p)]
        assert len(idx) == 1, (tag, p, idx)
        return idx[0]

    def is_done(self, tag):
        return all(self.done[p] > self._idx(tag, p) for p in self._paths())

    def waitn(self, n):
        assert 0 <= n <= 63
        need = False
        newdone = {}
        for p in self._paths():
            ops = [i for i, (t, r) in enumerate(self.q) if r is None or r == p]
            k = len(ops) - n
            if k > 0:
                nd = ops[k - 1] + 1
                if nd > self.done[p]:
                    need = True
                    newdone[p] = nd
        if need:
            self.I(f"s_waitcnt vmcnt({n})")
            self.done.update(newdone)

    def wait(self, tag):
        n = None
        for p in self._paths():
            idx = self._idx(tag, p)
            if self.done[p] > idx:
                continue
            c = sum(1 for i, (t, r) in enumerate(self.q) if i > idx and (r is None or r == p))
            n = c if n is None else min(n, c)
        if n is not None:
            self.waitn(n)

    def ifelse_begin(self, role, cond_skip):
        self.begin(role, cond_skip)

    def ifelse_else(self, role2):
        self.nlabel += 1
        endl = f"L_join{self.nlabel}"
        self.I(f"s_branch {endl}")
        self.role = None
        self.label(self.cur_label)
        self.cur_label = endl
        self.role = role2

    def text(self):
        out = []
        for s, r in self.items:
            out.append(s if s.endswith(":") else "    " + s)
        return "\n".join(out) + "\n"

def regs_of(op):
    op = op.strip()
    op = op.replace("-", "").replace("abs(", "").replace(")", "").replace("|", "")
    m = re.fullmatch(r"([vsa])(\d+)", op)
    if m: return {(m.group(1), int(m.group(2)))}
    m = re.fullmatch(r"([vsa])\[(\d+):(\d+)\]", op)
    if m: return {(m.group(1), i) for i in range(int(m.group(2)), int(m.group(3)) + 1)}
    if op == "vcc": return {("vcc", 0)}
    if op == "exec": return {("exec", 0)}
    if op == "m0": return {("m0", 0)}
    return set()

TRANS = ("v_exp_f32", "v_log_f32", "v_rcp_f32", "v_rsq_f32", "v_sqrt_f32")

def parse(line):
    line = line.split(";")[0].strip()
    parts = line.split(None, 1)
    mn = parts[0]
    rest = parts[1] if len(parts) > 1 else ""
    ops = []
    depth = 0; cur = ""
    for ch in rest:
        if ch == "[": depth += 1
        if ch == "]": depth -= 1
        if ch == "," and depth == 0:
            ops.append(cur.strip()); cur = ""
        else:
            cur += ch
    if cur.strip(): ops.append(cur.strip())
    mods = ""
    if ops:
        last = ops[-1].split(None, 1)
        ops[-1] = last[0]
        mods = last[1] if len(last) > 1 else ""
    d = dict(mn=mn, ops=ops, mods=mods, w=set(), r=set(), kind="other", text=line)
    R = [regs_of(o) for o in ops]
    if mn.startswith("v_mfma"):
        d["kind"] = "mfma"; d["w"] = R[0]; d["ra"] = R[1] | R[2]; d["rc"] = R[3]; d["r"] = R[1] | R[2] | R[3]
    elif mn.startswith("v_cmp"):
        d["kind"] = "valu"; d["w"] = R[0]; d["r"] = set().union(*R[1:])
    elif mn.startswith("v_permlane"):
        d["kind"] = "valu"; d["w"] = R[0] | R[1]; d["r"] = R[0] | R[1]; d["perm"] = True
    elif mn.startswith("v_readfirstlane") or mn.startswith("v_readlane"):
        d["kind"] = "valu"; d["w"] = R[0]; d["r"] = set().union(*R[1:]); d["rl"] = True
    elif mn.startswith("v_"):
        d["kind"] = "valu"; d["w"] = R[0]; d["r"] = set().union(*R[1:]) if len(R) > 1 else set()
        if mn.startswith("v_dot2c") or mn.startswith("v_fmac") or mn.endswith("_dpp") or mn.startswith("v_writelane"):
            d["r"] = d["r"] | R[0]
        if mn.endswith("_dpp"):
            d["dpp"] = R[1]
        if mn.startswith("v_dot"):
            d["dl"] = True
        if mn.startswith("v_cndmask") and len(ops) == 3:
            d["r"] |= {("vcc", 0)}
        if any(mn.startswith(t) for t in TRANS):
            d["trans"] = True
    elif mn.startswith("buffer_load") or mn.startswith("global_load"):
        d["kind"] = "vmem"
        if "lds" in mods.split():
            d["r"] = set().union(*R) | {("m0", 0)}
        else:
            d["w"] = R[0]; d["r"] = set().union(*R[1:])
    elif mn.startswith("buffer_store") or mn.startswith("buffer_atomic") or mn.startswith("global_store"):
        d["kind"] = "vmem"; d["r"] = set().union(*R)
        if "x4" in mn or "x3" in mn: d["wide"] = R[0]
        if mn.startswith("buffer_atomic") and "sc0" in mods: d["w"] = R[0]
    elif mn.startswith("ds_read") or "_rtn" in mn or mn.startswith("ds_bpermute") or mn.startswith("ds_swizzle"):
        d["kind"] = "ds"; d["w"] = R[0]; d["r"] = set().union(*R[1:])
    elif mn.startswith("ds_"):
        d["kind"] = "ds"; d["r"] = set().union(*R)
    elif mn.startswith("s_"):
        d["kind"] = "salu"
        if mn.startswith("s_cmp") or mn.startswith("s_cbranch") or mn in ("s_waitcnt", "s_nop", "s_barrier", "s_branch", "s_endpgm", "s_sleep", "s_setprio"):
            d["r"] = set().union(*R) if R else set()
        else:
            d["w"] = R[0] if R else set(); d["r"] = set().union(*R[1:]) if len(R) > 1 else set()
            if "saveexec" in mn: d["w"] |= {("exec", 0)}
    return d

def check(seq, name=""):
    ins = [parse(s) for s in seq if not s.endswith(":") and not s.startswith(";")]
    probs = []
    for j, c in enumerate(ins):
        dist = 0
        for i in range(j - 1, max(-1, j - 24), -1):
            p = ins[i]
            need = 0
            vw = {x for x in p["w"] if x[0] in "va"}
            sw = {x for x in p["w"] if x[0] in ("s", "vcc")}
            if p["kind"] == "valu":
                if c.get("dpp") and (vw & (c["dpp"])): need = max(need, 2)
                if c["kind"] == "mfma" and (vw & c["r"]): need = max(need, 2)
                if c.get("perm") and (vw & c["r"]): need = max(need, 2)
                if c.get("rl") and (vw & c["r"]): need = max(need, 1)
                if p.get("trans") and c["kind"] == "valu" and not c.get("trans") and (vw & c["r"]): need = max(need, 1)
                if p.get("dl") and (vw & (c["r"] | c["w"])):
                    same = c["mn"] == p["mn"]
                    if same:
                        if c["mn"].startswith("v_dot2c"):
                            ab = regs_of(c["ops"][1]) | regs_of(c["ops"][2])
                        else:
                            ab = regs_of(c["ops"][1]) | regs_of(c["ops"][2])
                        if vw & ab: need = max(need, 3)
                    else:
                        need = max(need, 3)
                if sw and c["kind"] == "vmem" and (sw & c["r"]): need = max(need, 5)
                if sw and c["kind"] in ("valu", "mfma") and (sw & c["r"]): need = max(need, 4 if c.get("rl") else 2)
                if ("exec", 0) in p["w"]: need = max(need, 5)
            if p["kind"] == "mfma":
                if c["kind"] == "mfma":
                    if p["w"] & c["ra"]: need = max(need, 8)
                    if (p["w"] & c["rc"]) and p["w"] != c["rc"]: need = max(need, 6)
                    if (p["w"] & c["w"]) and p["w"] != c["rc"]: need = max(need, 8)
                elif c["kind"] in ("valu", "vmem", "ds"):
                    if p["w"] & (c["r"] | c["w"]): need = max(need, 8)
                    if c["kind"] == "valu" and (p["rc"] & c["w"]): need = max(need, 3)
            if p.get("wide") and (p["wide"] & c["w"]): need = max(need, 2)
            if p["kind"] == "salu" and ("m0", 0) in p["w"] and ("m0", 0) in c["r"] and c["kind"] != "salu": need = max(need, 1)
            if p["kind"] == "salu" and ("exec", 0) in p["w"] and c.get("dpp"): pass
            if need > dist:
                probs.append(f"[{name}] need {need} have {dist}: '{p['text']}' -> '{c['text']}'")
            if p["mn"] == "s_nop":
                dist += int(p["ops"][0], 0) + 1
            else:
                dist += 1
    return probs

def check_gen(g):
    probs = []
    for role in g.roles:
        seq = [s for s, r in g.items if r is None or r == role]
        probs += check(seq, role)
    return sorted(set(probs))
```

```python
import sys, struct
from asmlib import Gen, check_gen

KNAME = "gated_mix__sliding_block_cached__glu_gated_swiglu__decode_kernel"
def f2u(x): return struct.unpack("<I", struct.pack("<f", x))[0]

L_O, L_Q, L_H = 0, 2304, 2560
L_F, L_G, L_ML = 2816, 2832, 2848
LDS_BYTES = 3072
ACC_OFF = 2 * 1024 * 1024
EP_OFF = ACC_OFF + 65536
STAMP_OFF = 4 * 1024 * 1024
WS_BYTES = 8 * 1024 * 1024

V_L16, V_WO, V_W2, V_KV, V_T0, V_T1, V_T2 = 1, 2, 3, 4, 5, 6, 7
Q = 8; MASK = 12; S = 16; A4 = 24; TT = 28; F = 30; ACC0 = 32; ACC1 = 36; AOP = 40
T = 48
STG = 56
ZERO = 56
W2R = 72
X = 104
V_G = 120
V_LH = 124; V_ST = 125; XU = 126
V_FAC = 52; V_MC = 53; V_XL = 54; V_EP = 55
SLOT = 128
def slot(n): return SLOT + 4 * n
def r4(b): return f"v[{b}:{b+3}]"
ISA = "s_cmp_ge_u32 s3, 4\ns_cbranch_scc1"
ISB = "s_cmp_lt_u32 s3, 4\ns_cbranch_scc1"

def gen(D=5, DA=None, DB=None, POLL=14, SYNC=24, W2POS=None, WOPOS=None, B2AT=12, ZF=16, stamps=False,
        kvpol="nt", wpol="nt", spol="", kill="", xs="", xl="sc1", PAT=None, PATV=None, prio=None):
    g = Gen()
    I = g.I
    if W2POS is None: W2POS = [8, 10, 12, 14, 16, 18, 20, 22]
    if WOPOS is None: WOPOS = [0, 2, 3, 5, 6, 8, 9, 11, 12, 14, 15, 17, 18, 20, 21, 23]
    names = []
    def stamp(name):
        if stamps:
            if name not in names: names.append(name)
            k = names.index(name)
            assert k < 15
            I(f"s_memrealtime s[96:97]\ns_waitcnt lgkmcnt(0)\nv_writelane_b32 v{V_ST}, s96, {k}")
    I("s_cmp_ge_u32 s2, 256\ns_cbranch_scc1 L_end")
    if stamps:
        I(f"v_mov_b32 v{V_ST}, 0")
        stamp("start")
    I(f"""
    s_load_dwordx2 s[4:5], s[0:1], 8
    s_load_dwordx2 s[28:29], s[0:1], 96
    v_lshrrev_b32 v{V_T0}, 6, v0
    v_mov_b32 v{ZERO}, 0
    v_readfirstlane_b32 s3, v{V_T0}
    s_load_dwordx2 s[24:25], s[0:1], 0
    v_lshlrev_b32 v{V_T1}, 2, v0
    s_and_b32 s85, s3, 3
    s_lshl_b32 s86, s85, 3
    s_add_u32 s86, s86, 32
    s_cmp_lt_u32 s85, 2
    s_cselect_b32 s86, 24, s86
    s_cmp_lt_u32 s3, 4
    s_cselect_b32 s86, s86, 72
    s_load_dwordx2 s[20:21], s[0:1], s86
    v_and_b32 v{V_T1}, 0x7c, v{V_T1}
    ds_write_b32 v{V_T1}, v{ZERO} offset:{L_F}
    v_and_b32 v{V_L16}, 63, v0
    v_lshlrev_b32 v{V_L16}, 4, v{V_L16}
    s_lshr_b32 s44, s2, 5
    s_and_b32 s45, s2, 31
    s_mov_b32 s6, 0x10000000
    s_mov_b32 s7, 0x20000
    s_mov_b32 s23, 0x20000
    s_movk_i32 s26, 8192
    s_mov_b32 s27, 0x20000
    s_mov_b32 s30, {WS_BYTES}
    s_mov_b32 s31, 0x20000
    s_lshl_b32 s86, s85, 13
    s_lshr_b32 s87, s3, 2
    s_lshl_b32 s87, s87, 12
    s_or_b32 s86, s86, s87
    s_lshl_b32 s87, s2, 20
    s_add_u32 s86, s86, s87
    s_add_u32 s86, s86, 0xc0000
    v_add_u32 v{V_KV}, s86, v{V_L16}
    s_and_b32 s87, s45, 7
    s_lshl_b32 s87, s87, 2
    s_lshr_b32 s88, s45, 3
    s_add_u32 s87, s87, s88
    s_mul_i32 s87, s87, 172
    s_lshr_b32 s78, s87, 5
    s_add_u32 s87, s87, 172
    s_lshr_b32 s79, s87, 5
    s_sub_u32 s89, s79, s78
    s_lshl_b32 s87, s45, 8
    s_lshl_b32 s88, s85, 7
    s_add_u32 s87, s87, s88          ; 256h + 128u
    s_lshl_b32 s88, s78, 4           ; 16*c0
    s_cmp_lt_u32 s85, 2
    s_cselect_b32 s76, s26, 2752
    s_cselect_b32 s87, s87, s88
    s_cselect_b32 s89, 8, s89
    s_lshl_b32 s22, s76, 9
    s_lshl_b32 s88, s44, 6
    s_mul_i32 s88, s88, s76
    s_add_u32 s77, s87, s88
    s_lshl_b32 s88, s44, 7           ; 128 b
    s_lshl_b32 s99, s45, 10
    s_add_u32 s99, s99, {EP_OFF}
    s_mov_b32 s74, 0
    s_mov_b32 s75, 0x8000
    v_and_b32 v{T+2}, 0x380, v{V_L16}                  ; (lane>>3)*128
    v_bfe_u32 v{V_T0}, v0, 3, 1
    v_bfe_u32 v{V_T1}, v0, 4, 2
    v_lshlrev_b32 v{V_T1}, 3, v{V_T1}
    v_lshl_add_u32 v{V_T0}, v{V_T0}, 5, v{V_T1}        ; 32 khalf + 8 g
    v_and_b32 v{V_T2}, 7, v0
    v_lshlrev_b32 v{T+1}, 4, v{V_T2}                   ; i8*16
    v_mad_u32_u24 v{T}, v{V_T0}, s76, v{T+1}
    v_cmp_gt_u32 vcc, s89, v{V_T2}
    v_bfrev_b32 v{V_T2}, 1
    v_lshl_add_u32 v{V_W2}, v{V_T0}, 10, v{T+1}
    v_cndmask_b32 v{T}, v{V_T2}, v{T}, vcc
    v_and_b32 v{V_T2}, 1, v0
    v_lshl_add_u32 v{V_T2}, v{V_T2}, 5, v{V_T1}        ; 32(m&1) + 8g
    v_lshlrev_b32 v{V_LH}, 1, v{V_T2}
    v_bfe_u32 v{T+3}, v0, 1, 3
    v_lshl_add_u32 v{T+3}, v{T+3}, 10, v{V_LH}
    """)
    if "s" in kill: I("s_mov_b32 s22, 0")
    I("s_cmp_ge_u32 s3, 4\ns_waitcnt lgkmcnt(0)\ns_barrier")

    def kload(n):
        if n % 4 == 0 and n > 0: I("s_add_u32 s74, s74, s75")
        g.vm(f"buffer_load_dwordx4 {r4(slot(n))}, v{V_KV}, s[4:7], s74 offen offset:{(n%4)*1024} {kvpol}", f"k{n}")
    def vload(n):
        if n == 0: I("s_mov_b32 s74, 0")
        if n % 4 == 0 and n > 0: I("s_add_u32 s74, s74, s75")
        g.vm(f"buffer_load_dwordx4 {r4(slot(n%8))}, v{V_KV}, s[8:11], s74 offen offset:{(n%4)*1024} {kvpol}", f"v{n}")
    def w2load(j):
        so = "0" if j < 4 else "s84"
        g.vm(f"buffer_load_dwordx4 {r4(W2R+4*j)}, v{V_W2}, s[16:19], {so} offen offset:{(j%4)*1024} {wpol}", f"w2_{j}")
    def woload(n):
        grp, j = n // 8, n % 8
        if j == 0: I(f"s_movk_i32 s83, {grp*4096}")
        elif j % 2 == 0: I("s_add_u32 s83, s83, s26")
        g.vm(f"buffer_load_dwordx4 {r4(STG+4*(n%4))}, v{V_WO}, s[12:15], s83 offen offset:{(j%2)*2048} {wpol}", f"wo{n}")

    W1RAW = slot(8); W1FR = slot(16); W1ACC = slot(24); XOP = X + 8; Y = X
    g.begin('A', "s_cbranch_scc1")
    for j in range(8):
        g.vm(f"buffer_load_dwordx4 {r4(W1RAW+4*j)}, v{T}, s[20:23], s77 offen {wpol}", f"s1_{j}")
        if j < 7: I("s_add_u32 s77, s77, s76")
    g.vm(f"buffer_load_dwordx4 {r4(XOP)}, v{T+3}, s[24:27], s88 offen {spol}", "xop")
    g.vm(f"buffer_load_dword v{V_EP}, v{T+2}, s[28:31], s99 offen {spol}", "ep")
    g.end()
    for n in range(D): kload(n)
    g.begin('B', ISB)
    I("""
    s_lshl_b32 s87, s44, 10
    s_cmp_eq_u32 s3, 4
    s_cselect_b32 s87, s87, s26
    s_cselect_b32 s22, 1024, 0
    """)
    g.vm(f"buffer_load_dwordx4 {r4(X)}, v{V_L16}, s[24:27], s87 offen {spol}", "gx")
    g.vm(f"buffer_load_dwordx4 {r4(X+4)}, v{V_L16}, s[20:23], 0 offen {spol}", "gw")
    g.end()
    if prio is not None:
        g.begin('B', ISB); I(f"s_setprio {prio}"); g.end()

    I(f"""
    s_load_dwordx2 s[8:9], s[0:1], 16
    s_load_dwordx2 s[12:13], s[0:1], 32
    s_load_dwordx2 s[16:17], s[0:1], 64
    s_load_dwordx2 s[32:33], s[0:1], 88
    s_load_dwordx2 s[36:37], s[0:1], 80
    s_add_u32 s100, s99, s88
    s_mov_b32 s10, 0x10000000
    s_mov_b32 s11, 0x20000
    s_mov_b32 s14, 0x400000
    s_mov_b32 s15, 0x20000
    s_lshl_b32 s18, s79, 13
    s_mov_b32 s19, 0x20000
    s_movk_i32 s34, 256
    s_mov_b32 s35, 0x20000
    s_movk_i32 s38, 8192
    s_mov_b32 s39, 0x20000
    s_mov_b32 s46, 0x05040100
    s_mov_b32 s47, 0x07060302
    s_movk_i32 s84, 4096
    s_mov_b32 s93, {f2u(1.4426950408889634):#x}
    s_mov_b32 s94, {f2u(128 ** -0.5):#x}
    s_mov_b32 s95, 0xffff0000
    s_lshl_b32 s87, s3, 7                 ; 128 w
    s_lshl_b32 s89, s78, 13
    s_add_u32 s89, s89, s87
    v_add_u32 v{V_W2}, s89, v{V_W2}
    s_lshl_b32 s89, s45, 17
    s_add_u32 s89, s89, s87
    v_add_u32 v{V_WO}, s89, v{T+1}
    s_lshl_b32 s81, s45, 16
    s_lshl_b32 s89, s44, 13
    s_add_u32 s80, s81, s89
    s_lshl_b32 s89, s85, 11
    s_add_u32 s80, s80, s89               ; producer: h*64K + b*8192 + u*2048
    s_lshr_b32 s89, s85, 1
    s_lshl_b32 s89, s89, 12
    s_add_u32 s81, s81, s89
    s_and_b32 s89, s85, 1
    s_lshl_b32 s89, s89, 10
    s_add_u32 s81, s81, s89
    s_add_u32 s81, s81, s88
    s_add_u32 s77, s81, 0x8000
    s_lshl_b32 s82, s44, 12
    s_add_u32 s82, s82, {ACC_OFF}
    s_lshl_b32 s101, s45, 3
    s_add_u32 s101, s101, s3
    v_bfe_u32 v{V_T0}, v0, 4, 2
    v_lshl_add_u32 v{V_WO}, v{V_T0}, 15, v{V_WO}
    v_lshl_add_u32 v{V_XL}, v{V_T0}, 13, v{T+1}
    v_bfe_u32 v{V_T0}, v0, 3, 1
    v_lshl_add_u32 v{V_WO}, v{V_T0}, 10, v{V_WO}
    v_lshl_add_u32 v{V_XL}, v{V_T0}, 11, v{V_XL}
    ; masks
    v_and_b32 v{V_T0}, 1, v0
    v_lshlrev_b32 v{V_T0}, 4, v{V_T0}
    v_mov_b32 v{V_T1}, 0xffff
    v_lshlrev_b32 v{V_T1}, v{V_T0}, v{V_T1}
    v_bfe_u32 v{V_T0}, v0, 1, 2
    """)
    if "o" in kill: I("s_mov_b32 s14, 0")
    if "2" in kill: I("s_mov_b32 s18, 0")
    fill = [f"v_mov_b32 v{ZERO+1}, 0\nv_mov_b32 v{ZERO+2}, 0", f"v_mov_b32 v{ZERO+3}, 0\nv_mov_b32 v{F}, 1.0",
            f"v_mov_b32 v{F+1}, 1.0\nv_mov_b32 v{XU}, 0", f"v_mov_b32 v{XU+1}, 0\ns_nop 0"]
    for r in range(4):
        I(f"v_cmp_eq_u32 vcc, {r}, v{V_T0}\n{fill[r]}\nv_cndmask_b32 v{MASK+r}, 0, v{V_T1}, vcc")
    I("s_waitcnt lgkmcnt(0)")
    stamp("b0")
    g.ifelse_begin('A', ISA)
    I("""
    s_getreg_b32 s92, hwreg(HW_REG_XCC_ID, 0, 3)
    s_mov_b32 s88, 0x07060500
    s_mov_b32 s89, 0x07060501
    s_mov_b32 s90, 0x07060502
    s_mov_b32 s91, 0x07060503
    s_lshl_b32 s92, s92, 24
    s_lshl_b32 s87, s44, 3
    """)
    for jj in range(4):
        g.wait(f"s1_{2*jj+1}")
        for q in range(4):
            for e in range(2):
                I(f"v_perm_b32 v{W1FR+4*(2*q+e)+jj}, v{W1RAW+4*(2*jj+1)+q}, v{W1RAW+4*(2*jj)+q}, s{46+e}")
    g.wait("ep")
    for c in range(8):
        I(f"v_mfma_f32_16x16x32_bf16 {r4(W1ACC+4*c)}, {r4(XOP)}, {r4(W1FR+4*c)}, 0")
    I(f"""
    v_add_u32 v{V_EP}, 0x01010101, v{V_EP}
    s_nop 0
    v_readlane_b32 s98, v{V_EP}, s87
    v_and_b32 v{V_EP}, 0xf8ffffff, v{V_EP}
    v_or_b32 v{V_EP}, s92, v{V_EP}
    """)
    for c in range(8):
        a = W1ACC + 4 * c
        I(f"v_add_f32_dpp v{Y+c}, v{a+1}, v{a} row_ror:8 row_mask:0xf bank_mask:0x3")
        I(f"v_add_f32_dpp v{Y+c}, v{a+2}, v{a+3} row_ror:8 row_mask:0xf bank_mask:0xc")
        I(f"v_perm_b32 v{Y+c}, v{Y+c}, v{V_EP}, s{88+c%4}")
    g.vm(f"buffer_store_dwordx4 {r4(Y)}, v{V_L16}, s[28:31], s80 offen {xs}", "ex0")
    g.vm(f"buffer_store_dwordx4 {r4(Y+4)}, v{V_L16}, s[28:31], s80 offen offset:1024 {xs}", "ex1")
    I(f"v_readlane_b32 s73, v{V_EP}, s87")
    g.ifelse_else('B')
    I(f"""
    s_cmp_lg_u32 s101, 5
    s_cbranch_scc1 L_nozero
    buffer_store_dwordx4 {r4(ZERO)}, v{V_L16}, s[28:31], s82 offen sc1
    buffer_store_dwordx4 {r4(ZERO)}, v{V_L16}, s[28:31], s82 offen offset:1024 sc1
    buffer_store_dwordx4 {r4(ZERO)}, v{V_L16}, s[28:31], s82 offen offset:2048 sc1
    buffer_store_dwordx4 {r4(ZERO)}, v{V_L16}, s[28:31], s82 offen offset:3072 sc1
    """)
    g.label("L_nozero")
    g.end()
    stamp("s1done")

    def gate():
        I("s_cmp_lg_u32 s3, 4\ns_cbranch_scc1 L_nogate")
        g.role = 'B'
        assert g.is_done("gw")
        for q in range(4):
            I(f"""
            v_lshlrev_b32 v{X+8}, 16, v{X+q}
            v_and_b32 v{X+9}, s95, v{X+q}
            v_lshlrev_b32 v{X+10}, 16, v{X+4+q}
            v_and_b32 v{X+11}, s95, v{X+4+q}
            v_mul_f32 v{X+8}, v{X+8}, v{X+10}
            v_mul_f32 v{X+9}, v{X+9}, v{X+11}
            v_cvt_pk_bf16_f32 v{X+q}, v{X+8}, v{X+9}
            """)
        I(f"""
        v_mov_b32 v{X+8}, 0
        v_mov_b32 v{X+9}, 0x3f803f80
        v_dot2c_f32_bf16 v{X+8}, v{X}, v{X+9}
        v_dot2c_f32_bf16 v{X+8}, v{X+1}, v{X+9}
        v_dot2c_f32_bf16 v{X+8}, v{X+2}, v{X+9}
        v_dot2c_f32_bf16 v{X+8}, v{X+3}, v{X+9}
        s_nop 2
        v_add_f32_dpp v{X+8}, v{X+8}, v{X+8} quad_perm:[1,0,3,2] row_mask:0xf bank_mask:0xf
        s_nop 1
        v_add_f32_dpp v{X+8}, v{X+8}, v{X+8} quad_perm:[2,3,0,1] row_mask:0xf bank_mask:0xf
        """)
        allred(X + 8, X + 9, "v_add_f32")
        I(f"""
        v_cvt_pk_bf16_f32 v{X+8}, v{X+8}, v{X+8}
        v_and_b32 v{X+8}, s95, v{X+8}
        v_mul_f32 v{X+8}, s93, v{X+8}
        v_exp_f32 v{X+8}, -v{X+8}
        v_mov_b32 v{X+10}, 1
        v_add_f32 v{X+8}, 1.0, v{X+8}
        v_rcp_f32 v{X+8}, v{X+8}
        v_mov_b32 v{X+11}, 1
        v_cvt_pk_bf16_f32 v{X+8}, v{X+8}, v{X+8}
        v_and_b32 v{X+8}, s95, v{X+8}
        v_sub_f32 v{X+9}, 1.0, v{X+8}
        v_cvt_pk_bf16_f32 v{X+9}, v{X+9}, v{X+9}
        v_and_b32 v{X+9}, s95, v{X+9}
        s_mov_b64 exec, 1
        ds_write_b128 v{ZERO}, {r4(X+8)} offset:{L_G}
        s_mov_b64 exec, -1
        """)
        g.role = None
        g.label("L_nogate")

    kgroups_done = [0]
    def consume_group(k):
        s0 = 4 * k
        for i in range(4):
            I(f"v_dot2_f32_bf16 v{A4+i}, v{slot(s0+i)}, v{Q}, 0")
        for q in range(1, 4):
            for i in range(4):
                I(f"v_dot2c_f32_bf16 v{A4+i}, v{slot(s0+i)+q}, v{Q+q}")
        I(f"""
        v_add_f32_dpp v{TT}, v{A4}, v{A4} row_ror:8 row_mask:0xf bank_mask:0x3
        v_add_f32_dpp v{TT}, v{A4+1}, v{A4+1} row_ror:8 row_mask:0xf bank_mask:0xc
        v_add_f32_dpp v{TT+1}, v{A4+2}, v{A4+2} row_ror:8 row_mask:0xf bank_mask:0x3
        v_add_f32_dpp v{TT+1}, v{A4+3}, v{A4+3} row_ror:8 row_mask:0xf bank_mask:0xc
        v_add_f32_dpp v{S+k}, v{TT}, v{TT} row_half_mirror row_mask:0xf bank_mask:0x5
        s_nop 0
        v_add_f32_dpp v{S+k}, v{TT+1}, v{TT+1} row_half_mirror row_mask:0xf bank_mask:0xa
        s_nop 1
        v_add_f32_dpp v{S+k}, v{S+k}, v{S+k} quad_perm:[1,0,3,2] row_mask:0xf bank_mask:0xf
        s_nop 1
        v_add_f32_dpp v{S+k}, v{S+k}, v{S+k} quad_perm:[2,3,0,1] row_mask:0xf bank_mask:0xf
        """)
        if k % 2 == 1:
            a, b = S + k - 1, S + k
            I(f"""
            v_cvt_pk_bf16_f32 v{TT}, v{a}, v{b}
            v_lshlrev_b32 v{a}, 16, v{TT}
            v_and_b32 v{b}, s95, v{TT}
            v_mul_f32 v{a}, s94, v{a}
            v_mul_f32 v{b}, s94, v{b}
            v_cvt_pk_bf16_f32 v{TT}, v{a}, v{b}
            v_lshlrev_b32 v{a}, 16, v{TT}
            v_and_b32 v{b}, s95, v{TT}
            """)
        kgroups_done[0] = k + 1

    def allred(v, t, op):
        I(f"""
        s_nop 1
        {op}_dpp v{v}, v{v}, v{v} row_ror:4 row_mask:0xf bank_mask:0xf
        s_nop 1
        {op}_dpp v{v}, v{v}, v{v} row_ror:8 row_mask:0xf bank_mask:0xf
        v_mov_b32 v{t}, v{v}
        s_nop 1
        v_permlane16_swap_b32 v{v}, v{t}
        {op} v{v}, v{v}, v{t}
        v_mov_b32 v{t}, v{v}
        s_nop 1
        v_permlane32_swap_b32 v{v}, v{t}
        {op} v{v}, v{v}, v{t}
        """)

    def softmax1():
        m = TT
        I(f"""
        v_max3_f32 v{m}, v{S}, v{S+1}, v{S+2}
        v_max3_f32 v{m}, v{m}, v{S+3}, v{S+4}
        v_max3_f32 v{m}, v{m}, v{S+5}, v{S+6}
        v_max_f32 v{m}, v{m}, v{S+7}
        """)
        allred(m, A4, "v_max_f32")
        I(f"v_mul_f32 v{m}, s93, v{m}")
        for k in range(8):
            I(f"v_fma_f32 v{S+k}, v{S+k}, s93, -v{m}")
    def softmax2():
        m = TT
        for k in range(8):
            I(f"v_exp_f32 v{S+k}, v{S+k}")
        l = TT + 1
        I(f"v_add_f32 v{l}, v{S}, v{S+1}")
        for k in range(2, 8):
            I(f"v_add_f32 v{l}, v{l}, v{S+k}")
        for k in range(8):
            I(f"v_cvt_pk_bf16_f32 v{S+k}, v{S+k}, v{S+k}")
    def softmax3():
        m, l = TT, TT + 1
        allred(l, A4, "v_add_f32")
        I(f"""
        s_lshl_b32 s88, s3, 3
        v_mov_b32 v{A4}, s88
        v_mov_b32 v{V_MC}, v{m}
        s_mov_b64 exec, 1
        ds_write_b64 v{A4}, v[{TT}:{TT+1}] offset:{L_ML}
        s_mov_b64 exec, -1
        """)

    def ffn_mm(q):
        for e in range(2):
            for jj in range(4):
                I(f"v_perm_b32 v{X+4*e+jj}, v{W2R+4*(2*jj+1)+q}, v{W2R+4*(2*jj)+q}, s{46+e}")
        I("s_nop 1")
        for e in range(2):
            I(f"v_mfma_f32_16x16x32_bf16 {r4(X+8+4*e)}, {r4(T)}, {r4(X+4*e)}, 0")
    def ffn_fold(q):
        for e in range(2):
            c = 2 * q + e
            a = X + 8 + 4 * e
            I(f"v_add_f32_dpp v{F+c//4}, v{a+1}, v{a} row_ror:8 row_mask:{1 << (c%4):#x} bank_mask:0x3")
        if q == 3:
            I("s_nop 1")
            for u in range(2):
                I(f"v_mul_f32_dpp v{F+u}, v{F+u}, v{V_G+1} quad_perm:[0,1,2,3] row_mask:0xf bank_mask:0x3")

    def build_a(t):
        k, half = t // 2, t % 2
        for r in range(4):
            mir = (r >= 2) != (half == 1)
            d = AOP + 4 * (t % 2) + r
            if mir:
                I(f"v_and_b32_dpp v{d}, v{S+k}, v{MASK+r} row_half_mirror row_mask:0xf bank_mask:0xf")
            else:
                I(f"v_and_b32 v{d}, v{S+k}, v{MASK+r}")

    vdone = [0]
    def pv(n):
        t = n // 2
        acc = ACC0 if n % 2 == 0 else ACC1
        c = "0" if n < 2 else r4(acc)
        I(f"v_mfma_f32_16x16x32_bf16 {r4(acc)}, {r4(AOP+4*(t%2))}, {r4(slot(n%8))}, {c}")
        vdone[0] = n + 1
        if n % 2 == 1 and t + 2 < 16:
            build_a(t + 2)

    wopairs = [0]
    def wo_perm(p):
        grp, jj = p // 4, p % 4
        a, b = STG + 4 * ((2 * p) % 4), STG + 4 * ((2 * p + 1) % 4)
        for q in range(4):
            for e in range(2):
                I(f"v_perm_b32 v{slot(8)+32*grp+4*(2*q+e)+jj}, v{b+q}, v{a+q}, s{46+e}")
        wopairs[0] = p + 1

    def ml_issue():
        I(f"""
        s_lshl_b32 s99, s44, 5
        s_load_dword s98, s[32:33], s99
        v_and_b32 v{A4+3}, 7, v0
        v_lshlrev_b32 v{A4+3}, 3, v{A4+3}
        ds_read_b64 v[{A4}:{A4+1}], v{A4+3} offset:{L_ML}
        """)
    def ml_combine():
        I(f"""
        s_waitcnt lgkmcnt(0)
        s_cmp_eq_u32 s98, 1
        s_cbranch_scc1 L_zok
        s_mov_b32 s92, 200000
        v_mov_b32 v{TT}, 0
        s_mov_b64 exec, 1""")
        g.label("L_zpoll")
        I(f"""
        buffer_load_dword v{TT+1}, v{TT}, s[32:35], s99 offen sc1
        s_waitcnt vmcnt(0)
        v_cmp_eq_u32 vcc, 1, v{TT+1}
        s_cbranch_vccnz L_zdone
        s_sub_u32 s92, s92, 1
        s_cbranch_scc0 L_zpoll""")
        g.label("L_zdone")
        I("s_mov_b64 exec, -1")
        g.label("L_zok")
        I(f"""
        v_cmp_eq_u32 vcc, 0, v{A4+1}
        s_cbranch_vccz L_mlok
        ds_read_b64 v[{A4}:{A4+1}], v{A4+3} offset:{L_ML}
        s_waitcnt lgkmcnt(0)
        s_branch L_zok""")
        g.label("L_mlok")
        I(f"""
        v_max_f32_dpp v{A4+2}, v{A4}, v{A4} quad_perm:[1,0,3,2] row_mask:0xf bank_mask:0xf
        v_lshrrev_b32 v{V_T2}, 2, v{V_L16}
        s_mul_i32 s88, s3, 288
        v_max_f32_dpp v{A4+2}, v{A4+2}, v{A4+2} quad_perm:[2,3,0,1] row_mask:0xf bank_mask:0xf
        v_add_u32 v{V_T0}, s88, v{V_T2}
        v_bfe_u32 v{V_T1}, v0, 1, 3
        v_max_f32_dpp v{A4+2}, v{A4+2}, v{A4+2} row_half_mirror row_mask:0xf bank_mask:0xf
        v_sub_f32 v{A4}, v{A4}, v{A4+2}
        v_sub_f32 v{V_MC}, v{V_MC}, v{A4+2}
        v_exp_f32 v{A4}, v{A4}
        v_exp_f32 v{V_MC}, v{V_MC}
        v_mul_f32 v{A4}, v{A4}, v{A4+1}
        v_mul_f32 v{V_MC}, v{V_MC}, v{V_G}
        v_mul_u32_u24 v{V_T1}, 288, v{V_T1}
        v_add_f32_dpp v{A4}, v{A4}, v{A4} quad_perm:[1,0,3,2] row_mask:0xf bank_mask:0xf
        v_and_b32 v{A4+1}, 1, v0
        v_lshl_add_u32 v{V_T1}, v{A4+1}, 7, v{V_T1}
        v_add_f32_dpp v{A4}, v{A4}, v{A4} quad_perm:[2,3,0,1] row_mask:0xf bank_mask:0xf
        v_and_b32 v{A4+1}, 48, v0
        v_add_u32 v{V_T1}, v{A4+1}, v{V_T1}
        v_add_f32_dpp v{A4}, v{A4}, v{A4} row_half_mirror row_mask:0xf bank_mask:0xf
        v_rcp_f32 v{A4}, v{A4}
        v_and_b32 v{V_W2}, 0xf0, v{V_L16}
        v_mul_f32 v{V_FAC}, v{V_MC}, v{A4}
        v_bfe_u32 v{A4+1}, v0, 4, 2
        v_lshl_add_u32 v{V_W2}, v{A4+1}, 1, v{V_W2}
        s_lshl_b32 s88, s3, 9
        s_add_u32 s82, s82, s88
        s_lshl_b32 s72, s44, 10
        s_lshl_b32 s88, s3, 7
        s_add_u32 s72, s72, s88
        """)
        if "a" in kill: I(f"s_mov_b32 s82, {WS_BYTES}")

    def kvtag(i): return f"k{i}" if i < 32 else f"v{i-32}"
    def throttle(i, isw=False):
        if PAT is None:
            g.waitn(D - 1); return
        if isw: return
        p = PAT if (i < 32 or PATV is None) else PATV
        d = p[i % len(p)]
        if i - d >= 0: g.wait(kvtag(i - d))
    w2n = 0
    synced = False
    gate_done = False
    PX = slot(30)
    def sync_reads():
        I(f"""
        ds_read_b128 {r4(X)}, v{ZERO} offset:{L_F}
        ds_read_b128 {r4(V_G)}, v{ZERO} offset:{L_G}
        ds_read_b128 {r4(Q)}, v{V_T0} offset:{L_Q}
        ds_read_b128 {r4(T)}, v{V_LH} offset:{L_H}
        """)
    for n in range(D, 32):
        if n == ZF:
            I(f"""
            s_cmp_lg_u32 s101, 5
            s_cbranch_scc1 L_noflag
            v_mov_b32 v{X}, 1
            s_lshl_b32 s88, s44, 5
            s_mov_b64 exec, 1
            buffer_store_dword v{X}, v{ZERO}, s[32:35], s88 offen sc1
            s_mov_b64 exec, -1
            """)
            g.label("L_noflag")
        if n == POLL:
            g.begin('A', ISA)
            g.vm(f"buffer_load_dwordx4 {r4(PX)}, v{V_XL}, s[28:31], s81 offen {xl}", "px0")
            g.vm(f"buffer_load_dwordx4 {r4(PX+4)}, v{V_XL}, s[28:31], s77 offen {xl}", "px1")
            g.end()
        if n == POLL + D:
            g.begin('A', ISA)
            I(f"""
            v_and_b32 v{X}, 0xf0, v{V_L16}
            v_bfe_u32 v{X+1}, v0, 4, 1
            v_lshl_add_u32 v{X}, v{X+1}, 2, v{X}
            v_bfe_u32 v{X+1}, v0, 5, 1
            v_lshl_add_u32 v{X}, v{X+1}, 1, v{X}
            s_and_b32 s88, s3, 1
            s_lshl_b32 s88, s88, 3
            s_and_b32 s89, s3, 2
            s_lshl_b32 s89, s89, 7
            s_add_u32 s88, s88, s89
            v_add_u32 v{X}, s88, v{X}
            s_mov_b32 s92, 200000
            s_mov_b32 s88, 0x0c0c0400
            s_mov_b32 s89, 0x04000c0c
            s_mov_b32 s90, -1
            """)
            g.wait("px1")
            stamp("x1")
            g.label("L_poll")
            I(f"""
            v_perm_b32 v{X+2}, v{PX+1}, v{PX}, s88
            v_perm_b32 v{X+3}, v{PX+3}, v{PX+2}, s89
            v_perm_b32 v{X+4}, v{PX+5}, v{PX+4}, s88
            v_perm_b32 v{X+5}, v{PX+7}, v{PX+6}, s89
            v_or_b32 v{X+2}, v{X+2}, v{X+3}
            v_or_b32 v{X+4}, v{X+4}, v{X+5}
            v_xor_b32 v{X+2}, s73, v{X+2}
            v_xor_b32 v{X+4}, s73, v{X+4}
            v_or_b32 v{X+2}, v{X+2}, v{X+4}
            v_and_b32 v{X+2}, s90, v{X+2}
            v_cmp_ne_u32 vcc, 0, v{X+2}
            s_cbranch_vccz L_polled
            s_sub_u32 s92, s92, 1
            s_cbranch_scc1 L_polled
            s_cmp_gt_u32 s92, {200000 - 5}
            s_cbranch_scc1 L_reload
            s_cmp_eq_u32 s90, -1
            s_cbranch_scc0 L_flushed
            s_mov_b32 s90, 0xf8ffffff
            s_waitcnt vmcnt(0)
            buffer_wbl2 sc1
            s_waitcnt vmcnt(0)""")
            g.label("L_flushed")
            I("buffer_inv sc1")
            g.label("L_reload")
            I(f"""
            buffer_load_dwordx4 {r4(PX)}, v{V_XL}, s[28:31], s81 offen sc1
            buffer_load_dwordx4 {r4(PX+4)}, v{V_XL}, s[28:31], s77 offen sc1
            s_waitcnt vmcnt(0)
            s_branch L_poll""")
            g.label("L_polled")
            stamp("x2")
            I(f"""
            v_pk_add_f32 v[{PX}:{PX+1}], v[{PX}:{PX+1}], v[{PX+4}:{PX+5}]
            v_pk_add_f32 v[{PX+2}:{PX+3}], v[{PX+2}:{PX+3}], v[{PX+6}:{PX+7}]
            s_lshl_b32 s88, s3, 2
            v_permlane32_swap_b32 v{PX}, v{PX+1}
            v_permlane32_swap_b32 v{PX+2}, v{PX+3}
            v_add_f32 v{PX}, v{PX}, v{PX+1}
            v_add_f32 v{PX+2}, v{PX+2}, v{PX+3}
            v_mov_b32 v{X+1}, s88
            v_mov_b32 v{X+2}, 1
            v_permlane16_swap_b32 v{PX}, v{PX+2}
            v_add_f32 v{PX}, v{PX}, v{PX+2}
            v_cvt_pk_bf16_f32 v{PX}, v{PX}, v{PX}
            v_and_b32 v{PX+1}, s95, v{PX}
            v_mul_f32 v{PX+2}, s93, v{PX+1}
            v_exp_f32 v{PX+2}, -v{PX+2}
            s_nop 0
            v_add_f32 v{PX+2}, 1.0, v{PX+2}
            v_rcp_f32 v{PX+2}, v{PX+2}
            s_nop 0
            v_mul_f32 v{PX+2}, v{PX+2}, v{PX+1}
            v_cvt_pk_bf16_f32 v{PX+2}, v{PX+2}, v{PX+2}
            v_and_b32 v{PX+2}, s95, v{PX+2}
            v_mul_f32_dpp v{PX+2}, v{PX+1}, v{PX+2} row_ror:8 row_mask:0xf bank_mask:0xf
            s_cmp_ge_u32 s3, 2
            s_cselect_b64 vcc, -1, 0
            v_cvt_pk_bf16_f32 v{PX+2}, v{PX+2}, v{PX+2}
            v_cndmask_b32 v{PX}, v{PX}, v{PX+2}, vcc
            ds_write_b16 v{X}, v{PX} offset:{L_Q}
            s_mov_b64 exec, 1
            ds_write_b32 v{X+1}, v{X+2} offset:{L_F}
            s_mov_b64 exec, -1
            """)
            g.end()
        if n == SYNC:
            stamp("sync")
            I(f"v_and_b32 v{V_T0}, 0xf0, v{V_L16}")
            sync_reads()
        throttle(n)
        kload(n)
        if n == SYNC:
            g.label("L_sync")
            I(f"""
            s_waitcnt lgkmcnt(0)
            v_and_b32 v{X}, v{X}, v{X+1}
            v_and_b32 v{X+2}, v{X+2}, v{X+3}
            v_and_b32 v{X}, v{X}, v{V_G+2}
            v_and_b32 v{X}, v{X}, v{X+2}
            v_cmp_eq_u32 vcc, 0, v{X}
            s_cbranch_vccz L_synced
            """)
            sync_reads()
            I("s_branch L_sync")
            g.label("L_synced")
            stamp("synced")
            I(f"""
            s_cmp_lg_u32 s3, 0
            s_cbranch_scc1 L_nobump
            v_mov_b32 v{X}, s98
            s_mov_b64 exec, 1
            buffer_store_dword v{X}, v{ZERO}, s[28:31], s100 offen
            s_mov_b64 exec, -1
            """)
            g.label("L_nobump")
            synced = True
        if not gate_done and g.done['B'] > g._idx("gw", 'B'):
            gate(); gate_done = True
        if synced:
            k = kgroups_done[0]
            if k < 8 and 4 * k + 3 <= n and g.is_done(f"k{4*k+3}"):
                consume_group(k)
        if w2n < 8 and n == W2POS[w2n]:
            throttle(n, True)
            w2load(w2n); w2n += 1
    assert w2n == 8 and gate_done
    won = 0
    sm = 0
    ffn_q = 0
    def after_step(n):
        nonlocal sm, ffn_q
        k = kgroups_done[0]
        if k < 8:
            if g.is_done(f"k{4*k+3}"):
                consume_group(k)
            return
        if sm == 0:
            softmax1(); sm = 1; return
        if sm == 1:
            softmax2(); build_a(0); build_a(1); sm = 2; stamp("smax"); I("s_nop 0")
        elif sm == 2:
            softmax3(); sm = 3
        while vdone[0] <= n and vdone[0] < 32 and g.is_done(f"v{vdone[0]}"):
            pv(vdone[0])
        p = wopairs[0]
        if p < 8 and 2 * p + 1 < won and g.is_done(f"wo{2*p+1}"):
            wo_perm(p)
        elif sm == 3 and ffn_q < 8 and g.is_done("w2_7"):
            if ffn_q % 2 == 0: ffn_mm(ffn_q // 2)
            else:
                I("s_nop 4"); ffn_fold(ffn_q // 2)
            ffn_q += 1
    for n in range(32):
        if n == B2AT - 2:
            assert sm == 3
            ml_issue()
        if n == B2AT:
            ml_combine()
        throttle(32 + n)
        if n < 8:
            assert kgroups_done[0] > n // 4
        else:
            assert vdone[0] > n - 8, (n, vdone[0])
        vload(n)
        after_step(n)
        if won < 16 and n == WOPOS[won]:
            throttle(32 + n, True)
            assert won < 4 or wopairs[0] > (won - 4) // 2, (won, wopairs[0])
            woload(won); won += 1
            after_step(n)
    assert won == 16 and ffn_q == 8
    stamp("issued")
    while vdone[0] < 32:
        g.wait(f"v{vdone[0]}")
        after_step(31)
    assert wopairs[0] == 8
    stamp("lastv")
    I(f"""
    s_nop 7
    v_permlane32_swap_b32 v{ACC1}, v{ACC0+1}
    v_permlane32_swap_b32 v{ACC1+2}, v{ACC0+3}
    s_nop 0
    v_add_f32_dpp v{T}, v{ACC0}, v{ACC0+1} quad_perm:[0,1,2,3] row_mask:0x3 bank_mask:0xf
    v_add_f32_dpp v{T+1}, v{ACC0+2}, v{ACC0+3} quad_perm:[0,1,2,3] row_mask:0x3 bank_mask:0xf
    v_add_f32_dpp v{T}, v{ACC1+1}, v{ACC1} quad_perm:[0,1,2,3] row_mask:0xc bank_mask:0xf
    v_add_f32_dpp v{T+1}, v{ACC1+3}, v{ACC1+2} quad_perm:[0,1,2,3] row_mask:0xc bank_mask:0xf
    v_mul_f32 v{T}, v{T}, v{V_FAC}
    v_mul_f32 v{T+1}, v{T+1}, v{V_FAC}
    v_cvt_pk_bf16_f32 v{T}, v{T}, v{T+1}
    ds_write_b32 v{V_T0}, v{T} offset:{L_O}
    s_waitcnt lgkmcnt(0)
    s_barrier
    """)
    stamp("b3")
    I(f"ds_read_b128 {r4(AOP)}, v{V_T1} offset:{L_O}")
    I(f"ds_read_b128 {r4(AOP+4)}, v{V_T1} offset:{L_O+64}")
    TACC = slot(24)
    E = STG
    I("s_waitcnt lgkmcnt(0)")
    def estep(c):
        a = TACC + 4 * c
        I(f"v_add_f32_dpp v{E+c}, v{a}, v{a+2} quad_perm:[0,1,2,3] row_mask:0xf bank_mask:0x3")
        I(f"v_add_f32_dpp v{E+c}, v{a+1}, v{a+3} quad_perm:[0,1,2,3] row_mask:0xf bank_mask:0xc")
    def s32(c):
        I(f"v_permlane32_swap_b32 v{E+c}, v{E+c+2}\nv_add_f32 v{E+c}, v{E+c}, v{E+c+2}")
    def s16(u):
        c = 4 * u
        I(f"v_permlane16_swap_b32 v{E+c}, v{E+c+1}\nv_add_f32 v{E+c}, v{E+c}, v{E+c+1}")
    def fin(u):
        c = 4 * u
        I(f"v_add_f32_dpp v{XU+u}, v{E+c}, v{E+c} row_ror:8 row_mask:0xf bank_mask:0x3")
    order = [0, 2, 1, 3, 4, 6, 5, 7]
    for idx, c in enumerate(order):
        for grp in range(2):
            cc = "0" if grp == 0 else r4(TACC + 4 * c)
            I(f"v_mfma_f32_16x16x32_bf16 {r4(TACC+4*c)}, {r4(AOP+4*grp)}, {r4(slot(8)+32*grp+4*c)}, {cc}")
        if idx >= 4: estep(order[idx - 4])
    s32(0); estep(4); s32(1); estep(6); s16(0); estep(5); s32(4); estep(7); fin(0)
    I("s_nop 0"); s32(5); I("s_nop 1"); s16(1); I("s_nop 1"); fin(1)
    stamp("preat")
    I(f"""
    s_mov_b32 exec_lo, 0x01ff01ff
    s_mov_b32 exec_hi, 0x01ff01ff
    v_add_f32 v{T}, v{XU}, v{F}
    v_add_f32 v{T+1}, v{XU+1}, v{F+1}
    """)
    g.vm(f"buffer_atomic_add_f32 v{T}, v{V_T2}, s[28:31], s82 offen sc0", "at0")
    g.vm(f"buffer_atomic_add_f32 v{T+1}, v{V_T2}, s[28:31], s82 offen offset:256 sc0", "at1")
    I(f"""
    v_add_f32 v{XU}, v{XU}, v{F}
    v_add_f32 v{XU+1}, v{XU+1}, v{F+1}
    s_mov_b32 s88, {f2u(31.0):#x}
    s_mov_b32 s90, 0x00ff00ff
    s_mov_b32 s91, 0x00ff00ff
    """)
    g.wait("at1")
    I(f"""
    v_mov_b32_dpp v{T+2}, v{T} row_newbcast:8 row_mask:0xf bank_mask:0xf
    v_mov_b32_dpp v{T+3}, v{T+1} row_newbcast:8 row_mask:0xf bank_mask:0xf
    v_add_f32 v{T}, v{T}, v{XU}
    v_add_f32 v{T+1}, v{T+1}, v{XU+1}
    v_cmp_eq_f32 vcc, s88, v{T+2}
    v_cmp_eq_f32 s[86:87], s88, v{T+3}
    v_cvt_pk_bf16_f32 v{T}, v{T}, v{T+1}
    s_and_b64 exec, vcc, s[90:91]
    s_cbranch_execz L_nost0
    buffer_store_short v{T}, v{V_W2}, s[36:39], s72 offen
    """)
    g.label("L_nost0")
    I(f"""
    s_and_b64 exec, s[86:87], s[90:91]
    s_cbranch_execz L_nost1
    buffer_store_short_d16_hi v{T}, v{V_W2}, s[36:39], s72 offen offset:8
    """)
    g.label("L_nost1")
    if stamps:
        I("s_mov_b64 exec, -1")
        stamp("end")
        I(f"""
        s_getreg_b32 s96, hwreg(HW_REG_XCC_ID)
        s_nop 0
        v_writelane_b32 v{V_ST}, s96, 15
        s_lshl_b32 s88, s2, 9
        s_lshl_b32 s89, s3, 6
        s_add_u32 s88, s88, s89
        s_add_u32 s88, s88, {STAMP_OFF}
        s_mov_b64 exec, 0xffff
        buffer_store_dword v{V_ST}, v{V_T2}, s[28:31], s88 offen
        """)
    probs = check_gen(g)
    for p in probs: print("HAZARD", p, file=sys.stderr)
    body = g.text()
    head = f"""; gated mix of sliding-window decode attention and SwiGLU FFN, one workgroup per (batch, head)
; @launch grid=(256,1,1) block=(512,1,1) lds={LDS_BYTES}
.amdgcn_target "amdgcn-amd-amdhsa--gfx950"
.text
.globl {KNAME}
.p2align 8
.type {KNAME},@function
{KNAME}:
"""
    foot = f"""L_end:
    s_endpgm
.section .rodata,"a"
.p2align 6
.amdhsa_kernel {KNAME}
  .amdhsa_next_free_vgpr 256
  .amdhsa_next_free_sgpr 102
  .amdhsa_accum_offset 256
  .amdhsa_group_segment_fixed_size 0
  .amdhsa_kernarg_size 104
  .amdhsa_user_sgpr_count 2
  .amdhsa_user_sgpr_kernarg_segment_ptr 1
  .amdhsa_system_sgpr_workgroup_id_x 1
  .amdhsa_float_denorm_mode_32 3
.end_amdhsa_kernel
"""
    return head + body + foot, probs

if __name__ == "__main__":
    out = sys.argv[1]
    kw = {}
    for a in sys.argv[2:]:
        k, v = a.split("=")
        kw[k] = eval(v)
    txt, probs = gen(**kw)
    open(out, "w").write(txt)
```

```python
import re

class Gen:
    def __init__(self):
        self.items = []
        self.role = None
        self.q = []
        self.ndone = {}
        self.roles = ['A', 'B']
        self.done = {r: 0 for r in self.roles}
        self.nlabel = 0

    def I(self, s):
        for line in s.strip("\n").split("\n"):
            line = line.strip()
            if line:
                self.items.append((line, self.role))

    def label(self, name):
        self.items.append((name + ":", None))

    def begin(self, role, cond_skip):
        assert self.role is None
        self.nlabel += 1
        self.cur_label = f"L_skip{self.nlabel}"
        self.I(cond_skip + " " + self.cur_label)
        self.role = role

    def end(self):
        self.role = None
        self.label(self.cur_label)

    def vm(self, text, tag):
        self.I(text)
        self.q.append((tag, self.role))

    def _paths(self):
        return [self.role] if self.role else self.roles

    def _idx(self, tag, p):
        idx = [i for i, (t, r) in enumerate(self.q) if t == tag and (r is None or r == p)]
        assert len(idx) == 1, (tag, p, idx)
        return idx[0]

    def is_done(self, tag):
        return all(self.done[p] > self._idx(tag, p) for p in self._paths())

    def waitn(self, n):
        assert 0 <= n <= 63
        need = False
        newdone = {}
        for p in self._paths():
            ops = [i for i, (t, r) in enumerate(self.q) if r is None or r == p]
            k = len(ops) - n
            if k > 0:
                nd = ops[k - 1] + 1
                if nd > self.done[p]:
                    need = True
                    newdone[p] = nd
        if need:
            self.I(f"s_waitcnt vmcnt({n})")
            self.done.update(newdone)

    def wait(self, tag):
        n = None
        for p in self._paths():
            idx = self._idx(tag, p)
            if self.done[p] > idx:
                continue
            c = sum(1 for i, (t, r) in enumerate(self.q) if i > idx and (r is None or r == p))
            n = c if n is None else min(n, c)
        if n is not None:
            self.waitn(n)

    def ifelse_begin(self, role, cond_skip):
        self.begin(role, cond_skip)

    def ifelse_else(self, role2):
        self.nlabel += 1
        endl = f"L_join{self.nlabel}"
        self.I(f"s_branch {endl}")
        self.role = None
        self.label(self.cur_label)
        self.cur_label = endl
        self.role = role2

    def text(self):
        out = []
        for s, r in self.items:
            out.append(s if s.endswith(":") else "    " + s)
        return "\n".join(out) + "\n"

def regs_of(op):
    op = op.strip()
    op = op.replace("-", "").replace("abs(", "").replace(")", "").replace("|", "")
    m = re.fullmatch(r"([vsa])(\d+)", op)
    if m: return {(m.group(1), int(m.group(2)))}
    m = re.fullmatch(r"([vsa])\[(\d+):(\d+)\]", op)
    if m: return {(m.group(1), i) for i in range(int(m.group(2)), int(m.group(3)) + 1)}
    if op == "vcc": return {("vcc", 0)}
    if op == "exec": return {("exec", 0)}
    if op == "m0": return {("m0", 0)}
    return set()

TRANS = ("v_exp_f32", "v_log_f32", "v_rcp_f32", "v_rsq_f32", "v_sqrt_f32")

def parse(line):
    line = line.split(";")[0].strip()
    parts = line.split(None, 1)
    mn = parts[0]
    rest = parts[1] if len(parts) > 1 else ""
    ops = []
    depth = 0; cur = ""
    for ch in rest:
        if ch == "[": depth += 1
        if ch == "]": depth -= 1
        if ch == "," and depth == 0:
            ops.append(cur.strip()); cur = ""
        else:
            cur += ch
    if cur.strip(): ops.append(cur.strip())
    mods = ""
    if ops:
        last = ops[-1].split(None, 1)
        ops[-1] = last[0]
        mods = last[1] if len(last) > 1 else ""
    d = dict(mn=mn, ops=ops, mods=mods, w=set(), r=set(), kind="other", text=line)
    R = [regs_of(o) for o in ops]
    if mn.startswith("v_mfma"):
        d["kind"] = "mfma"; d["w"] = R[0]; d["ra"] = R[1] | R[2]; d["rc"] = R[3]; d["r"] = R[1] | R[2] | R[3]
    elif mn.startswith("v_cmp"):
        d["kind"] = "valu"; d["w"] = R[0]; d["r"] = set().union(*R[1:])
    elif mn.startswith("v_permlane"):
        d["kind"] = "valu"; d["w"] = R[0] | R[1]; d["r"] = R[0] | R[1]; d["perm"] = True
    elif mn.startswith("v_readfirstlane") or mn.startswith("v_readlane"):
        d["kind"] = "valu"; d["w"] = R[0]; d["r"] = set().union(*R[1:]); d["rl"] = True
    elif mn.startswith("v_"):
        d["kind"] = "valu"; d["w"] = R[0]; d["r"] = set().union(*R[1:]) if len(R) > 1 else set()
        if mn.startswith("v_dot2c") or mn.startswith("v_fmac") or mn.endswith("_dpp") or mn.startswith("v_writelane"):
            d["r"] = d["r"] | R[0]
        if mn.endswith("_dpp"):
            d["dpp"] = R[1]
        if mn.startswith("v_dot"):
            d["dl"] = True
        if mn.startswith("v_cndmask") and len(ops) == 3:
            d["r"] |= {("vcc", 0)}
        if any(mn.startswith(t) for t in TRANS):
            d["trans"] = True
    elif mn.startswith("buffer_load") or mn.startswith("global_load"):
        d["kind"] = "vmem"
        if "lds" in mods.split():
            d["r"] = set().union(*R) | {("m0", 0)}
        else:
            d["w"] = R[0]; d["r"] = set().union(*R[1:])
    elif mn.startswith("buffer_store") or mn.startswith("buffer_atomic") or mn.startswith("global_store"):
        d["kind"] = "vmem"; d["r"] = set().union(*R)
        if "x4" in mn or "x3" in mn: d["wide"] = R[0]
        if mn.startswith("buffer_atomic") and "sc0" in mods: d["w"] = R[0]
    elif mn.startswith("ds_read") or "_rtn" in mn or mn.startswith("ds_bpermute") or mn.startswith("ds_swizzle"):
        d["kind"] = "ds"; d["w"] = R[0]; d["r"] = set().union(*R[1:])
    elif mn.startswith("ds_"):
        d["kind"] = "ds"; d["r"] = set().union(*R)
    elif mn.startswith("s_"):
        d["kind"] = "salu"
        if mn.startswith("s_cmp") or mn.startswith("s_cbranch") or mn in ("s_waitcnt", "s_nop", "s_barrier", "s_branch", "s_endpgm", "s_sleep", "s_setprio"):
            d["r"] = set().union(*R) if R else set()
        else:
            d["w"] = R[0] if R else set(); d["r"] = set().union(*R[1:]) if len(R) > 1 else set()
            if "saveexec" in mn: d["w"] |= {("exec", 0)}
    return d

def check(seq, name="", idxs=None, out=None):
    keep = [k for k, s in enumerate(seq) if not s.endswith(":") and not s.startswith(";")]
    ins = [parse(seq[k]) for k in keep]
    probs = []
    for j, c in enumerate(ins):
        dist = 0
        for i in range(j - 1, max(-1, j - 24), -1):
            p = ins[i]
            need = 0
            vw = {x for x in p["w"] if x[0] in "va"}
            sw = {x for x in p["w"] if x[0] in ("s", "vcc")}
            if p["kind"] == "valu":
                if c.get("dpp") and (vw & (c["dpp"])): need = max(need, 2)
                if c["kind"] == "mfma" and (vw & c["r"]): need = max(need, 2)
                if c.get("perm") and (vw & c["r"]): need = max(need, 2)
                if c.get("rl") and (vw & c["r"]): need = max(need, 1)
                if p.get("trans") and c["kind"] == "valu" and not c.get("trans") and (vw & c["r"]): need = max(need, 1)
                if p.get("dl") and (vw & (c["r"] | c["w"])):
                    same = c["mn"] == p["mn"]
                    if same:
                        if c["mn"].startswith("v_dot2c"):
                            ab = regs_of(c["ops"][1]) | regs_of(c["ops"][2])
                        else:
                            ab = regs_of(c["ops"][1]) | regs_of(c["ops"][2])
                        if vw & ab: need = max(need, 3)
                    else:
                        need = max(need, 3)
                if sw and c["kind"] == "vmem" and (sw & c["r"]): need = max(need, 5)
                if sw and c["kind"] in ("valu", "mfma") and (sw & c["r"]): need = max(need, 4 if c.get("rl") else 2)
                if ("exec", 0) in p["w"]: need = max(need, 5)
            if p["kind"] == "mfma":
                if c["kind"] == "mfma":
                    if p["w"] & c["ra"]: need = max(need, 8)
                    if (p["w"] & c["rc"]) and p["w"] != c["rc"]: need = max(need, 6)
                    if (p["w"] & c["w"]) and p["w"] != c["rc"]: need = max(need, 8)
                elif c["kind"] in ("valu", "vmem", "ds"):
                    if p["w"] & (c["r"] | c["w"]): need = max(need, 8)
                    if c["kind"] == "valu" and (p["rc"] & c["w"]): need = max(need, 3)
            if p.get("wide") and (p["wide"] & c["w"]): need = max(need, 2)
            if p["kind"] == "salu" and ("m0", 0) in p["w"] and ("m0", 0) in c["r"] and c["kind"] != "salu": need = max(need, 1)
            if p["kind"] == "salu" and ("exec", 0) in p["w"] and c.get("dpp"): pass
            if need > dist:
                probs.append(f"[{name}] need {need} have {dist}: '{p['text']}' -> '{c['text']}'")
                if out is not None:
                    k = idxs[keep[j]]
                    out[k] = max(out.get(k, 0), need - dist)
            if p["mn"] == "s_nop":
                dist += int(p["ops"][0], 0) + 1
            else:
                dist += 1
    return probs

def check_gen(g):
    probs = []
    for role in g.roles:
        seq = [s for s, r in g.items if r is None or r == role]
        probs += check(seq, role)
    return sorted(set(probs))

def fix_gen(g):
    n = 0
    while True:
        out = {}
        for role in g.roles:
            idxs = [i for i, (s, r) in enumerate(g.items) if r is None or r == role]
            check([g.items[i][0] for i in idxs], role, idxs, out)
        if not out:
            return n
        k = min(out)
        g.items.insert(k, (f"s_nop {out[k]-1}", g.items[k][1]))
        n += 1
```

```python
import sys, struct
from asmlib import Gen, check_gen, fix_gen

KNAME = "gated_mix__sliding_block_cached__glu_gated_swiglu__decode_kernel"
def f2u(x): return struct.unpack("<I", struct.pack("<f", x))[0]

L_O, L_Q, L_H = 0, 2304, 2560
L_F, L_G, L_ML, L_F2 = 2816, 2832, 2848, 2912
L_P = 3072
LDS_BYTES = 3072 + 8192
ACC_OFF = 2 * 1024 * 1024
EP_OFF = ACC_OFF + 65536
STAMP_OFF = 4 * 1024 * 1024
WS_BYTES = 8 * 1024 * 1024

V_L16, V_WO, V_W2, V_KV, V_T0, V_T1, V_T2 = 1, 2, 3, 4, 5, 6, 7
Q = 8; MASK = 12; S = 16; A4 = 24; TT = 28; F = 30; ACC0 = 32; ACC1 = 36; AOP = 40
T = 48
STG = 56
ZERO = 56
W2R = 72
X = 104
V_G = 120
V_LH = 124; V_ST = 125; XU = 126
V_FAC = 52; V_MC = 53; V_XL = 54; V_EP = 55
SLOT = 128
def slot(n): return SLOT + 4 * n
def r4(b): return f"v[{b}:{b+3}]"
ISA = "s_cmp_ge_u32 s3, 4\ns_cbranch_scc1"
ISB = "s_cmp_lt_u32 s3, 4\ns_cbranch_scc1"

def gen(D=5, DA=None, DB=None, POLL=14, SYNC=24, W2POS=None, WOPOS=None, B2AT=12, ZF=16, stamps=False,
        kvpol="nt", wpol="nt", spol="", kill="", xs="", xl="sc1", PAT=None, PATV=None, prio=None, XT=None, XD=3, X0=8, EARLY=0, BAR=0, BO=None, BX=None, BU=0, BW=0, B0=4, SL=None):
    g = Gen()
    I = g.I
    if W2POS is None: W2POS = [8, 10, 12, 14, 16, 18, 20, 22]
    if WOPOS is None: WOPOS = [0, 2, 3, 5, 6, 8, 9, 11, 12, 14, 15, 17, 18, 20, 21, 23]
    names = []
    def stamp(name):
        if stamps:
            if name not in names: names.append(name)
            k = names.index(name)
            assert k < 15
            I(f"s_memrealtime s[96:97]\ns_waitcnt lgkmcnt(0)\nv_writelane_b32 v{V_ST}, s96, {k}")
    I("s_cmp_ge_u32 s2, 256\ns_cbranch_scc1 L_end")
    if stamps:
        I(f"v_mov_b32 v{V_ST}, 0")
        stamp("start")
    def kload(n):
        if n % 4 == 0 and n > 0: I("s_add_u32 s74, s74, s75")
        g.vm(f"buffer_load_dwordx4 {r4(slot(n))}, v{V_KV}, s[4:7], s74 offen offset:{(n%4)*1024} {kvpol}", f"k{n}")
    I(f"""
    s_load_dwordx2 s[4:5], s[0:1], 8
    s_load_dwordx2 s[28:29], s[0:1], 96
    v_lshrrev_b32 v{V_T0}, 6, v0
    v_mov_b32 v{ZERO}, 0
    v_readfirstlane_b32 s3, v{V_T0}
    s_load_dwordx2 s[24:25], s[0:1], 0
    v_lshlrev_b32 v{V_T1}, 2, v0
    s_and_b32 s85, s3, 3
    s_bfe_u32 s70, s2, 0x20005          ; unit = b & 3
    s_lshl_b32 s86, s70, 3
    s_add_u32 s86, s86, 32
    s_cmp_lt_u32 s70, 2
    s_cselect_b32 s86, 24, s86
    s_cmp_lt_u32 s3, 4
    s_cselect_b32 s86, s86, 72
    s_load_dwordx2 s[20:21], s[0:1], s86
    v_and_b32 v{V_T1}, 0x7c, v{V_T1}
    ds_write_b32 v{V_T1}, v{ZERO} offset:{L_F}
    v_and_b32 v{V_L16}, 63, v0
    v_lshlrev_b32 v{V_L16}, 4, v{V_L16}
    s_mov_b32 s6, 0x10000000
    s_mov_b32 s7, 0x20000
    s_lshl_b32 s86, s85, 13
    s_lshr_b32 s87, s3, 2
    s_lshl_b32 s87, s87, 12
    s_or_b32 s86, s86, s87
    s_lshl_b32 s87, s2, 20
    s_add_u32 s86, s86, s87
    s_add_u32 s86, s86, 0xc0000
    v_add_u32 v{V_KV}, s86, v{V_L16}
    s_mov_b32 s74, 0
    s_mov_b32 s75, 0x8000
    """)
    if EARLY:
        I("s_waitcnt lgkmcnt(0)")
        for n in range(EARLY): kload(n)
        stamp("k0")
        I("s_barrier")
    I(f"""
    s_lshr_b32 s44, s2, 5
    s_and_b32 s45, s2, 31
    s_mov_b32 s23, 0x20000
    s_movk_i32 s26, 8192
    s_mov_b32 s27, 0x20000
    s_mov_b32 s30, {WS_BYTES}
    s_mov_b32 s31, 0x20000
    s_and_b32 s87, s45, 7
    s_lshl_b32 s87, s87, 2
    s_lshr_b32 s88, s45, 3
    s_add_u32 s87, s87, s88
    s_mul_i32 s87, s87, 172
    s_lshr_b32 s78, s87, 5
    s_add_u32 s87, s87, 172
    s_lshr_b32 s79, s87, 5
    s_sub_u32 s89, s79, s78
    s_lshl_b32 s87, s45, 8
    s_lshl_b32 s88, s70, 7
    s_add_u32 s87, s87, s88          ; 256h + 128u
    s_lshl_b32 s88, s78, 4           ; 16*c0
    s_cmp_lt_u32 s70, 2
    s_cselect_b32 s76, s26, 2752
    s_cselect_b32 s87, s87, s88
    s_cselect_b32 s89, 8, s89
    s_lshl_b32 s22, s76, 9
    s_and_b32 s88, s44, 4
    s_add_u32 s88, s88, s85
    s_lshl_b32 s69, s88, 7
    s_lshl_b32 s88, s88, 6
    s_mul_i32 s88, s88, s76
    s_add_u32 s77, s87, s88
    s_lshl_b32 s99, s45, 10
    s_add_u32 s99, s99, {EP_OFF}
    s_lshl_b32 s88, s44, 7
    s_add_u32 s100, s99, s88
    s_lshl_b32 s87, s85, 8
    s_add_u32 s99, s99, s87
    v_bfe_u32 v{T+2}, v0, 4, 1
    v_lshlrev_b32 v{T+2}, 7, v{T+2}
    v_bfe_u32 v{V_T0}, v0, 3, 1
    v_bfe_u32 v{V_T1}, v0, 4, 2
    v_lshlrev_b32 v{V_T1}, 3, v{V_T1}
    v_lshl_add_u32 v{V_T0}, v{V_T0}, 5, v{V_T1}        ; 32 khalf + 8 g
    v_and_b32 v{V_T2}, 7, v0
    v_lshlrev_b32 v{T+1}, 4, v{V_T2}                   ; i8*16
    v_mad_u32_u24 v{T}, v{V_T0}, s76, v{T+1}
    v_cmp_gt_u32 vcc, s89, v{V_T2}
    v_bfrev_b32 v{V_T2}, 1
    v_lshl_add_u32 v{V_W2}, v{V_T0}, 10, v{T+1}
    v_cndmask_b32 v{T}, v{V_T2}, v{T}, vcc
    v_and_b32 v{V_T2}, 1, v0
    v_lshl_add_u32 v{V_T2}, v{V_T2}, 5, v{V_T1}        ; 32(m&1) + 8g
    v_lshlrev_b32 v{V_LH}, 1, v{V_T2}
    v_bfe_u32 v{T+3}, v0, 1, 3
    v_lshl_add_u32 v{T+3}, v{T+3}, 10, v{V_LH}
    """)
    if "s" in kill: I("s_mov_b32 s22, 0")
    if EARLY: I("s_cmp_ge_u32 s3, 4")
    else:
        I("s_waitcnt lgkmcnt(0)\ns_barrier")
        stamp("k0")
        I("s_cmp_ge_u32 s3, 4")

    def vload(n):
        if n == 0: I("s_mov_b32 s74, 0")
        if n % 4 == 0 and n > 0: I("s_add_u32 s74, s74, s75")
        g.vm(f"buffer_load_dwordx4 {r4(slot(n%8))}, v{V_KV}, s[8:11], s74 offen offset:{(n%4)*1024} {kvpol}", f"v{n}")
    def w2load(j):
        so = "0" if j < 4 else "s84"
        g.vm(f"buffer_load_dwordx4 {r4(W2R+4*j)}, v{V_W2}, s[16:19], {so} offen offset:{(j%4)*1024} {wpol}", f"w2_{j}")
    def stage(n):
        return STG + 4 * n if n < 4 else slot(24 + (n - 4) % 8)
    def woload(n):
        grp, j = n // 8, n % 8
        if j == 0: I(f"s_movk_i32 s83, {grp*4096}")
        elif j % 2 == 0: I("s_add_u32 s83, s83, s26")
        g.vm(f"buffer_load_dwordx4 {r4(stage(n))}, v{V_WO}, s[12:15], s83 offen offset:{(j%2)*2048} {wpol}", f"wo{n}")

    W1RAW = slot(8); W1FR = slot(16); W1ACC = slot(24); XOP = X + 8; Y = X
    g.begin('A', "s_cbranch_scc1")
    for j in range(8):
        g.vm(f"buffer_load_dwordx4 {r4(W1RAW+4*j)}, v{T}, s[20:23], s77 offen {wpol}", f"s1_{j}")
        if j < 7: I("s_add_u32 s77, s77, s76")
    g.vm(f"buffer_load_dwordx4 {r4(XOP)}, v{T+3}, s[24:27], s69 offen {spol}", "xop")
    g.vm(f"buffer_load_dword v{V_EP}, v{T+2}, s[28:31], s99 offen {spol}", "ep")
    I("s_load_dword s98, s[28:29], s100")
    g.end()
    D0 = DB if DB else D
    for n in range(EARLY, D0): kload(n)
    g.begin('B', ISB)
    I("""
    s_lshl_b32 s87, s44, 10
    s_cmp_eq_u32 s3, 4
    s_cselect_b32 s87, s87, s26
    s_cselect_b32 s22, 1024, 0
    """)
    g.vm(f"buffer_load_dwordx4 {r4(X)}, v{V_L16}, s[24:27], s87 offen {spol}", "gx")
    g.vm(f"buffer_load_dwordx4 {r4(X+4)}, v{V_L16}, s[20:23], 0 offen {spol}", "gw")
    g.end()
    if prio is not None:
        g.begin('B', ISB); I(f"s_setprio {prio}"); g.end()

    I(f"""
    s_load_dwordx2 s[8:9], s[0:1], 16
    s_load_dwordx2 s[12:13], s[0:1], 32
    s_load_dwordx2 s[16:17], s[0:1], 64
    s_load_dwordx2 s[32:33], s[0:1], 88
    s_load_dwordx2 s[36:37], s[0:1], 80
    s_mov_b32 s10, 0x10000000
    s_mov_b32 s11, 0x20000
    s_mov_b32 s14, 0x400000
    s_mov_b32 s15, 0x20000
    s_lshl_b32 s18, s79, 13
    s_mov_b32 s19, 0x20000
    s_movk_i32 s34, 256
    s_mov_b32 s35, 0x20000
    s_movk_i32 s38, 8192
    s_mov_b32 s39, 0x20000
    s_mov_b32 s46, 0x05040100
    s_mov_b32 s47, 0x07060302
    s_movk_i32 s84, 4096
    s_mov_b32 s93, {f2u(1.4426950408889634):#x}
    s_mov_b32 s94, {f2u(128 ** -0.5):#x}
    s_mov_b32 s95, 0xffff0000
    s_lshl_b32 s87, s3, 7                 ; 128 w
    s_lshl_b32 s89, s78, 13
    s_add_u32 s89, s89, s87
    v_add_u32 v{V_W2}, s89, v{V_W2}
    s_lshl_b32 s89, s45, 17
    s_add_u32 s89, s89, s87
    v_add_u32 v{V_WO}, s89, v{T+1}
    s_lshl_b32 s81, s45, 14
    s_lshl_b32 s89, s44, 11
    s_add_u32 s80, s81, s89
    s_lshl_b32 s89, s85, 9
    s_add_u32 s80, s80, s89               ; producer: h*16K + b*2048 + w*512
    s_lshl_b32 s89, s44, 8
    s_add_u32 s81, s81, s89               ; consumer: h*16K + b*256
    s_add_u32 s77, s81, 0x2000
    s_lshl_b32 s82, s44, 12
    s_add_u32 s82, s82, {ACC_OFF}
    s_lshl_b32 s101, s45, 3
    s_add_u32 s101, s101, s3
    v_bfe_u32 v{V_T0}, v0, 4, 2
    v_lshl_add_u32 v{V_WO}, v{V_T0}, 15, v{V_WO}
    v_and_b32 v{V_XL}, 0xf0, v{V_L16}
    v_lshl_add_u32 v{V_XL}, v{V_T0}, 11, v{V_XL}
    v_bfe_u32 v{V_T0}, v0, 3, 1
    v_lshl_add_u32 v{V_WO}, v{V_T0}, 10, v{V_WO}
    ; masks
    v_and_b32 v{V_T0}, 1, v0
    v_lshlrev_b32 v{V_T0}, 4, v{V_T0}
    v_mov_b32 v{V_T1}, 0xffff
    v_lshlrev_b32 v{V_T1}, v{V_T0}, v{V_T1}
    v_bfe_u32 v{V_T0}, v0, 1, 2
    """)
    if "o" in kill: I("s_mov_b32 s14, 0")
    if "x" in kill or "w" in kill: I(f"s_mov_b32 s80, {WS_BYTES}")
    if "x" in kill or "r" in kill: I(f"s_mov_b32 s81, {WS_BYTES}\ns_mov_b32 s77, {WS_BYTES}")

    if "2" in kill: I("s_mov_b32 s18, 0")
    fill = [f"v_mov_b32 v{ZERO+1}, 0\nv_mov_b32 v{ZERO+2}, 0", f"v_mov_b32 v{ZERO+3}, 0\nv_mov_b32 v{F}, 1.0",
            f"v_mov_b32 v{F+1}, 1.0\nv_mov_b32 v{XU}, 0", f"v_mov_b32 v{XU+1}, 0\ns_nop 0"]
    for r in range(4):
        I(f"v_cmp_eq_u32 vcc, {r}, v{V_T0}\n{fill[r]}\nv_cndmask_b32 v{MASK+r}, 0, v{V_T1}, vcc")
    if XT:
        tab = sum((v & 15) << (4 * i) for i, v in enumerate(XT))
        I(f"""
        s_getreg_b32 s71, hwreg(HW_REG_XCC_ID, 0, 3)
        s_lshl_b32 s71, s71, 2
        s_lshr_b32 s71, {tab:#x}, s71
        s_and_b32 s71, s71, 15
        """)
    if SL:
        tab = sum((v & 15) << (4 * i) for i, v in enumerate(BX))
        I(f"""
        s_getreg_b32 s71, hwreg(HW_REG_XCC_ID, 0, 3)
        s_lshl_b32 s71, s71, 2
        s_lshr_b32 s71, {tab:#x}, s71
        s_and_b32 s71, s71, 15
        s_lshr_b32 s87, s70, 1
        s_xor_b32 s87, s87, 1
        s_mul_i32 s87, s87, {BU}
        s_add_u32 s71, s71, s87
        s_sub_u32 s87, s78, s79
        s_add_u32 s87, s87, 6
        s_mul_i32 s87, s87, {BW}
        s_add_u32 s71, s71, s87
        """)
    if BO:
        tab = sum((v & 15) << (4 * i) for i, v in enumerate(BX))
        I(f"""
        s_getreg_b32 s71, hwreg(HW_REG_XCC_ID, 0, 3)
        s_lshl_b32 s71, s71, 2
        s_lshr_b32 s71, {tab:#x}, s71
        s_and_b32 s71, s71, 15
        s_lshl_b32 s71, s71, 1
        s_lshr_b32 s87, s70, 1
        s_mul_i32 s87, s87, {BU}
        s_add_u32 s71, s71, s87
        s_sub_u32 s87, s79, s78
        s_sub_u32 s87, s87, 5
        s_mul_i32 s87, s87, {BW}
        s_add_u32 s71, s71, s87
        """)
    I("s_waitcnt lgkmcnt(0)")
    stamp("b0")
    g.ifelse_begin('A', ISA)
    I("""
    s_getreg_b32 s92, hwreg(HW_REG_XCC_ID, 0, 3)
    s_mov_b32 s88, 0x07060500
    s_mov_b32 s89, 0x07060501
    s_mov_b32 s90, 0x07060502
    s_mov_b32 s91, 0x07060503
    s_lshl_b32 s92, s92, 24
    s_add_u32 s98, s98, 0x01010101
    s_and_b32 s73, s98, 0xf8ffffff
    s_or_b32 s73, s73, s92
    s_lshl_b32 s87, s3, 11
    """)
    I(f"""
    v_lshl_add_u32 v{T}, v{V_L16}, 1, s87
    s_lshl_b32 s87, s3, 9
    v_add_u32 v{T+1}, s87, v{V_L16}
    s_lshl_b32 s87, s3, 2
    v_mov_b32 v{T+2}, s87
    v_mov_b32 v{T+3}, 1
    """)
    for jj in range(4):
        g.wait(f"s1_{2*jj+1}")
        for q in range(4):
            for e in range(2):
                I(f"v_perm_b32 v{W1FR+4*(2*q+e)+jj}, v{W1RAW+4*(2*jj+1)+q}, v{W1RAW+4*(2*jj)+q}, s{46+e}")
    g.wait("ep")
    for c in range(8):
        I(f"v_mfma_f32_16x16x32_bf16 {r4(W1ACC+4*c)}, {r4(XOP)}, {r4(W1FR+4*c)}, 0")
    I(f"""
    v_add_u32 v{V_EP}, 0x01010101, v{V_EP}
    v_and_b32 v{V_EP}, 0xf8ffffff, v{V_EP}
    v_or_b32 v{V_EP}, s92, v{V_EP}
    """)
    for c in range(8):
        a = W1ACC + 4 * c
        I(f"v_add_f32_dpp v{Y+c}, v{a+1}, v{a} row_ror:8 row_mask:0xf bank_mask:0x3")
        I(f"v_add_f32_dpp v{Y+c}, v{a+2}, v{a+3} row_ror:8 row_mask:0xf bank_mask:0xc")
    PR = W1RAW
    I(f"""
    ds_write_b128 v{T}, {r4(Y)} offset:{L_P}
    ds_write_b128 v{T}, {r4(Y+4)} offset:{L_P+16}
    s_mov_b64 exec, 1
    ds_write_b32 v{T+2}, v{T+3} offset:{L_F2}
    s_mov_b32 exec_lo, -1
    """)
    g.label("L_quad")
    I(f"""
    ds_read_b128 {r4(Y)}, v{ZERO} offset:{L_F2}
    ds_read_b128 {r4(PR)}, v{T+1} offset:{L_P}
    ds_read_b128 {r4(PR+4)}, v{T+1} offset:{L_P+2048}
    ds_read_b128 {r4(PR+8)}, v{T+1} offset:{L_P+4096}
    ds_read_b128 {r4(PR+12)}, v{T+1} offset:{L_P+6144}
    s_waitcnt lgkmcnt(0)
    v_and_b32 v{Y}, v{Y}, v{Y+1}
    v_and_b32 v{Y+2}, v{Y+2}, v{Y+3}
    v_and_b32 v{Y}, v{Y}, v{Y+2}
    v_cmp_eq_u32 vcc, 0, v{Y}
    s_cbranch_vccnz L_quad
    v_pk_add_f32 v[{PR}:{PR+1}], v[{PR}:{PR+1}], v[{PR+4}:{PR+5}]
    v_pk_add_f32 v[{PR+2}:{PR+3}], v[{PR+2}:{PR+3}], v[{PR+6}:{PR+7}]
    v_pk_add_f32 v[{PR+8}:{PR+9}], v[{PR+8}:{PR+9}], v[{PR+12}:{PR+13}]
    v_pk_add_f32 v[{PR+10}:{PR+11}], v[{PR+10}:{PR+11}], v[{PR+14}:{PR+15}]
    v_pk_add_f32 v[{PR}:{PR+1}], v[{PR}:{PR+1}], v[{PR+8}:{PR+9}]
    v_pk_add_f32 v[{PR+2}:{PR+3}], v[{PR+2}:{PR+3}], v[{PR+10}:{PR+11}]
    """)
    for c in range(4):
        I(f"v_perm_b32 v{Y+c}, v{PR+c}, v{V_EP}, s{88+c}")
    g.vm(f"buffer_store_dwordx4 {r4(Y)}, v{V_L16}, s[28:31], s80 offen {xs}", "ex0")
    I("s_mov_b64 exec, -1")
    g.ifelse_else('B')
    I(f"""
    s_cmp_lg_u32 s101, 5
    s_cbranch_scc1 L_nozero
    buffer_store_dwordx4 {r4(ZERO)}, v{V_L16}, s[28:31], s82 offen sc1
    buffer_store_dwordx4 {r4(ZERO)}, v{V_L16}, s[28:31], s82 offen offset:1024 sc1
    buffer_store_dwordx4 {r4(ZERO)}, v{V_L16}, s[28:31], s82 offen offset:2048 sc1
    buffer_store_dwordx4 {r4(ZERO)}, v{V_L16}, s[28:31], s82 offen offset:3072 sc1
    """)
    g.label("L_nozero")
    g.end()
    stamp("s1done")

    def gate():
        I("s_cmp_lg_u32 s3, 4\ns_cbranch_scc1 L_nogate")
        g.role = 'B'
        assert g.is_done("gw")
        for q in range(4):
            I(f"""
            v_lshlrev_b32 v{X+8}, 16, v{X+q}
            v_and_b32 v{X+9}, s95, v{X+q}
            v_lshlrev_b32 v{X+10}, 16, v{X+4+q}
            v_and_b32 v{X+11}, s95, v{X+4+q}
            v_mul_f32 v{X+8}, v{X+8}, v{X+10}
            v_mul_f32 v{X+9}, v{X+9}, v{X+11}
            v_cvt_pk_bf16_f32 v{X+q}, v{X+8}, v{X+9}
            """)
        I(f"""
        v_mov_b32 v{X+8}, 0
        v_mov_b32 v{X+9}, 0x3f803f80
        v_dot2c_f32_bf16 v{X+8}, v{X}, v{X+9}
        v_dot2c_f32_bf16 v{X+8}, v{X+1}, v{X+9}
        v_dot2c_f32_bf16 v{X+8}, v{X+2}, v{X+9}
        v_dot2c_f32_bf16 v{X+8}, v{X+3}, v{X+9}
        s_nop 2
        v_add_f32_dpp v{X+8}, v{X+8}, v{X+8} quad_perm:[1,0,3,2] row_mask:0xf bank_mask:0xf
        s_nop 1
        v_add_f32_dpp v{X+8}, v{X+8}, v{X+8} quad_perm:[2,3,0,1] row_mask:0xf bank_mask:0xf
        """)
        allred(X + 8, X + 9, "v_add_f32")
        I(f"""
        v_cvt_pk_bf16_f32 v{X+8}, v{X+8}, v{X+8}
        v_and_b32 v{X+8}, s95, v{X+8}
        v_mul_f32 v{X+8}, s93, v{X+8}
        v_exp_f32 v{X+8}, -v{X+8}
        v_mov_b32 v{X+10}, 1
        v_add_f32 v{X+8}, 1.0, v{X+8}
        v_rcp_f32 v{X+8}, v{X+8}
        v_mov_b32 v{X+11}, 1
        v_cvt_pk_bf16_f32 v{X+8}, v{X+8}, v{X+8}
        v_and_b32 v{X+8}, s95, v{X+8}
        v_sub_f32 v{X+9}, 1.0, v{X+8}
        v_cvt_pk_bf16_f32 v{X+9}, v{X+9}, v{X+9}
        v_and_b32 v{X+9}, s95, v{X+9}
        s_mov_b64 exec, 1
        ds_write_b128 v{ZERO}, {r4(X+8)} offset:{L_G}
        s_mov_b64 exec, -1
        """)
        g.role = None
        g.label("L_nogate")

    kgroups_done = [0]
    def consume_group(k):
        s0 = 4 * k
        for i in range(4):
            I(f"v_dot2_f32_bf16 v{A4+i}, v{slot(s0+i)}, v{Q}, 0")
        for q in range(1, 4):
            for i in range(4):
                I(f"v_dot2c_f32_bf16 v{A4+i}, v{slot(s0+i)+q}, v{Q+q}")
        I(f"""
        v_add_f32_dpp v{TT}, v{A4}, v{A4} row_ror:8 row_mask:0xf bank_mask:0x3
        v_add_f32_dpp v{TT}, v{A4+1}, v{A4+1} row_ror:8 row_mask:0xf bank_mask:0xc
        v_add_f32_dpp v{TT+1}, v{A4+2}, v{A4+2} row_ror:8 row_mask:0xf bank_mask:0x3
        v_add_f32_dpp v{TT+1}, v{A4+3}, v{A4+3} row_ror:8 row_mask:0xf bank_mask:0xc
        v_add_f32_dpp v{S+k}, v{TT}, v{TT} row_half_mirror row_mask:0xf bank_mask:0x5
        s_nop 0
        v_add_f32_dpp v{S+k}, v{TT+1}, v{TT+1} row_half_mirror row_mask:0xf bank_mask:0xa
        s_nop 1
        v_add_f32_dpp v{S+k}, v{S+k}, v{S+k} quad_perm:[1,0,3,2] row_mask:0xf bank_mask:0xf
        s_nop 1
        v_add_f32_dpp v{S+k}, v{S+k}, v{S+k} quad_perm:[2,3,0,1] row_mask:0xf bank_mask:0xf
        """)
        if k % 2 == 1:
            a, b = S + k - 1, S + k
            I(f"""
            v_cvt_pk_bf16_f32 v{TT}, v{a}, v{b}
            v_lshlrev_b32 v{a}, 16, v{TT}
            v_and_b32 v{b}, s95, v{TT}
            v_mul_f32 v{a}, s94, v{a}
            v_mul_f32 v{b}, s94, v{b}
            v_cvt_pk_bf16_f32 v{TT}, v{a}, v{b}
            v_lshlrev_b32 v{a}, 16, v{TT}
            v_and_b32 v{b}, s95, v{TT}
            """)
        kgroups_done[0] = k + 1

    def allred(v, t, op):
        I(f"""
        s_nop 1
        {op}_dpp v{v}, v{v}, v{v} row_ror:4 row_mask:0xf bank_mask:0xf
        s_nop 1
        {op}_dpp v{v}, v{v}, v{v} row_ror:8 row_mask:0xf bank_mask:0xf
        v_mov_b32 v{t}, v{v}
        s_nop 1
        v_permlane16_swap_b32 v{v}, v{t}
        {op} v{v}, v{v}, v{t}
        v_mov_b32 v{t}, v{v}
        s_nop 1
        v_permlane32_swap_b32 v{v}, v{t}
        {op} v{v}, v{v}, v{t}
        """)

    def softmax1():
        m = TT
        I(f"""
        v_max3_f32 v{m}, v{S}, v{S+1}, v{S+2}
        v_max3_f32 v{m}, v{m}, v{S+3}, v{S+4}
        v_max3_f32 v{m}, v{m}, v{S+5}, v{S+6}
        v_max_f32 v{m}, v{m}, v{S+7}
        """)
        allred(m, A4, "v_max_f32")
        I(f"v_mul_f32 v{m}, s93, v{m}")
        for k in range(8):
            I(f"v_fma_f32 v{S+k}, v{S+k}, s93, -v{m}")
    def softmax2():
        m = TT
        for k in range(8):
            I(f"v_exp_f32 v{S+k}, v{S+k}")
        l = TT + 1
        I(f"v_add_f32 v{l}, v{S}, v{S+1}")
        for k in range(2, 8):
            I(f"v_add_f32 v{l}, v{l}, v{S+k}")
        for k in range(8):
            I(f"v_cvt_pk_bf16_f32 v{S+k}, v{S+k}, v{S+k}")
    def softmax3():
        m, l = TT, TT + 1
        allred(l, A4, "v_add_f32")
        I(f"""
        s_lshl_b32 s88, s3, 3
        v_mov_b32 v{A4}, s88
        v_mov_b32 v{V_MC}, v{m}
        s_mov_b64 exec, 1
        ds_write_b64 v{A4}, v[{TT}:{TT+1}] offset:{L_ML}
        s_mov_b64 exec, -1
        """)

    def ffn_mm(q):
        for e in range(2):
            for jj in range(4):
                I(f"v_perm_b32 v{X+4*e+jj}, v{W2R+4*(2*jj+1)+q}, v{W2R+4*(2*jj)+q}, s{46+e}")
        I("s_nop 1")
        for e in range(2):
            I(f"v_mfma_f32_16x16x32_bf16 {r4(X+8+4*e)}, {r4(T)}, {r4(X+4*e)}, 0")
    def ffn_fold(q):
        for e in range(2):
            c = 2 * q + e
            a = X + 8 + 4 * e
            I(f"v_add_f32_dpp v{F+c//4}, v{a+1}, v{a} row_ror:8 row_mask:{1 << (c%4):#x} bank_mask:0x3")
        if q == 3:
            I("s_nop 1")
            for u in range(2):
                I(f"v_mul_f32_dpp v{F+u}, v{F+u}, v{V_G+1} quad_perm:[0,1,2,3] row_mask:0xf bank_mask:0x3")

    def build_a(t):
        k, half = t // 2, t % 2
        for r in range(4):
            mir = (r >= 2) != (half == 1)
            d = AOP + 4 * (t % 2) + r
            if mir:
                I(f"v_and_b32_dpp v{d}, v{S+k}, v{MASK+r} row_half_mirror row_mask:0xf bank_mask:0xf")
            else:
                I(f"v_and_b32 v{d}, v{S+k}, v{MASK+r}")

    vdone = [0]
    def pv(n):
        t = n // 2
        acc = ACC0 if n % 2 == 0 else ACC1
        c = "0" if n < 2 else r4(acc)
        I(f"v_mfma_f32_16x16x32_bf16 {r4(acc)}, {r4(AOP+4*(t%2))}, {r4(slot(n%8))}, {c}")
        vdone[0] = n + 1
        if n % 2 == 1 and t + 2 < 16:
            build_a(t + 2)

    wopairs = [0]
    def wo_perm(p):
        grp, jj = p // 4, p % 4
        a, b = stage(2 * p), stage(2 * p + 1)
        for q in range(4):
            for e in range(2):
                I(f"v_perm_b32 v{slot(8)+32*grp+4*(2*q+e)+jj}, v{b+q}, v{a+q}, s{46+e}")
        wopairs[0] = p + 1

    def ml_issue():
        I(f"""
        s_lshl_b32 s99, s44, 5
        s_load_dword s98, s[32:33], s99
        v_and_b32 v{A4+3}, 7, v0
        v_lshlrev_b32 v{A4+3}, 3, v{A4+3}
        ds_read_b64 v[{A4}:{A4+1}], v{A4+3} offset:{L_ML}
        """)
    def ml_combine():
        I(f"""
        s_waitcnt lgkmcnt(0)
        s_cmp_eq_u32 s98, 1
        s_cbranch_scc1 L_zok
        s_mov_b32 s92, 200000
        v_mov_b32 v{TT}, 0
        s_mov_b64 exec, 1""")
        g.label("L_zpoll")
        I(f"""
        buffer_load_dword v{TT+1}, v{TT}, s[32:35], s99 offen sc1
        s_waitcnt vmcnt(0)
        v_cmp_eq_u32 vcc, 1, v{TT+1}
        s_cbranch_vccnz L_zdone
        s_sub_u32 s92, s92, 1
        s_cbranch_scc0 L_zpoll""")
        g.label("L_zdone")
        I("s_mov_b64 exec, -1")
        g.label("L_zok")
        I(f"""
        v_cmp_eq_u32 vcc, 0, v{A4+1}
        s_cbranch_vccz L_mlok
        ds_read_b64 v[{A4}:{A4+1}], v{A4+3} offset:{L_ML}
        s_waitcnt lgkmcnt(0)
        s_branch L_zok""")
        g.label("L_mlok")
        I(f"""
        v_max_f32_dpp v{A4+2}, v{A4}, v{A4} quad_perm:[1,0,3,2] row_mask:0xf bank_mask:0xf
        v_lshrrev_b32 v{V_T2}, 2, v{V_L16}
        s_mul_i32 s88, s3, 288
        v_max_f32_dpp v{A4+2}, v{A4+2}, v{A4+2} quad_perm:[2,3,0,1] row_mask:0xf bank_mask:0xf
        v_add_u32 v{V_T0}, s88, v{V_T2}
        v_bfe_u32 v{V_T1}, v0, 1, 3
        v_max_f32_dpp v{A4+2}, v{A4+2}, v{A4+2} row_half_mirror row_mask:0xf bank_mask:0xf
        v_sub_f32 v{A4}, v{A4}, v{A4+2}
        v_sub_f32 v{V_MC}, v{V_MC}, v{A4+2}
        v_exp_f32 v{A4}, v{A4}
        v_exp_f32 v{V_MC}, v{V_MC}
        v_mul_f32 v{A4}, v{A4}, v{A4+1}
        v_mul_f32 v{V_MC}, v{V_MC}, v{V_G}
        v_mul_u32_u24 v{V_T1}, 288, v{V_T1}
        v_add_f32_dpp v{A4}, v{A4}, v{A4} quad_perm:[1,0,3,2] row_mask:0xf bank_mask:0xf
        v_and_b32 v{A4+1}, 1, v0
        v_lshl_add_u32 v{V_T1}, v{A4+1}, 7, v{V_T1}
        v_add_f32_dpp v{A4}, v{A4}, v{A4} quad_perm:[2,3,0,1] row_mask:0xf bank_mask:0xf
        v_and_b32 v{A4+1}, 48, v0
        v_add_u32 v{V_T1}, v{A4+1}, v{V_T1}
        v_add_f32_dpp v{A4}, v{A4}, v{A4} row_half_mirror row_mask:0xf bank_mask:0xf
        v_rcp_f32 v{A4}, v{A4}
        v_and_b32 v{V_W2}, 0xf0, v{V_L16}
        v_mul_f32 v{V_FAC}, v{V_MC}, v{A4}
        v_bfe_u32 v{A4+1}, v0, 4, 2
        v_lshl_add_u32 v{V_W2}, v{A4+1}, 1, v{V_W2}
        s_lshl_b32 s88, s3, 9
        s_add_u32 s82, s82, s88
        s_lshl_b32 s72, s44, 10
        s_lshl_b32 s88, s3, 7
        s_add_u32 s72, s72, s88
        """)
        if "a" in kill: I(f"s_mov_b32 s82, {WS_BYTES}")

    def kvtag(i): return f"k{i}" if i < 32 else f"v{i-32}"
    nth = [0]
    def throttle(i, isw=False):
        if BO and not isw and B0 <= i < B0 + 2 * max(BX) + BU + BW:
            p = PAT if (i < 32 or PATV is None) else PATV
            d = p[i % len(p)]
            if i - BO >= 0: g.wait(kvtag(i - BO))
            saved = dict(g.done)
            nth[0] += 1
            I(f"s_cmp_gt_u32 s71, {i - B0}\ns_cbranch_scc1 L_th{nth[0]}")
            g.wait(kvtag(i - d))
            g.label(f"L_th{nth[0]}")
            g.done = saved
            return
        throttle0(i, isw)
        if SL and not isw and B0 <= i < B0 + max(BX) + BU + BW:
            saved = dict(g.done)
            nth[0] += 1
            I(f"s_cmp_le_u32 s71, {i - B0}\ns_cbranch_scc1 L_th{nth[0]}")
            g.wait(kvtag(i - SL))
            g.label(f"L_th{nth[0]}")
            g.done = saved
        if XT and i >= X0 and (i - X0) // 4 < max(XT):
            nth[0] += 1
            I(f"s_cmp_le_u32 s71, {(i - X0) // 4}\ns_cbranch_scc1 L_th{nth[0]}\ns_waitcnt vmcnt({XD-1})")
            g.label(f"L_th{nth[0]}")
    def throttle0(i, isw=False):
        if PAT is None or (PATV == "D" and i >= 32):
            g.waitn((DA if (DA and i < 32) else D) - 1); return
        if isw: return
        p = PAT if (i < 32 or PATV is None) else PATV
        d = p[i % len(p)]
        if i - d >= 0: g.wait(kvtag(i - d))
    w2n = 0
    synced = False
    gate_done = False
    PX = slot(30)
    def sync_reads():
        I(f"""
        ds_read_b128 {r4(X)}, v{ZERO} offset:{L_F}
        ds_read_b128 {r4(V_G)}, v{ZERO} offset:{L_G}
        ds_read_b128 {r4(Q)}, v{V_T0} offset:{L_Q}
        ds_read_b128 {r4(T)}, v{V_LH} offset:{L_H}
        """)
    for n in range(D0, 32):
        if n == ZF:
            I(f"""
            s_cmp_lg_u32 s101, 5
            s_cbranch_scc1 L_noflag
            v_mov_b32 v{X}, 1
            s_lshl_b32 s88, s44, 5
            s_mov_b64 exec, 1
            buffer_store_dword v{X}, v{ZERO}, s[32:35], s88 offen sc1
            s_mov_b64 exec, -1
            """)
            g.label("L_noflag")
        if n == POLL:
            g.begin('A', ISA)
            g.vm(f"buffer_load_dwordx4 {r4(PX)}, v{V_XL}, s[28:31], s81 offen {xl}", "px0")
            g.vm(f"buffer_load_dwordx4 {r4(PX+4)}, v{V_XL}, s[28:31], s77 offen {xl}", "px1")
            g.end()
        if n == POLL + D:
            g.begin('A', ISA)
            I(f"""
            v_lshrrev_b32 v{X}, 1, v{V_L16}
            s_mov_b32 s92, {0 if any(c in kill for c in "xwrh") else 200000}
            s_mov_b32 s88, 0x0c0c0400
            s_mov_b32 s89, 0x04000c0c
            s_mov_b32 s90, -1
            """)
            g.wait("px1")
            stamp("x1")
            g.label("L_poll")
            I(f"""
            v_perm_b32 v{X+2}, v{PX+1}, v{PX}, s88
            v_perm_b32 v{X+3}, v{PX+3}, v{PX+2}, s89
            v_perm_b32 v{X+4}, v{PX+5}, v{PX+4}, s88
            v_perm_b32 v{X+5}, v{PX+7}, v{PX+6}, s89
            v_or_b32 v{X+2}, v{X+2}, v{X+3}
            v_or_b32 v{X+4}, v{X+4}, v{X+5}
            v_xor_b32 v{X+2}, s73, v{X+2}
            v_xor_b32 v{X+4}, s73, v{X+4}
            v_or_b32 v{X+2}, v{X+2}, v{X+4}
            v_and_b32 v{X+2}, s90, v{X+2}
            v_cmp_ne_u32 vcc, 0, v{X+2}
            s_cbranch_vccz L_polled
            s_sub_u32 s92, s92, 1
            s_cbranch_scc1 L_polled
            s_cmp_gt_u32 s92, {200000 - 5}
            s_cbranch_scc1 L_reload
            s_cmp_eq_u32 s90, -1
            s_cbranch_scc0 L_flushed
            s_mov_b32 s90, 0xf8ffffff
            s_waitcnt vmcnt(0)
            buffer_wbl2 sc1
            s_waitcnt vmcnt(0)""")
            g.label("L_flushed")
            I("buffer_inv sc1")
            g.label("L_reload")
            I(f"""
            buffer_load_dwordx4 {r4(PX)}, v{V_XL}, s[28:31], s81 offen sc1
            buffer_load_dwordx4 {r4(PX+4)}, v{V_XL}, s[28:31], s77 offen sc1
            s_waitcnt vmcnt(0)
            s_branch L_poll""")
            g.label("L_polled")
            stamp("x2")
            G4 = X + 4; U4 = X + 8; E4 = X + 12
            I(f"""
            v_pk_add_f32 v[{PX}:{PX+1}], v[{PX}:{PX+1}], v[{PX+4}:{PX+5}]
            v_pk_add_f32 v[{PX+2}:{PX+3}], v[{PX+2}:{PX+3}], v[{PX+6}:{PX+7}]
            s_lshl_b32 s88, s3, 2
            v_cvt_pk_bf16_f32 v{PX}, v{PX}, v{PX+1}
            v_cvt_pk_bf16_f32 v{PX+1}, v{PX+2}, v{PX+3}
            v_mov_b32 v{PX+2}, v{PX}
            v_mov_b32 v{PX+3}, v{PX+1}
            v_mov_b32 v{PX+4}, v{PX}
            v_mov_b32 v{PX+5}, v{PX+1}
            v_lshlrev_b32 v{G4}, 16, v{PX}
            v_and_b32 v{G4+1}, s95, v{PX}
            v_permlane16_swap_b32 v{PX+2}, v{PX+4}
            v_permlane16_swap_b32 v{PX+3}, v{PX+5}
            v_lshlrev_b32 v{G4+2}, 16, v{PX+1}
            v_and_b32 v{G4+3}, s95, v{PX+1}
            v_lshlrev_b32 v{U4}, 16, v{PX+4}
            v_and_b32 v{U4+1}, s95, v{PX+4}
            v_lshlrev_b32 v{U4+2}, 16, v{PX+5}
            v_and_b32 v{U4+3}, s95, v{PX+5}
            """)
            for i in range(4): I(f"v_mul_f32 v{E4+i}, s93, v{G4+i}")
            for i in range(4): I(f"v_exp_f32 v{E4+i}, -v{E4+i}")
            for i in range(4): I(f"v_add_f32 v{E4+i}, 1.0, v{E4+i}")
            for i in range(4): I(f"v_rcp_f32 v{E4+i}, v{E4+i}")
            for i in range(4): I(f"v_mul_f32 v{E4+i}, v{E4+i}, v{G4+i}")
            I(f"""
            v_cvt_pk_bf16_f32 v{G4}, v{E4}, v{E4+1}
            v_cvt_pk_bf16_f32 v{G4+1}, v{E4+2}, v{E4+3}
            v_lshlrev_b32 v{E4}, 16, v{G4}
            v_and_b32 v{E4+1}, s95, v{G4}
            v_lshlrev_b32 v{E4+2}, 16, v{G4+1}
            v_and_b32 v{E4+3}, s95, v{G4+1}
            """)
            for i in range(4): I(f"v_mul_f32 v{E4+i}, v{E4+i}, v{U4+i}")
            I(f"""
            v_mov_b32 v{X+1}, s88
            v_mov_b32 v{X+2}, 1
            s_mov_b32 exec_lo, 0
            v_cvt_pk_bf16_f32 v{PX}, v{E4}, v{E4+1}
            v_cvt_pk_bf16_f32 v{PX+1}, v{E4+2}, v{E4+3}
            s_mov_b32 exec_lo, -1
            ds_write_b64 v{X}, v[{PX}:{PX+1}] offset:{L_Q}
            s_mov_b64 exec, 1
            ds_write_b32 v{X+1}, v{X+2} offset:{L_F}
            s_mov_b64 exec, -1
            """)
            g.end()
        if n == SYNC:
            stamp("sync")
            if BAR & 1: I("s_barrier")
            I(f"v_and_b32 v{V_T0}, 0xf0, v{V_L16}")
            sync_reads()
        throttle(n)
        kload(n)
        if n == SYNC:
            g.label("L_sync")
            I(f"""
            s_waitcnt lgkmcnt(0)
            v_and_b32 v{X}, v{X}, v{X+1}
            v_and_b32 v{X+2}, v{X+2}, v{X+3}
            v_and_b32 v{X}, v{X}, v{V_G+2}
            v_and_b32 v{X}, v{X}, v{X+2}
            v_cmp_eq_u32 vcc, 0, v{X}
            s_cbranch_vccz L_synced
            """)
            sync_reads()
            I("s_branch L_sync")
            g.label("L_synced")
            stamp("synced")
            I(f"""
            s_cmp_lg_u32 s3, 0
            s_cbranch_scc1 L_nobump
            v_mov_b32 v{X}, s98
            s_mov_b64 exec, 1
            buffer_store_dword v{X}, v{ZERO}, s[28:31], s100 offen
            s_mov_b64 exec, -1
            """)
            g.label("L_nobump")
            synced = True
        if not gate_done and g.done['B'] > g._idx("gw", 'B'):
            gate(); gate_done = True
        if synced:
            k = kgroups_done[0]
            if k < 8 and 4 * k + 3 <= n and g.is_done(f"k{4*k+3}"):
                consume_group(k)
        if w2n < 8 and n == W2POS[w2n]:
            throttle(n, True)
            w2load(w2n); w2n += 1
    assert w2n == 8 and gate_done
    won = 0
    sm = 0
    ffn_q = 0
    def after_step(n):
        nonlocal sm, ffn_q
        k = kgroups_done[0]
        if k < 8:
            if g.is_done(f"k{4*k+3}"):
                consume_group(k)
            return
        if sm == 0:
            softmax1(); sm = 1; return
        if sm == 1:
            softmax2(); build_a(0); build_a(1); sm = 2; stamp("smax"); I("s_nop 0")
        elif sm == 2:
            softmax3(); sm = 3
        while vdone[0] <= n and vdone[0] < 32 and g.is_done(f"v{vdone[0]}"):
            pv(vdone[0])
        p = wopairs[0]
        if p < 8 and 2 * p + 1 < won and g.is_done(f"wo{2*p+1}"):
            wo_perm(p)
        elif sm == 3 and ffn_q < 8 and g.is_done("w2_7"):
            if ffn_q % 2 == 0: ffn_mm(ffn_q // 2)
            else:
                ffn_fold(ffn_q // 2)
            ffn_q += 1
    for n in range(32):
        if n == B2AT - 2:
            assert sm == 3
            if BAR & 2: I("s_barrier")
            ml_issue()
        if n == B2AT:
            ml_combine()
        throttle(32 + n)
        if n < 8:
            assert kgroups_done[0] > n // 4
        else:
            assert vdone[0] > n - 8, (n, vdone[0])
        vload(n)
        after_step(n)
        if won < 16 and n == WOPOS[won]:
            throttle(32 + n, True)
            assert won < 4 or kgroups_done[0] >= (7 if won < 8 else 8), (won, kgroups_done[0])
            assert won < 12 or wopairs[0] > (won - 8) // 2, (won, wopairs[0])
            woload(won); won += 1
            after_step(n)
    assert won == 16 and ffn_q == 8
    stamp("issued")
    while vdone[0] < 32:
        g.wait(f"v{vdone[0]}")
        after_step(31)
    assert wopairs[0] == 8
    stamp("lastv")
    I(f"""
    s_nop 7
    v_permlane32_swap_b32 v{ACC1}, v{ACC0+1}
    v_permlane32_swap_b32 v{ACC1+2}, v{ACC0+3}
    s_nop 0
    v_add_f32_dpp v{T}, v{ACC0}, v{ACC0+1} quad_perm:[0,1,2,3] row_mask:0x3 bank_mask:0xf
    v_add_f32_dpp v{T+1}, v{ACC0+2}, v{ACC0+3} quad_perm:[0,1,2,3] row_mask:0x3 bank_mask:0xf
    v_add_f32_dpp v{T}, v{ACC1+1}, v{ACC1} quad_perm:[0,1,2,3] row_mask:0xc bank_mask:0xf
    v_add_f32_dpp v{T+1}, v{ACC1+3}, v{ACC1+2} quad_perm:[0,1,2,3] row_mask:0xc bank_mask:0xf
    v_mul_f32 v{T}, v{T}, v{V_FAC}
    v_mul_f32 v{T+1}, v{T+1}, v{V_FAC}
    v_cvt_pk_bf16_f32 v{T}, v{T}, v{T+1}
    ds_write_b32 v{V_T0}, v{T} offset:{L_O}
    s_waitcnt lgkmcnt(0)
    s_barrier
    """)
    stamp("b3")
    I(f"ds_read_b128 {r4(AOP)}, v{V_T1} offset:{L_O}")
    I(f"ds_read_b128 {r4(AOP+4)}, v{V_T1} offset:{L_O+64}")
    TACC = slot(24)
    E = STG
    I("s_waitcnt lgkmcnt(0)")
    def estep(c):
        a = TACC + 4 * c
        I(f"v_add_f32_dpp v{E+c}, v{a}, v{a+2} quad_perm:[0,1,2,3] row_mask:0xf bank_mask:0x3")
        I(f"v_add_f32_dpp v{E+c}, v{a+1}, v{a+3} quad_perm:[0,1,2,3] row_mask:0xf bank_mask:0xc")
    def s32(c):
        I(f"v_permlane32_swap_b32 v{E+c}, v{E+c+2}\nv_add_f32 v{E+c}, v{E+c}, v{E+c+2}")
    def s16(u):
        c = 4 * u
        I(f"v_permlane16_swap_b32 v{E+c}, v{E+c+1}\nv_add_f32 v{E+c}, v{E+c}, v{E+c+1}")
    def fin(u):
        c = 4 * u
        I(f"v_add_f32_dpp v{XU+u}, v{E+c}, v{E+c} row_ror:8 row_mask:0xf bank_mask:0x3")
    order = [0, 2, 1, 3, 4, 6, 5, 7]
    for idx, c in enumerate(order):
        for grp in range(2):
            cc = "0" if grp == 0 else r4(TACC + 4 * c)
            I(f"v_mfma_f32_16x16x32_bf16 {r4(TACC+4*c)}, {r4(AOP+4*grp)}, {r4(slot(8)+32*grp+4*c)}, {cc}")
        if idx >= 4: estep(order[idx - 4])
    s32(0); estep(4); s32(1); estep(6); s16(0); estep(5); s32(4); estep(7); fin(0)
    I("s_nop 0"); s32(5); I("s_nop 1"); s16(1); I("s_nop 1"); fin(1)
    stamp("preat")
    I(f"""
    s_mov_b32 exec_lo, 0x01ff01ff
    s_mov_b32 exec_hi, 0x01ff01ff
    v_add_f32 v{T}, v{XU}, v{F}
    v_add_f32 v{T+1}, v{XU+1}, v{F+1}
    """)
    g.vm(f"buffer_atomic_add_f32 v{T}, v{V_T2}, s[28:31], s82 offen sc0", "at0")
    g.vm(f"buffer_atomic_add_f32 v{T+1}, v{V_T2}, s[28:31], s82 offen offset:256 sc0", "at1")
    I(f"""
    v_add_f32 v{XU}, v{XU}, v{F}
    v_add_f32 v{XU+1}, v{XU+1}, v{F+1}
    s_mov_b32 s88, {f2u(31.0):#x}
    s_mov_b32 s90, 0x00ff00ff
    s_mov_b32 s91, 0x00ff00ff
    """)
    g.wait("at1")
    I(f"""
    v_mov_b32_dpp v{T+2}, v{T} row_newbcast:8 row_mask:0xf bank_mask:0xf
    v_mov_b32_dpp v{T+3}, v{T+1} row_newbcast:8 row_mask:0xf bank_mask:0xf
    v_add_f32 v{T}, v{T}, v{XU}
    v_add_f32 v{T+1}, v{T+1}, v{XU+1}
    v_cmp_eq_f32 vcc, s88, v{T+2}
    v_cmp_eq_f32 s[86:87], s88, v{T+3}
    v_cvt_pk_bf16_f32 v{T}, v{T}, v{T+1}
    s_and_b64 exec, vcc, s[90:91]
    s_cbranch_execz L_nost0
    buffer_store_short v{T}, v{V_W2}, s[36:39], s72 offen
    """)
    g.label("L_nost0")
    I(f"""
    s_and_b64 exec, s[86:87], s[90:91]
    s_cbranch_execz L_nost1
    buffer_store_short_d16_hi v{T}, v{V_W2}, s[36:39], s72 offen offset:8
    """)
    g.label("L_nost1")
    if stamps:
        I("s_mov_b64 exec, -1")
        stamp("end")
        I(f"""
        s_getreg_b32 s96, hwreg(HW_REG_XCC_ID)
        s_nop 0
        v_writelane_b32 v{V_ST}, s96, 15
        s_lshl_b32 s88, s2, 9
        s_lshl_b32 s89, s3, 6
        s_add_u32 s88, s88, s89
        s_add_u32 s88, s88, {STAMP_OFF}
        s_mov_b64 exec, 0xffff
        buffer_store_dword v{V_ST}, v{V_T2}, s[28:31], s88 offen
        """)
    fix_gen(g)
    probs = check_gen(g)
    for p in probs: print("HAZARD", p, file=sys.stderr)
    body = g.text()
    head = f"""; gated mix of sliding-window decode attention and SwiGLU FFN, one workgroup per (batch, head)
; @launch grid=(256,1,1) block=(512,1,1) lds={LDS_BYTES}
.amdgcn_target "amdgcn-amd-amdhsa--gfx950"
.text
.globl {KNAME}
.p2align 8
.type {KNAME},@function
{KNAME}:
"""
    foot = f"""L_end:
    s_endpgm
.section .rodata,"a"
.p2align 6
.amdhsa_kernel {KNAME}
  .amdhsa_next_free_vgpr 256
  .amdhsa_next_free_sgpr 102
  .amdhsa_accum_offset 256
  .amdhsa_group_segment_fixed_size 0
  .amdhsa_kernarg_size 104
  .amdhsa_user_sgpr_count 2
  .amdhsa_user_sgpr_kernarg_segment_ptr 1
  .amdhsa_system_sgpr_workgroup_id_x 1
  .amdhsa_float_denorm_mode_32 3
.end_amdhsa_kernel
"""
    return head + body + foot, probs

if __name__ == "__main__":
    out = sys.argv[1]
    kw = {}
    for a in sys.argv[2:]:
        k, v = a.split("=")
        kw[k] = eval(v)
    txt, probs = gen(**kw)
    open(out, "w").write(txt)
```

```python
import sys, struct
from asmlib import Gen, check_gen, fix_gen

KNAME = "gated_mix__sliding_block_cached__glu_gated_swiglu__decode_kernel"
def f2u(x): return struct.unpack("<I", struct.pack("<f", x))[0]

L_O, L_Q, L_H = 0, 2304, 2560
L_F, L_G, L_ML, L_F2 = 2816, 2832, 2848, 2912
L_P = 3072
LDS_BYTES = 3072 + 8192
ACC_OFF = 2 * 1024 * 1024
EP_OFF = ACC_OFF + 65536
STAMP_OFF = 4 * 1024 * 1024
WS_BYTES = 8 * 1024 * 1024

V_L16, V_WO, V_W2, V_KV, V_T0, V_T1, V_T2 = 1, 2, 3, 4, 5, 6, 7
Q = 8; MASK = 12; S = 16; A4 = 24; TT = 28; F = 30; ACC0 = 32; ACC1 = 36; AOP = 40
T = 48
STG = 56
ZERO = 116
W2R = 72
X = 104
V_G = 120
V_LH = 124; V_ST = 125; XU = 126
V_S1 = 52; V_FAC = 52; V_MC = 53; V_XL = 54; V_EP = 55
SLOT = 128
def slot(n): return SLOT + 4 * n
def r4(b): return f"v[{b}:{b+3}]"
ISA = "s_cmp_ge_u32 s3, 4\ns_cbranch_scc1"
ISB = "s_cmp_lt_u32 s3, 4\ns_cbranch_scc1"

def gen(D=5, DA=None, DB=None, POLL=14, SYNC=24, W2POS=None, WOPOS=None, B2AT=12, ZF=16, stamps=False,
        kvpol="nt", wpol="nt", spol="", kill="", xs="", xl="sc1", PAT=None, PATV=None, prio=None, XT=None, XD=3, X0=8, EARLY=0, BAR=0, BO=None, BX=None, BU=0, BW=0, B0=4, SL=None, S1POS=None, S1C=None, MS1=1, MW2=1, MWO=1, ROT=0, P655=1, WOK=(), FAST=4, PF=0, FB=0, PT=0, PTPOL=''):
    g = Gen()
    I = g.I
    NW2 = 6 if MW2 else 8
    if W2POS is None: W2POS = [7, 10, 13, 16, 19, 22] if MW2 else [8, 10, 12, 14, 16, 18, 20, 22]
    if WOPOS is None: WOPOS = [0, 2, 3, 5, 6, 8, 9, 11, 12, 14, 15, 17, 18, 20, 21, 23]
    names = []
    def stamp(name):
        if stamps:
            if name not in names: names.append(name)
            k = names.index(name)
            assert k < 14
            I(f"s_memrealtime s[96:97]\ns_waitcnt lgkmcnt(0)\nv_writelane_b32 v{V_ST}, s96, {k}")
    def kload(n):
        if n % 4 == 0 and n > 0: I("s_add_u32 s74, s74, s75")
        g.vm(f"buffer_load_dwordx4 {r4(slot(n))}, v{V_KV}, s[4:7], s74 offen offset:{(n%4)*1024} {kvpol}", f"k{n}")
    assert 0 <= FAST <= 4
    EARLY = FAST
    if stamps: I("s_memrealtime s[60:61]")
    pt = ""
    if PT:
        pt = f"""s_getpc_b64 s[52:53]
L_pc:
    v_mul_u32_u24 v{V_T2}, {PT*128}, v{V_T0}
    v_lshl_add_u32 v{V_T2}, v{V_L16}, 3, v{V_T2}
    v_min_u32 v{V_T2}, L_end-L_pc, v{V_T2}
    s_mov_b64 exec, {(1 << PT) - 1}
    global_load_dword v{S}, v{V_T2}, s[52:53] {PTPOL}
    s_mov_b64 exec, -1"""
    I(f"""
    s_load_dwordx2 s[4:5], s[0:1], 8
    s_load_dwordx2 s[28:29], s[0:1], 96
    s_lshr_b32 s3, s2, 8
    s_cbranch_scc1 L_end
    v_and_b32 v{V_L16}, 63, v0
    v_lshrrev_b32 v{V_T0}, 6, v0
    v_lshlrev_b32 v{V_L16}, 4, v{V_L16}
    {pt}
    s_lshl_b32 s74, s2, 20
    v_lshl_add_u32 v{V_KV}, v{V_T0}, 12, v{V_L16}
    s_add_u32 s74, s74, 0xc0000
    s_brev_b32 s6, 8
    s_mov_b32 s7, 0x20000
    """)
    if FB:
        g.begin('B', f"v_cmp_gt_u32 vcc, 4, v{V_T0}\ns_cbranch_vccnz")
        I("s_waitcnt lgkmcnt(0)")
        for n in range(FAST): kload(n)
        g.end()
    elif FAST:
        I("s_waitcnt lgkmcnt(0)")
        for n in range(FAST): kload(n)
    if stamps:
        names += ["start", "k0", "k1"]
        I("s_memrealtime s[58:59]")
    I(f"""
    v_readfirstlane_b32 s3, v{V_T0}
    s_load_dwordx2 s[24:25], s[0:1], 0
    v_mov_b32 v{ZERO}, 0
    v_lshlrev_b32 v{V_T1}, 2, v0
    s_bfe_u32 s70, s2, 0x20005          ; unit = b & 3
    s_lshl_b32 s86, s70, 3
    s_add_u32 s86, s86, 32
    s_cmp_lt_u32 s70, 2
    s_cselect_b32 s86, 24, s86
    s_cmp_lt_u32 s3, 4
    s_cselect_b32 s86, s86, 72
    s_load_dwordx2 s[20:21], s[0:1], s86
    v_and_b32 v{V_T1}, 0x7c, v{V_T1}
    ds_write_b32 v{V_T1}, v{ZERO} offset:{L_F}
    s_and_b32 s85, s3, 3
    s_mov_b32 s57, s74
    s_mov_b32 s75, 0x8000
    """)
    if PF:
        I(f"""
        s_cmp_lg_u32 s3, 7
        s_cbranch_scc1 L_nopf
        s_getpc_b64 s[86:87]""")
        g.label("L_pc")
        I(f"""
        s_lshr_b32 s88, s2, 3
        s_mul_i32 s88, s88, {PF*128}
        v_lshl_add_u32 v{V_T2}, v{V_L16}, 3, s88
        v_min_u32 v{V_T2}, L_end-L_pc, v{V_T2}
        s_mov_b64 exec, {(1 << PF) - 1}
        global_load_dword v{S}, v{V_T2}, s[86:87]
        s_mov_b64 exec, -1
        """)
        g.label("L_nopf")
    if P655:
        part = f"""
    s_mul_i32 s87, s87, {16*43691}
    s_add_u32 s87, s87, {2*43691}
    s_lshr_b32 s78, s87, 17
    s_add_u32 s87, s87, {16*43691}
    s_lshr_b32 s79, s87, 17
    s_cmp_eq_u32 s79, 171
    s_addc_u32 s79, s79, 0"""
    else:
        part = """    s_mul_i32 s87, s87, 172
    s_lshr_b32 s78, s87, 5
    s_add_u32 s87, s87, 172
    s_lshr_b32 s79, s87, 5"""
    I(f"""
    s_lshr_b32 s44, s2, 5
    s_and_b32 s45, s2, 31
    s_mov_b32 s23, 0x20000
    s_movk_i32 s26, 8192
    s_mov_b32 s27, 0x20000
    s_mov_b32 s30, {WS_BYTES}
    s_mov_b32 s31, 0x20000
    s_and_b32 s87, s45, 7
    s_lshl_b32 s87, s87, 2
    s_lshr_b32 s88, s45, 3
    s_add_u32 s87, s87, s88
    {part}
    s_sub_u32 s89, s79, s78
    s_lshl_b32 s87, s45, 8
    s_lshl_b32 s88, s70, 7
    s_add_u32 s87, s87, s88          ; 256h + 128u
    s_lshl_b32 s88, s78, 4           ; 16*c0
    s_cmp_lt_u32 s70, 2
    s_cselect_b32 s76, s26, 2752
    s_cselect_b32 s87, s87, s88
    s_cselect_b32 s89, 8, s89
    s_lshl_b32 s22, s76, 9
    s_and_b32 s88, s44, 4
    s_add_u32 s88, s88, s85
    s_lshl_b32 s69, s88, 7
    s_lshl_b32 s88, s88, 6
    s_mul_i32 s88, s88, s76
    s_add_u32 s68, s87, s88
    s_lshl_b32 s99, s45, 10
    s_add_u32 s99, s99, {EP_OFF}
    s_lshl_b32 s88, s44, 7
    s_add_u32 s100, s99, s88
    s_lshl_b32 s87, s85, 8
    s_add_u32 s99, s99, s87
    v_bfe_u32 v{T+2}, v0, 4, 1
    v_lshlrev_b32 v{T+2}, 7, v{T+2}
    v_bfe_u32 v{V_T0}, v0, 3, 1
    v_bfe_u32 v{V_T1}, v0, 4, 2
    v_lshlrev_b32 v{V_T1}, 3, v{V_T1}
    v_lshl_add_u32 v{V_T0}, v{V_T0}, 5, v{V_T1}        ; 32 khalf + 8 g
    v_bfe_u32 v{T}, v0, 3, 3
    v_lshlrev_b32 v{A4}, 1, v{T}                       ; 2*(lane>>3)
    v_and_b32 v{V_T2}, 7, v0
    v_lshlrev_b32 v{T+1}, 4, v{V_T2}                   ; i8*16
    v_mad_u32_u24 v{V_S1}, v{A4 if MS1 else V_T0}, s76, v{T+1}
    v_cmp_gt_u32 vcc, s89, v{V_T2}
    v_bfrev_b32 v{V_T2}, 1
    v_lshl_add_u32 v{V_W2}, v{A4 if MW2 else V_T0}, 10, v{T+1}
    v_cndmask_b32 v{V_S1}, v{V_T2}, v{V_S1}, vcc
    v_and_b32 v{V_T2}, 1, v0
    v_lshl_add_u32 v{A4+1}, v{V_T2}, 2, v{V_T1}        ; (2g + kh)*4
    v_lshl_add_u32 v{V_T2}, v{V_T2}, 5, v{V_T1}        ; 32(m&1) + 8g
    v_lshlrev_b32 v{V_LH}, 1, v{V_T2}
    s_mul_i32 s67, s76, 15
    """)
    if MS1:
        I(f"v_lshl_add_u32 v{T+3}, v{T}, 10, v{T+1}")
    else:
        I(f"v_bfe_u32 v{T+3}, v0, 1, 3\nv_lshl_add_u32 v{T+3}, v{T+3}, 10, v{V_LH}")
    if MW2:
        I(f"v_add_u32 v{V_LH}, {L_H}, v{A4+1}")
    if "s" in kill: I("s_mov_b32 s22, 0")
    I("s_cmp_ge_u32 s3, 4\ns_waitcnt lgkmcnt(0)\ns_barrier")
    if stamps: I("s_memrealtime s[54:55]\ns_memtime s[64:65]")

    def vload(n):
        if n == 0: I("s_mov_b32 s74, s57")
        if n % 4 == 0 and n > 0: I("s_add_u32 s74, s74, s75")
        g.vm(f"buffer_load_dwordx4 {r4(slot(n%8))}, v{V_KV}, s[8:11], s74 offen offset:{(n%4)*1024} {kvpol}", f"v{n}")
    def w2load(j):
        if MW2:
            so = ["0", "s84", "s75"][j // 2]; off = (j % 2) * 1024
        else:
            so = "0" if j < 4 else "s84"; off = (j % 4) * 1024
        g.vm(f"buffer_load_dwordx4 {r4(W2R+4*j)}, v{V_W2}, s[16:19], {so} offen offset:{off} {wpol}", f"w2_{j}")
    NE = 6 if (MW2 and not S1POS) else 4
    def stage(n):
        if n < 4: return STG + 4 * n
        if n < NE: return W2R + 24 + 4 * (n - 4)
        return slot(24 + (n - NE) % 8)
    def woload(n):
        grp, j = n // 8, n % 8
        if MWO:
            if j % 2 == 0: I(f"s_xor_b32 s83, s66, {(n // 2) * 16384}")
        elif j == 0: I(f"s_movk_i32 s83, {grp*4096}")
        elif j % 2 == 0: I("s_add_u32 s83, s83, s26")
        g.vm(f"buffer_load_dwordx4 {r4(stage(n))}, v{V_WO}, s[12:15], s83 offen offset:{(j%2)*2048} {wpol}", f"wo{n}")

    W1RAW = W2R if S1POS else slot(8); W1FR = slot(16); W1ACC = slot(24); XOP = X + 8; Y = X
    def s1load(j):
        g.vm(f"buffer_load_dwordx4 {r4(W1RAW+4*j)}, v{V_S1}, s[20:23], s68 offen {wpol}", f"s1_{j}")
        if j < 7: I(f"s_add_u32 s68, s68, {'s67' if (MS1 and j % 2 == 1) else 's76'}")
    s1n = [0]
    def s1_at(n):
        if S1POS and s1n[0] < 8 and S1POS[s1n[0]] == n:
            g.begin('A', ISA)
            while s1n[0] < 8 and S1POS[s1n[0]] == n:
                s1load(s1n[0]); s1n[0] += 1
            g.end()
    g.begin('A', "s_cbranch_scc1")
    if not S1POS:
        for j in range(8): s1load(j)
    g.vm(f"buffer_load_dwordx4 {r4(XOP)}, v{T+3}, s[24:27], s69 offen {spol}", "xop")
    g.vm(f"buffer_load_dword v{V_EP}, v{T+2}, s[28:31], s99 offen {spol}", "ep")
    I("s_load_dword s98, s[28:29], s100")
    if S1POS:
        while s1n[0] < 8 and S1POS[s1n[0]] < FAST:
            s1load(s1n[0]); s1n[0] += 1
    if FB:
        for n in range(FAST): kload(n)
    g.end()
    D0 = max(DB if DB else D, FAST)
    for n in range(EARLY, D0):
        kload(n); s1_at(n)
    g.begin('B', ISB)
    I("""
    s_lshl_b32 s87, s44, 10
    s_cmp_eq_u32 s3, 4
    s_cselect_b32 s87, s87, s26
    s_cselect_b32 s22, 1024, 0
    """)
    g.vm(f"buffer_load_dwordx4 {r4(X)}, v{V_L16}, s[24:27], s87 offen {spol}", "gx")
    g.vm(f"buffer_load_dwordx4 {r4(X+4)}, v{V_L16}, s[20:23], 0 offen {spol}", "gw")
    g.end()
    if prio is not None:
        g.begin('B', ISB); I(f"s_setprio {prio}"); g.end()

    if ROT == 0: rot = "s_mov_b32 s66, 0"
    elif ROT == 1: rot = "s_and_b32 s66, s45, 7\ns_lshl_b32 s66, s66, 14"
    elif ROT == 2: rot = "s_lshr_b32 s66, s45, 2\ns_lshl_b32 s66, s66, 14"
    I(f"""
    s_load_dwordx2 s[8:9], s[0:1], 16
    s_load_dwordx2 s[12:13], s[0:1], 32
    s_load_dwordx2 s[16:17], s[0:1], 64
    s_load_dwordx2 s[32:33], s[0:1], 88
    s_load_dwordx2 s[36:37], s[0:1], 80
    s_mov_b32 s10, 0x10000000
    s_mov_b32 s11, 0x20000
    s_mov_b32 s14, 0x400000
    s_mov_b32 s15, 0x20000
    s_lshl_b32 s18, s79, 13
    s_mov_b32 s19, 0x20000
    s_movk_i32 s34, 256
    s_mov_b32 s35, 0x20000
    s_movk_i32 s38, 8192
    s_mov_b32 s39, 0x20000
    s_mov_b32 s46, 0x05040100
    s_mov_b32 s47, 0x07060302
    s_movk_i32 s84, {16384 if MW2 else 4096}
    {rot}
    s_mov_b32 s93, {f2u(1.4426950408889634):#x}
    s_mov_b32 s94, {f2u(128 ** -0.5):#x}
    s_mov_b32 s95, 0xffff0000
    s_lshl_b32 s87, s3, 7                 ; 128 w
    s_lshl_b32 s89, s78, 13
    s_add_u32 s89, s89, s87
    v_add_u32 v{V_W2}, s89, v{V_W2}
    s_lshl_b32 s89, s45, 17
    s_add_u32 s89, s89, s87
    v_add_u32 v{V_WO}, s89, v{T+1}
    s_lshl_b32 s81, s45, 14
    s_lshl_b32 s89, s44, 11
    s_add_u32 s80, s81, s89
    s_lshl_b32 s89, s85, 9
    s_add_u32 s80, s80, s89               ; producer: h*16K + b*2048 + w*512
    s_lshl_b32 s89, s44, 8
    s_add_u32 s81, s81, s89               ; consumer: h*16K + b*256
    s_add_u32 s77, s81, 0x2000
    s_lshl_b32 s82, s44, 12
    s_add_u32 s82, s82, {ACC_OFF}
    s_lshl_b32 s101, s45, 3
    s_add_u32 s101, s101, s3
    v_bfe_u32 v{V_T0}, v0, 4, 2
    v_lshl_add_u32 v{V_WO}, v{V_T0}, {12 if MWO else 15}, v{V_WO}
    v_and_b32 v{V_XL}, 0xf0, v{V_L16}
    v_lshl_add_u32 v{V_XL}, v{V_T0}, 11, v{V_XL}
    v_bfe_u32 v{V_T0}, v0, 3, 1
    v_lshl_add_u32 v{V_WO}, v{V_T0}, 10, v{V_WO}
    ; masks
    v_and_b32 v{V_T0}, 1, v0
    v_lshlrev_b32 v{V_T0}, 4, v{V_T0}
    v_mov_b32 v{V_T1}, 0xffff
    v_lshlrev_b32 v{V_T1}, v{V_T0}, v{V_T1}
    v_bfe_u32 v{V_T0}, v0, 1, 2
    """)
    if "o" in kill: I("s_mov_b32 s14, 0")
    if "x" in kill or "w" in kill: I(f"s_mov_b32 s80, {WS_BYTES}")
    if "x" in kill or "r" in kill: I(f"s_mov_b32 s81, {WS_BYTES}\ns_mov_b32 s77, {WS_BYTES}")

    if "2" in kill: I("s_mov_b32 s18, 0")
    fill = [f"v_mov_b32 v{ZERO+1}, 0\nv_mov_b32 v{ZERO+2}, 0", f"v_mov_b32 v{ZERO+3}, 0\nv_mov_b32 v{F}, 1.0",
            f"v_mov_b32 v{F+1}, 1.0\nv_mov_b32 v{XU}, 0", f"v_mov_b32 v{XU+1}, 0\ns_nop 0"]
    for r in range(4):
        I(f"v_cmp_eq_u32 vcc, {r}, v{V_T0}\n{fill[r]}\nv_cndmask_b32 v{MASK+r}, 0, v{V_T1}, vcc")
    if XT:
        tab = sum((v & 15) << (4 * i) for i, v in enumerate(XT))
        I(f"""
        s_getreg_b32 s71, hwreg(HW_REG_XCC_ID, 0, 3)
        s_lshl_b32 s71, s71, 2
        s_lshr_b32 s71, {tab:#x}, s71
        s_and_b32 s71, s71, 15
        """)
    if SL:
        tab = sum((v & 15) << (4 * i) for i, v in enumerate(BX))
        I(f"""
        s_getreg_b32 s71, hwreg(HW_REG_XCC_ID, 0, 3)
        s_lshl_b32 s71, s71, 2
        s_lshr_b32 s71, {tab:#x}, s71
        s_and_b32 s71, s71, 15
        s_lshr_b32 s87, s70, 1
        s_xor_b32 s87, s87, 1
        s_mul_i32 s87, s87, {BU}
        s_add_u32 s71, s71, s87
        s_sub_u32 s87, s78, s79
        s_add_u32 s87, s87, 6
        s_mul_i32 s87, s87, {BW}
        s_add_u32 s71, s71, s87
        """)
    if BO:
        tab = sum((v & 15) << (4 * i) for i, v in enumerate(BX))
        I(f"""
        s_getreg_b32 s71, hwreg(HW_REG_XCC_ID, 0, 3)
        s_lshl_b32 s71, s71, 2
        s_lshr_b32 s71, {tab:#x}, s71
        s_and_b32 s71, s71, 15
        s_lshl_b32 s71, s71, 1
        s_lshr_b32 s87, s70, 1
        s_mul_i32 s87, s87, {BU}
        s_add_u32 s71, s71, s87
        s_sub_u32 s87, s79, s78
        s_sub_u32 s87, s87, 5
        s_mul_i32 s87, s87, {BW}
        s_add_u32 s71, s71, s87
        """)
    I("s_waitcnt lgkmcnt(0)")
    if stamps:
        I(f"v_mov_b32 v{V_ST}, 0\nv_writelane_b32 v{V_ST}, s60, 0\nv_writelane_b32 v{V_ST}, s58, 1\nv_writelane_b32 v{V_ST}, s54, 2")
    stamp("b0")
    def stage1():
        g.begin('A', ISA)
        I("""
        s_getreg_b32 s92, hwreg(HW_REG_XCC_ID, 0, 3)
        s_mov_b32 s88, 0x07060500
        s_mov_b32 s89, 0x07060501
        s_mov_b32 s90, 0x07060502
        s_mov_b32 s91, 0x07060503
        s_lshl_b32 s92, s92, 24
        s_add_u32 s98, s98, 0x01010101
        s_and_b32 s73, s98, 0xf8ffffff
        s_or_b32 s73, s73, s92
        s_lshl_b32 s87, s3, 11
        """)
        I(f"""
        v_lshl_add_u32 v{T}, v{V_L16}, 1, s87
        s_lshl_b32 s87, s3, 9
        v_add_u32 v{T+1}, s87, v{V_L16}
        s_lshl_b32 s87, s3, 2
        v_mov_b32 v{T+2}, s87
        v_mov_b32 v{T+3}, 1
        """)
        if MS1:
            I(f"""
            s_lshl_b32 s87, s3, 11
            s_add_u32 s87, s87, {L_P}
            v_add_u32 v{A4+2}, s87, v{V_L16}
            v_bfe_u32 v{A4+3}, v0, 1, 3
            v_lshl_add_u32 v{A4+3}, v{A4+3}, 7, v{A4+1}
            v_add_u32 v{A4+3}, s87, v{A4+3}
            """)
        for jj in range(4):
            g.wait(f"s1_{2*jj+1}")
            for q in range(4):
                for e in range(2):
                    I(f"v_perm_b32 v{W1FR+4*(2*q+e)+jj}, v{W1RAW+4*(2*jj+1)+q}, v{W1RAW+4*(2*jj)+q}, s{46+e}")
        g.wait("ep")
        if MS1:
            I(f"""
            ds_write_b128 v{A4+2}, {r4(XOP)}
            ds_read2_b32 v[{XOP}:{XOP+1}], v{A4+3} offset0:0 offset1:8
            ds_read2_b32 v[{XOP+2}:{XOP+3}], v{A4+3} offset0:16 offset1:24
            s_waitcnt lgkmcnt(0)
            """)
        for c in range(8):
            I(f"v_mfma_f32_16x16x32_bf16 {r4(W1ACC+4*c)}, {r4(XOP)}, {r4(W1FR+4*c)}, 0")
        I(f"""
        v_add_u32 v{V_EP}, 0x01010101, v{V_EP}
        v_and_b32 v{V_EP}, 0xf8ffffff, v{V_EP}
        v_or_b32 v{V_EP}, s92, v{V_EP}
        """)
        for c in range(8):
            a = W1ACC + 4 * c
            I(f"v_add_f32_dpp v{Y+c}, v{a+1}, v{a} row_ror:8 row_mask:0xf bank_mask:0x3")
            I(f"v_add_f32_dpp v{Y+c}, v{a+2}, v{a+3} row_ror:8 row_mask:0xf bank_mask:0xc")
        PR = W1RAW
        I(f"""
        ds_write_b128 v{T}, {r4(Y)} offset:{L_P}
        ds_write_b128 v{T}, {r4(Y+4)} offset:{L_P+16}
        s_mov_b64 exec, 1
        ds_write_b32 v{T+2}, v{T+3} offset:{L_F2}
        s_mov_b32 exec_lo, -1
        """)
        g.label("L_quad")
        I(f"""
        ds_read_b128 {r4(Y)}, v{ZERO} offset:{L_F2}
        ds_read_b128 {r4(PR)}, v{T+1} offset:{L_P}
        ds_read_b128 {r4(PR+4)}, v{T+1} offset:{L_P+2048}
        ds_read_b128 {r4(PR+8)}, v{T+1} offset:{L_P+4096}
        ds_read_b128 {r4(PR+12)}, v{T+1} offset:{L_P+6144}
        s_waitcnt lgkmcnt(0)
        v_and_b32 v{Y}, v{Y}, v{Y+1}
        v_and_b32 v{Y+2}, v{Y+2}, v{Y+3}
        v_and_b32 v{Y}, v{Y}, v{Y+2}
        v_cmp_eq_u32 vcc, 0, v{Y}
        s_cbranch_vccnz L_quad
        v_pk_add_f32 v[{PR}:{PR+1}], v[{PR}:{PR+1}], v[{PR+4}:{PR+5}]
        v_pk_add_f32 v[{PR+2}:{PR+3}], v[{PR+2}:{PR+3}], v[{PR+6}:{PR+7}]
        v_pk_add_f32 v[{PR+8}:{PR+9}], v[{PR+8}:{PR+9}], v[{PR+12}:{PR+13}]
        v_pk_add_f32 v[{PR+10}:{PR+11}], v[{PR+10}:{PR+11}], v[{PR+14}:{PR+15}]
        v_pk_add_f32 v[{PR}:{PR+1}], v[{PR}:{PR+1}], v[{PR+8}:{PR+9}]
        v_pk_add_f32 v[{PR+2}:{PR+3}], v[{PR+2}:{PR+3}], v[{PR+10}:{PR+11}]
        """)
        for c in range(4):
            I(f"v_perm_b32 v{Y+c}, v{PR+c}, v{V_EP}, s{88+c}")
        g.vm(f"buffer_store_dwordx4 {r4(Y)}, v{V_L16}, s[28:31], s80 offen {xs}", "ex0")
        I("s_mov_b64 exec, -1")
        g.end()
        stamp("s1done")
    I(f"""
    s_cmp_lg_u32 s101, 5
    s_cbranch_scc1 L_nozero
    buffer_store_dwordx4 {r4(ZERO)}, v{V_L16}, s[28:31], s82 offen sc1
    buffer_store_dwordx4 {r4(ZERO)}, v{V_L16}, s[28:31], s82 offen offset:1024 sc1
    buffer_store_dwordx4 {r4(ZERO)}, v{V_L16}, s[28:31], s82 offen offset:2048 sc1
    buffer_store_dwordx4 {r4(ZERO)}, v{V_L16}, s[28:31], s82 offen offset:3072 sc1
    """)
    g.label("L_nozero")

    if not S1POS: stage1()

    def gate():
        I("s_cmp_lg_u32 s3, 4\ns_cbranch_scc1 L_nogate")
        g.role = 'B'
        assert g.is_done("gw")
        for q in range(4):
            I(f"""
            v_lshlrev_b32 v{X+8}, 16, v{X+q}
            v_and_b32 v{X+9}, s95, v{X+q}
            v_lshlrev_b32 v{X+10}, 16, v{X+4+q}
            v_and_b32 v{X+11}, s95, v{X+4+q}
            v_mul_f32 v{X+8}, v{X+8}, v{X+10}
            v_mul_f32 v{X+9}, v{X+9}, v{X+11}
            v_cvt_pk_bf16_f32 v{X+q}, v{X+8}, v{X+9}
            """)
        I(f"""
        v_mov_b32 v{X+8}, 0
        v_mov_b32 v{X+9}, 0x3f803f80
        v_dot2c_f32_bf16 v{X+8}, v{X}, v{X+9}
        v_dot2c_f32_bf16 v{X+8}, v{X+1}, v{X+9}
        v_dot2c_f32_bf16 v{X+8}, v{X+2}, v{X+9}
        v_dot2c_f32_bf16 v{X+8}, v{X+3}, v{X+9}
        s_nop 2
        v_add_f32_dpp v{X+8}, v{X+8}, v{X+8} quad_perm:[1,0,3,2] row_mask:0xf bank_mask:0xf
        s_nop 1
        v_add_f32_dpp v{X+8}, v{X+8}, v{X+8} quad_perm:[2,3,0,1] row_mask:0xf bank_mask:0xf
        """)
        allred(X + 8, X + 9, "v_add_f32")
        I(f"""
        v_cvt_pk_bf16_f32 v{X+8}, v{X+8}, v{X+8}
        v_and_b32 v{X+8}, s95, v{X+8}
        v_mul_f32 v{X+8}, s93, v{X+8}
        v_exp_f32 v{X+8}, -v{X+8}
        v_mov_b32 v{X+10}, 1
        v_add_f32 v{X+8}, 1.0, v{X+8}
        v_rcp_f32 v{X+8}, v{X+8}
        v_mov_b32 v{X+11}, 1
        v_cvt_pk_bf16_f32 v{X+8}, v{X+8}, v{X+8}
        v_and_b32 v{X+8}, s95, v{X+8}
        v_sub_f32 v{X+9}, 1.0, v{X+8}
        v_cvt_pk_bf16_f32 v{X+9}, v{X+9}, v{X+9}
        v_and_b32 v{X+9}, s95, v{X+9}
        s_mov_b64 exec, 1
        ds_write_b128 v{ZERO}, {r4(X+8)} offset:{L_G}
        s_mov_b64 exec, -1
        """)
        g.role = None
        g.label("L_nogate")

    kgroups_done = [0]
    def consume_group(k):
        s0 = 4 * k
        for i in range(4):
            I(f"v_dot2_f32_bf16 v{A4+i}, v{slot(s0+i)}, v{Q}, 0")
        for q in range(1, 4):
            for i in range(4):
                I(f"v_dot2c_f32_bf16 v{A4+i}, v{slot(s0+i)+q}, v{Q+q}")
        I(f"""
        v_add_f32_dpp v{TT}, v{A4}, v{A4} row_ror:8 row_mask:0xf bank_mask:0x3
        v_add_f32_dpp v{TT}, v{A4+1}, v{A4+1} row_ror:8 row_mask:0xf bank_mask:0xc
        v_add_f32_dpp v{TT+1}, v{A4+2}, v{A4+2} row_ror:8 row_mask:0xf bank_mask:0x3
        v_add_f32_dpp v{TT+1}, v{A4+3}, v{A4+3} row_ror:8 row_mask:0xf bank_mask:0xc
        v_add_f32_dpp v{S+k}, v{TT}, v{TT} row_half_mirror row_mask:0xf bank_mask:0x5
        s_nop 0
        v_add_f32_dpp v{S+k}, v{TT+1}, v{TT+1} row_half_mirror row_mask:0xf bank_mask:0xa
        s_nop 1
        v_add_f32_dpp v{S+k}, v{S+k}, v{S+k} quad_perm:[1,0,3,2] row_mask:0xf bank_mask:0xf
        s_nop 1
        v_add_f32_dpp v{S+k}, v{S+k}, v{S+k} quad_perm:[2,3,0,1] row_mask:0xf bank_mask:0xf
        """)
        if k % 2 == 1:
            a, b = S + k - 1, S + k
            I(f"""
            v_cvt_pk_bf16_f32 v{TT}, v{a}, v{b}
            v_lshlrev_b32 v{a}, 16, v{TT}
            v_and_b32 v{b}, s95, v{TT}
            v_mul_f32 v{a}, s94, v{a}
            v_mul_f32 v{b}, s94, v{b}
            v_cvt_pk_bf16_f32 v{TT}, v{a}, v{b}
            v_lshlrev_b32 v{a}, 16, v{TT}
            v_and_b32 v{b}, s95, v{TT}
            """)
        kgroups_done[0] = k + 1

    def allred(v, t, op):
        I(f"""
        s_nop 1
        {op}_dpp v{v}, v{v}, v{v} row_ror:4 row_mask:0xf bank_mask:0xf
        s_nop 1
        {op}_dpp v{v}, v{v}, v{v} row_ror:8 row_mask:0xf bank_mask:0xf
        v_mov_b32 v{t}, v{v}
        s_nop 1
        v_permlane16_swap_b32 v{v}, v{t}
        {op} v{v}, v{v}, v{t}
        v_mov_b32 v{t}, v{v}
        s_nop 1
        v_permlane32_swap_b32 v{v}, v{t}
        {op} v{v}, v{v}, v{t}
        """)

    def softmax1():
        m = TT
        I(f"""
        v_max3_f32 v{m}, v{S}, v{S+1}, v{S+2}
        v_max3_f32 v{m}, v{m}, v{S+3}, v{S+4}
        v_max3_f32 v{m}, v{m}, v{S+5}, v{S+6}
        v_max_f32 v{m}, v{m}, v{S+7}
        """)
        allred(m, A4, "v_max_f32")
        I(f"v_mul_f32 v{m}, s93, v{m}")
        for k in range(8):
            I(f"v_fma_f32 v{S+k}, v{S+k}, s93, -v{m}")
    def softmax2():
        m = TT
        for k in range(8):
            I(f"v_exp_f32 v{S+k}, v{S+k}")
        l = TT + 1
        I(f"v_add_f32 v{l}, v{S}, v{S+1}")
        for k in range(2, 8):
            I(f"v_add_f32 v{l}, v{l}, v{S+k}")
        for k in range(8):
            I(f"v_cvt_pk_bf16_f32 v{S+k}, v{S+k}, v{S+k}")
    def softmax3():
        m, l = TT, TT + 1
        allred(l, A4, "v_add_f32")
        I(f"""
        s_lshl_b32 s88, s3, 3
        v_mov_b32 v{A4}, s88
        v_mov_b32 v{V_MC}, v{m}
        s_mov_b64 exec, 1
        ds_write_b64 v{A4}, v[{TT}:{TT+1}] offset:{L_ML}
        s_mov_b64 exec, -1
        """)

    def ffn_mm(q):
        if MW2 and q == 0: I(f"v_mov_b32 v{X+3}, 0\nv_mov_b32 v{X+7}, 0")
        for e in range(2):
            for jj in range(3 if MW2 else 4):
                I(f"v_perm_b32 v{X+4*e+jj}, v{W2R+4*(2*jj+1)+q}, v{W2R+4*(2*jj)+q}, s{46+e}")
        I("s_nop 1")
        for e in range(2):
            I(f"v_mfma_f32_16x16x32_bf16 {r4(X+8+4*e)}, {r4(T)}, {r4(X+4*e)}, 0")
    def ffn_fold(q):
        for e in range(2):
            c = 2 * q + e
            a = X + 8 + 4 * e
            I(f"v_add_f32_dpp v{F+c//4}, v{a+1}, v{a} row_ror:8 row_mask:{1 << (c%4):#x} bank_mask:0x3")
        if q == 3:
            I("s_nop 1")
            for u in range(2):
                I(f"v_mul_f32_dpp v{F+u}, v{F+u}, v{V_G+1} quad_perm:[0,1,2,3] row_mask:0xf bank_mask:0x3")

    def build_a(t):
        k, half = t // 2, t % 2
        for r in range(4):
            mir = (r >= 2) != (half == 1)
            d = AOP + 4 * (t % 2) + r
            if mir:
                I(f"v_and_b32_dpp v{d}, v{S+k}, v{MASK+r} row_half_mirror row_mask:0xf bank_mask:0xf")
            else:
                I(f"v_and_b32 v{d}, v{S+k}, v{MASK+r}")

    vdone = [0]
    def pv(n):
        t = n // 2
        acc = ACC0 if n % 2 == 0 else ACC1
        c = "0" if n < 2 else r4(acc)
        I(f"v_mfma_f32_16x16x32_bf16 {r4(acc)}, {r4(AOP+4*(t%2))}, {r4(slot(n%8))}, {c}")
        vdone[0] = n + 1
        if n % 2 == 1 and t + 2 < 16:
            build_a(t + 2)

    wopairs = [0]
    def wo_perm(p):
        grp, jj = p // 4, p % 4
        a, b = stage(2 * p), stage(2 * p + 1)
        for q in range(4):
            for e in range(2):
                I(f"v_perm_b32 v{slot(8)+32*grp+4*(2*q+e)+jj}, v{b+q}, v{a+q}, s{46+e}")
        wopairs[0] = p + 1

    def ml_issue():
        I(f"""
        s_lshl_b32 s99, s44, 5
        s_load_dword s98, s[32:33], s99
        v_and_b32 v{A4+3}, 7, v0
        v_lshlrev_b32 v{A4+3}, 3, v{A4+3}
        ds_read_b64 v[{A4}:{A4+1}], v{A4+3} offset:{L_ML}
        """)
    def ml_combine():
        owr = ""
        if MWO:
            owr = f"""
        s_lshr_b32 s89, s66, 13
        v_xor_b32 v{A4+1}, s89, v0
        v_and_b32 v{V_T0}, 32, v0
        v_bfe_u32 v{A4+2}, v{A4+1}, 3, 1
        v_lshl_add_u32 v{V_T0}, v{A4+2}, 4, v{V_T0}
        v_bfe_u32 v{A4+2}, v0, 4, 1
        v_lshl_add_u32 v{V_T0}, v{A4+2}, 2, v{V_T0}
        v_and_b32 v{A4+2}, 1, v0
        v_lshl_add_u32 v{V_T0}, v{A4+2}, 3, v{V_T0}
        v_bfe_u32 v{A4+2}, v{A4+1}, 1, 2
        v_add_u32 v{V_T0}, v{A4+2}, v{V_T0}
        v_lshl_add_u32 v{V_T0}, v{V_T0}, 2, s88
        """
        I(f"""
        s_waitcnt lgkmcnt(0)
        s_cmp_eq_u32 s98, 1
        s_cbranch_scc1 L_zok
        s_mov_b32 s92, 200000
        v_mov_b32 v{TT}, 0
        s_mov_b64 exec, 1""")
        g.label("L_zpoll")
        I(f"""
        buffer_load_dword v{TT+1}, v{TT}, s[32:35], s99 offen sc1
        s_waitcnt vmcnt(0)
        v_cmp_eq_u32 vcc, 1, v{TT+1}
        s_cbranch_vccnz L_zdone
        s_sub_u32 s92, s92, 1
        s_cbranch_scc0 L_zpoll""")
        g.label("L_zdone")
        I("s_mov_b64 exec, -1")
        g.label("L_zok")
        I(f"""
        v_cmp_eq_u32 vcc, 0, v{A4+1}
        s_cbranch_vccz L_mlok
        ds_read_b64 v[{A4}:{A4+1}], v{A4+3} offset:{L_ML}
        s_waitcnt lgkmcnt(0)
        s_branch L_zok""")
        g.label("L_mlok")
        I(f"""
        v_max_f32_dpp v{A4+2}, v{A4}, v{A4} quad_perm:[1,0,3,2] row_mask:0xf bank_mask:0xf
        v_lshrrev_b32 v{V_T2}, 2, v{V_L16}
        s_mul_i32 s88, s3, 288
        v_max_f32_dpp v{A4+2}, v{A4+2}, v{A4+2} quad_perm:[2,3,0,1] row_mask:0xf bank_mask:0xf
        v_add_u32 v{V_T0}, s88, v{V_T2}
        v_bfe_u32 v{V_T1}, v0, 1, 3
        v_max_f32_dpp v{A4+2}, v{A4+2}, v{A4+2} row_half_mirror row_mask:0xf bank_mask:0xf
        v_sub_f32 v{A4}, v{A4}, v{A4+2}
        v_sub_f32 v{V_MC}, v{V_MC}, v{A4+2}
        v_exp_f32 v{A4}, v{A4}
        v_exp_f32 v{V_MC}, v{V_MC}
        v_mul_f32 v{A4}, v{A4}, v{A4+1}
        v_mul_f32 v{V_MC}, v{V_MC}, v{V_G}
        v_mul_u32_u24 v{V_T1}, 288, v{V_T1}
        v_add_f32_dpp v{A4}, v{A4}, v{A4} quad_perm:[1,0,3,2] row_mask:0xf bank_mask:0xf
        v_and_b32 v{A4+1}, 1, v0
        v_lshl_add_u32 v{V_T1}, v{A4+1}, 7, v{V_T1}
        v_add_f32_dpp v{A4}, v{A4}, v{A4} quad_perm:[2,3,0,1] row_mask:0xf bank_mask:0xf
        v_and_b32 v{A4+1}, 48, v0
        v_add_u32 v{V_T1}, v{A4+1}, v{V_T1}
        v_add_f32_dpp v{A4}, v{A4}, v{A4} row_half_mirror row_mask:0xf bank_mask:0xf
        v_rcp_f32 v{A4}, v{A4}
        v_and_b32 v{V_W2}, 0xf0, v{V_L16}
        v_mul_f32 v{V_FAC}, v{V_MC}, v{A4}
        v_bfe_u32 v{A4+1}, v0, 4, 2
        v_lshl_add_u32 v{V_W2}, v{A4+1}, 1, v{V_W2}
        {owr}
        s_lshl_b32 s88, s3, 9
        s_add_u32 s82, s82, s88
        s_lshl_b32 s72, s44, 10
        s_lshl_b32 s88, s3, 7
        s_add_u32 s72, s72, s88
        """)
        if "a" in kill: I(f"s_mov_b32 s82, {WS_BYTES}")

    def kvtag(i): return f"k{i}" if i < 32 else f"v{i-32}"
    nth = [0]
    def throttle(i, isw=False):
        if BO and not isw and B0 <= i < B0 + 2 * max(BX) + BU + BW:
            p = PAT if (i < 32 or PATV is None) else PATV
            d = p[i % len(p)]
            if i - BO >= 0: g.wait(kvtag(i - BO))
            saved = dict(g.done)
            nth[0] += 1
            I(f"s_cmp_gt_u32 s71, {i - B0}\ns_cbranch_scc1 L_th{nth[0]}")
            g.wait(kvtag(i - d))
            g.label(f"L_th{nth[0]}")
            g.done = saved
            return
        throttle0(i, isw)
        if SL and not isw and B0 <= i < B0 + max(BX) + BU + BW:
            saved = dict(g.done)
            nth[0] += 1
            I(f"s_cmp_le_u32 s71, {i - B0}\ns_cbranch_scc1 L_th{nth[0]}")
            g.wait(kvtag(i - SL))
            g.label(f"L_th{nth[0]}")
            g.done = saved
        if XT and i >= X0 and (i - X0) // 4 < max(XT):
            nth[0] += 1
            I(f"s_cmp_le_u32 s71, {(i - X0) // 4}\ns_cbranch_scc1 L_th{nth[0]}\ns_waitcnt vmcnt({XD-1})")
            g.label(f"L_th{nth[0]}")
    def throttle0(i, isw=False):
        if PAT is None or (PATV == "D" and i >= 32):
            g.waitn((DA if (DA and i < 32) else D) - 1); return
        if isw: return
        p = PAT if (i < 32 or PATV is None) else PATV
        d = p[i % len(p)]
        if i - d >= 0: g.wait(kvtag(i - d))
    w2n = 0
    won = 0
    synced = False
    gate_done = False
    PX = slot(30)
    def sync_reads():
        I(f"""
        ds_read_b128 {r4(X)}, v{ZERO} offset:{L_F}
        ds_read_b128 {r4(V_G)}, v{ZERO} offset:{L_G}
        ds_read_b128 {r4(Q)}, v{V_T0} offset:{L_Q}
        """)
        if MW2:
            I(f"ds_read2_b32 v[{T}:{T+1}], v{V_LH} offset0:0 offset1:8\nds_read2_b32 v[{T+2}:{T+3}], v{V_LH} offset0:16 offset1:24")
        else:
            I(f"ds_read_b128 {r4(T)}, v{V_LH} offset:{L_H}")
    for n in range(D0, 32):
        if n == ZF:
            I(f"""
            s_cmp_lg_u32 s101, 5
            s_cbranch_scc1 L_noflag
            v_mov_b32 v{X}, 1
            s_lshl_b32 s88, s44, 5
            s_mov_b64 exec, 1
            buffer_store_dword v{X}, v{ZERO}, s[32:35], s88 offen sc1
            s_mov_b64 exec, -1
            """)
            g.label("L_noflag")
        if n == POLL:
            g.begin('A', ISA)
            g.vm(f"buffer_load_dwordx4 {r4(PX)}, v{V_XL}, s[28:31], s81 offen {xl}", "px0")
            g.vm(f"buffer_load_dwordx4 {r4(PX+4)}, v{V_XL}, s[28:31], s77 offen {xl}", "px1")
            g.end()
        if n == POLL + D:
            g.begin('A', ISA)
            I(f"""
            v_lshrrev_b32 v{X}, 1, v{V_L16}
            s_mov_b32 s92, {0 if any(c in kill for c in "xwrh") else 200000}
            s_mov_b32 s88, 0x0c0c0400
            s_mov_b32 s89, 0x04000c0c
            s_mov_b32 s90, -1
            """)
            g.wait("px1")
            g.label("L_poll")
            I(f"""
            v_perm_b32 v{X+2}, v{PX+1}, v{PX}, s88
            v_perm_b32 v{X+3}, v{PX+3}, v{PX+2}, s89
            v_perm_b32 v{X+4}, v{PX+5}, v{PX+4}, s88
            v_perm_b32 v{X+5}, v{PX+7}, v{PX+6}, s89
            v_or_b32 v{X+2}, v{X+2}, v{X+3}
            v_or_b32 v{X+4}, v{X+4}, v{X+5}
            v_xor_b32 v{X+2}, s73, v{X+2}
            v_xor_b32 v{X+4}, s73, v{X+4}
            v_or_b32 v{X+2}, v{X+2}, v{X+4}
            v_and_b32 v{X+2}, s90, v{X+2}
            v_cmp_ne_u32 vcc, 0, v{X+2}
            s_cbranch_vccz L_polled
            s_sub_u32 s92, s92, 1
            s_cbranch_scc1 L_polled
            s_cmp_gt_u32 s92, {200000 - 5}
            s_cbranch_scc1 L_reload
            s_cmp_eq_u32 s90, -1
            s_cbranch_scc0 L_flushed
            s_mov_b32 s90, 0xf8ffffff
            s_waitcnt vmcnt(0)
            buffer_wbl2 sc1
            s_waitcnt vmcnt(0)""")
            g.label("L_flushed")
            I("buffer_inv sc1")
            g.label("L_reload")
            I(f"""
            buffer_load_dwordx4 {r4(PX)}, v{V_XL}, s[28:31], s81 offen sc1
            buffer_load_dwordx4 {r4(PX+4)}, v{V_XL}, s[28:31], s77 offen sc1
            s_waitcnt vmcnt(0)
            s_branch L_poll""")
            g.label("L_polled")
            stamp("x2")
            G4 = X + 4; U4 = X + 8; E4 = AOP
            I(f"""
            v_pk_add_f32 v[{PX}:{PX+1}], v[{PX}:{PX+1}], v[{PX+4}:{PX+5}]
            v_pk_add_f32 v[{PX+2}:{PX+3}], v[{PX+2}:{PX+3}], v[{PX+6}:{PX+7}]
            s_lshl_b32 s88, s3, 2
            v_cvt_pk_bf16_f32 v{PX}, v{PX}, v{PX+1}
            v_cvt_pk_bf16_f32 v{PX+1}, v{PX+2}, v{PX+3}
            v_mov_b32 v{PX+2}, v{PX}
            v_mov_b32 v{PX+3}, v{PX+1}
            v_mov_b32 v{PX+4}, v{PX}
            v_mov_b32 v{PX+5}, v{PX+1}
            v_lshlrev_b32 v{G4}, 16, v{PX}
            v_and_b32 v{G4+1}, s95, v{PX}
            v_permlane16_swap_b32 v{PX+2}, v{PX+4}
            v_permlane16_swap_b32 v{PX+3}, v{PX+5}
            v_lshlrev_b32 v{G4+2}, 16, v{PX+1}
            v_and_b32 v{G4+3}, s95, v{PX+1}
            v_lshlrev_b32 v{U4}, 16, v{PX+4}
            v_and_b32 v{U4+1}, s95, v{PX+4}
            v_lshlrev_b32 v{U4+2}, 16, v{PX+5}
            v_and_b32 v{U4+3}, s95, v{PX+5}
            """)
            for i in range(4): I(f"v_mul_f32 v{E4+i}, s93, v{G4+i}")
            for i in range(4): I(f"v_exp_f32 v{E4+i}, -v{E4+i}")
            for i in range(4): I(f"v_add_f32 v{E4+i}, 1.0, v{E4+i}")
            for i in range(4): I(f"v_rcp_f32 v{E4+i}, v{E4+i}")
            for i in range(4): I(f"v_mul_f32 v{E4+i}, v{E4+i}, v{G4+i}")
            I(f"""
            v_cvt_pk_bf16_f32 v{G4}, v{E4}, v{E4+1}
            v_cvt_pk_bf16_f32 v{G4+1}, v{E4+2}, v{E4+3}
            v_lshlrev_b32 v{E4}, 16, v{G4}
            v_and_b32 v{E4+1}, s95, v{G4}
            v_lshlrev_b32 v{E4+2}, 16, v{G4+1}
            v_and_b32 v{E4+3}, s95, v{G4+1}
            """)
            for i in range(4): I(f"v_mul_f32 v{E4+i}, v{E4+i}, v{U4+i}")
            I(f"""
            v_mov_b32 v{X+1}, s88
            v_mov_b32 v{X+2}, 1
            s_mov_b32 exec_lo, 0
            v_cvt_pk_bf16_f32 v{PX}, v{E4}, v{E4+1}
            v_cvt_pk_bf16_f32 v{PX+1}, v{E4+2}, v{E4+3}
            s_mov_b32 exec_lo, -1
            ds_write_b64 v{X}, v[{PX}:{PX+1}] offset:{L_Q}
            s_mov_b64 exec, 1
            ds_write_b32 v{X+1}, v{X+2} offset:{L_F}
            s_mov_b64 exec, -1
            """)
            g.end()
        if n == SYNC:
            stamp("sync")
            if BAR & 1: I("s_barrier")
            I(f"v_and_b32 v{V_T0}, 0xf0, v{V_L16}")
            sync_reads()
        throttle(n)
        kload(n)
        s1_at(n)
        if S1POS and n == S1C:
            assert n < 16 and w2n == 0
            stage1()
        if n == SYNC:
            g.label("L_sync")
            I(f"""
            s_waitcnt lgkmcnt(0)
            v_and_b32 v{X}, v{X}, v{X+1}
            v_and_b32 v{X+2}, v{X+2}, v{X+3}
            v_and_b32 v{X}, v{X}, v{V_G+2}
            v_and_b32 v{X}, v{X}, v{X+2}
            v_cmp_eq_u32 vcc, 0, v{X}
            s_cbranch_vccz L_synced
            """)
            sync_reads()
            I("s_branch L_sync")
            g.label("L_synced")
            stamp("synced")
            I(f"""
            s_cmp_lg_u32 s3, 0
            s_cbranch_scc1 L_nobump
            v_mov_b32 v{X}, s98
            s_mov_b64 exec, 1
            buffer_store_dword v{X}, v{ZERO}, s[28:31], s100 offen
            s_mov_b64 exec, -1
            """)
            g.label("L_nobump")
            synced = True
        if not gate_done and g.done['B'] > g._idx("gw", 'B'):
            gate(); gate_done = True
        if synced:
            k = kgroups_done[0]
            if k < 8 and 4 * k + 3 <= n and g.is_done(f"k{4*k+3}"):
                consume_group(k)
        if w2n < NW2 and n == W2POS[w2n]:
            throttle(n, True)
            w2load(w2n); w2n += 1
        if won < len(WOK) and n == WOK[won]:
            assert won < NE
            throttle(n, True)
            woload(won); won += 1
    assert w2n == NW2 and gate_done
    assert won == len(WOK) and len(WOK) + len(WOPOS) == 16
    sm = 0
    ffn_q = 0
    def after_step(n):
        nonlocal sm, ffn_q
        k = kgroups_done[0]
        if k < 8:
            if g.is_done(f"k{4*k+3}"):
                consume_group(k)
            return
        if sm == 0:
            softmax1(); sm = 1; return
        if sm == 1:
            softmax2(); build_a(0); build_a(1); sm = 2; stamp("smax"); I("s_nop 0")
        elif sm == 2:
            softmax3(); sm = 3
        while vdone[0] <= n and vdone[0] < 32 and g.is_done(f"v{vdone[0]}"):
            pv(vdone[0])
        p = wopairs[0]
        if p < 8 and 2 * p + 1 < won and g.is_done(f"wo{2*p+1}"):
            wo_perm(p)
        elif sm == 3 and ffn_q < 8 and g.is_done(f"w2_{NW2-1}"):
            if ffn_q % 2 == 0: ffn_mm(ffn_q // 2)
            else:
                ffn_fold(ffn_q // 2)
            ffn_q += 1
    for n in range(32):
        if n == B2AT - 2:
            assert sm == 3
            if BAR & 2: I("s_barrier")
            ml_issue()
        if n == B2AT:
            ml_combine()
        throttle(32 + n)
        if n < 8:
            assert kgroups_done[0] > n // 4
        else:
            assert vdone[0] > n - 8, (n, vdone[0])
        vload(n)
        after_step(n)
        if won < 16 and n == WOPOS[won - len(WOK)]:
            throttle(32 + n, True)
            assert won < NE or kgroups_done[0] >= (7 if won < NE + 4 else 8), (won, kgroups_done[0])
            assert won < NE + 8 or wopairs[0] > (won - 8) // 2, (won, wopairs[0])
            woload(won); won += 1
            after_step(n)
    assert won == 16 and ffn_q == 8
    stamp("issued")
    while vdone[0] < 32:
        g.wait(f"v{vdone[0]}")
        after_step(31)
    assert wopairs[0] == 8
    stamp("lastv")
    I(f"""
    s_nop 7
    v_permlane32_swap_b32 v{ACC1}, v{ACC0+1}
    v_permlane32_swap_b32 v{ACC1+2}, v{ACC0+3}
    s_nop 0
    v_add_f32_dpp v{T}, v{ACC0}, v{ACC0+1} quad_perm:[0,1,2,3] row_mask:0x3 bank_mask:0xf
    v_add_f32_dpp v{T+1}, v{ACC0+2}, v{ACC0+3} quad_perm:[0,1,2,3] row_mask:0x3 bank_mask:0xf
    v_add_f32_dpp v{T}, v{ACC1+1}, v{ACC1} quad_perm:[0,1,2,3] row_mask:0xc bank_mask:0xf
    v_add_f32_dpp v{T+1}, v{ACC1+3}, v{ACC1+2} quad_perm:[0,1,2,3] row_mask:0xc bank_mask:0xf
    v_mul_f32 v{T}, v{T}, v{V_FAC}
    v_mul_f32 v{T+1}, v{T+1}, v{V_FAC}
    v_cvt_pk_bf16_f32 v{T}, v{T}, v{T+1}
    ds_write_b32 v{V_T0}, v{T} offset:{L_O}
    s_waitcnt lgkmcnt(0)
    s_barrier
    """)
    stamp("b3")
    I(f"ds_read_b128 {r4(AOP)}, v{V_T1} offset:{L_O}")
    I(f"ds_read_b128 {r4(AOP+4)}, v{V_T1} offset:{L_O+64}")
    TACC = slot(24)
    E = STG
    I("s_waitcnt lgkmcnt(0)")
    def estep(c):
        a = TACC + 4 * c
        I(f"v_add_f32_dpp v{E+c}, v{a}, v{a+2} quad_perm:[0,1,2,3] row_mask:0xf bank_mask:0x3")
        I(f"v_add_f32_dpp v{E+c}, v{a+1}, v{a+3} quad_perm:[0,1,2,3] row_mask:0xf bank_mask:0xc")
    def s32(c):
        I(f"v_permlane32_swap_b32 v{E+c}, v{E+c+2}\nv_add_f32 v{E+c}, v{E+c}, v{E+c+2}")
    def s16(u):
        c = 4 * u
        I(f"v_permlane16_swap_b32 v{E+c}, v{E+c+1}\nv_add_f32 v{E+c}, v{E+c}, v{E+c+1}")
    def fin(u):
        c = 4 * u
        I(f"v_add_f32_dpp v{XU+u}, v{E+c}, v{E+c} row_ror:8 row_mask:0xf bank_mask:0x3")
    order = [0, 2, 1, 3, 4, 6, 5, 7]
    for idx, c in enumerate(order):
        for grp in range(2):
            cc = "0" if grp == 0 else r4(TACC + 4 * c)
            I(f"v_mfma_f32_16x16x32_bf16 {r4(TACC+4*c)}, {r4(AOP+4*grp)}, {r4(slot(8)+32*grp+4*c)}, {cc}")
        if idx >= 4: estep(order[idx - 4])
    s32(0); estep(4); s32(1); estep(6); s16(0); estep(5); s32(4); estep(7); fin(0)
    I("s_nop 0"); s32(5); I("s_nop 1"); s16(1); I("s_nop 1"); fin(1)
    stamp("preat")
    I(f"""
    s_mov_b32 exec_lo, 0x01ff01ff
    s_mov_b32 exec_hi, 0x01ff01ff
    v_add_f32 v{T}, v{XU}, v{F}
    v_add_f32 v{T+1}, v{XU+1}, v{F+1}
    """)
    g.vm(f"buffer_atomic_add_f32 v{T}, v{V_T2}, s[28:31], s82 offen sc0", "at0")
    g.vm(f"buffer_atomic_add_f32 v{T+1}, v{V_T2}, s[28:31], s82 offen offset:256 sc0", "at1")
    I(f"""
    v_add_f32 v{XU}, v{XU}, v{F}
    v_add_f32 v{XU+1}, v{XU+1}, v{F+1}
    s_mov_b32 s88, {f2u(31.0):#x}
    s_mov_b32 s90, 0x00ff00ff
    s_mov_b32 s91, 0x00ff00ff
    """)
    g.wait("at1")
    I(f"""
    v_mov_b32_dpp v{T+2}, v{T} row_newbcast:8 row_mask:0xf bank_mask:0xf
    v_mov_b32_dpp v{T+3}, v{T+1} row_newbcast:8 row_mask:0xf bank_mask:0xf
    v_add_f32 v{T}, v{T}, v{XU}
    v_add_f32 v{T+1}, v{T+1}, v{XU+1}
    v_cmp_eq_f32 vcc, s88, v{T+2}
    v_cmp_eq_f32 s[86:87], s88, v{T+3}
    v_cvt_pk_bf16_f32 v{T}, v{T}, v{T+1}
    s_and_b64 exec, vcc, s[90:91]
    s_cbranch_execz L_nost0
    buffer_store_short v{T}, v{V_W2}, s[36:39], s72 offen
    """)
    g.label("L_nost0")
    I(f"""
    s_and_b64 exec, s[86:87], s[90:91]
    s_cbranch_execz L_nost1
    buffer_store_short_d16_hi v{T}, v{V_W2}, s[36:39], s72 offen offset:8
    """)
    g.label("L_nost1")
    if stamps:
        I("s_mov_b64 exec, -1")
        I("s_memtime s[62:63]")
        stamp("end")
        I(f"s_sub_u32 s62, s62, s64\nv_writelane_b32 v{V_ST}, s62, 14")
        I(f"""
        s_getreg_b32 s96, hwreg(HW_REG_XCC_ID)
        s_nop 0
        v_writelane_b32 v{V_ST}, s96, 15
        s_lshl_b32 s88, s2, 9
        s_lshl_b32 s89, s3, 6
        s_add_u32 s88, s88, s89
        s_add_u32 s88, s88, {STAMP_OFF}
        s_mov_b64 exec, 0xffff
        buffer_store_dword v{V_ST}, v{V_T2}, s[28:31], s88 offen
        """)
    fix_gen(g)
    probs = check_gen(g)
    for p in probs: print("HAZARD", p, file=sys.stderr)
    body = g.text()
    head = f"""; gated mix of sliding-window decode attention and SwiGLU FFN, one workgroup per (batch, head)
; @launch grid=(256,1,1) block=(512,1,1) lds={LDS_BYTES}
.amdgcn_target "amdgcn-amd-amdhsa--gfx950"
.text
.globl {KNAME}
.p2align 8
.type {KNAME},@function
{KNAME}:
"""
    foot = f"""L_end:
    s_endpgm
.section .rodata,"a"
.p2align 6
.amdhsa_kernel {KNAME}
  .amdhsa_next_free_vgpr 256
  .amdhsa_next_free_sgpr 102
  .amdhsa_accum_offset 256
  .amdhsa_group_segment_fixed_size 0
  .amdhsa_kernarg_size 104
  .amdhsa_user_sgpr_count 2
  .amdhsa_user_sgpr_kernarg_segment_ptr 1
  .amdhsa_system_sgpr_workgroup_id_x 1
  .amdhsa_float_denorm_mode_32 3
.end_amdhsa_kernel
"""
    return head + body + foot, probs

if __name__ == "__main__":
    out = sys.argv[1]
    kw = {}
    for a in sys.argv[2:]:
        k, v = a.split("=")
        kw[k] = eval(v)
    txt, probs = gen(**kw)
    open(out, "w").write(txt)
```

```python
import re

class Gen:
    def __init__(self):
        self.items = []
        self.role = None
        self.q = []
        self.ndone = {}
        self.roles = ['A', 'B']
        self.done = {r: 0 for r in self.roles}
        self.nlabel = 0

    def I(self, s):
        for line in s.strip("\n").split("\n"):
            line = line.strip()
            if line:
                self.items.append((line, self.role))

    def label(self, name):
        self.items.append((name + ":", None))

    def begin(self, role, cond_skip):
        assert self.role is None
        self.nlabel += 1
        self.cur_label = f"L_skip{self.nlabel}"
        self.I(cond_skip + " " + self.cur_label)
        self.role = role

    def end(self):
        self.role = None
        self.label(self.cur_label)

    def vm(self, text, tag):
        self.I(text)
        self.q.append((tag, self.role))

    def _paths(self):
        return [self.role] if self.role else self.roles

    def _idx(self, tag, p):
        idx = [i for i, (t, r) in enumerate(self.q) if t == tag and (r is None or r == p)]
        assert len(idx) == 1, (tag, p, idx)
        return idx[0]

    def is_done(self, tag):
        return all(self.done[p] > self._idx(tag, p) for p in self._paths())

    def waitn(self, n):
        assert 0 <= n <= 63
        need = False
        newdone = {}
        for p in self._paths():
            ops = [i for i, (t, r) in enumerate(self.q) if r is None or r == p]
            k = len(ops) - n
            if k > 0:
                nd = ops[k - 1] + 1
                if nd > self.done[p]:
                    need = True
                    newdone[p] = nd
        if need:
            self.I(f"s_waitcnt vmcnt({n})")
            self.done.update(newdone)

    def wait(self, tag):
        n = None
        for p in self._paths():
            idx = self._idx(tag, p)
            if self.done[p] > idx:
                continue
            c = sum(1 for i, (t, r) in enumerate(self.q) if i > idx and (r is None or r == p))
            n = c if n is None else min(n, c)
        if n is not None:
            self.waitn(n)

    def ifelse_begin(self, role, cond_skip):
        self.begin(role, cond_skip)

    def ifelse_else(self, role2):
        self.nlabel += 1
        endl = f"L_join{self.nlabel}"
        self.I(f"s_branch {endl}")
        self.role = None
        self.label(self.cur_label)
        self.cur_label = endl
        self.role = role2

    def text(self):
        out = []
        for s, r in self.items:
            out.append(s if s.endswith(":") else "    " + s)
        return "\n".join(out) + "\n"

def regs_of(op):
    op = op.strip()
    op = op.replace("-", "").replace("abs(", "").replace(")", "").replace("|", "")
    m = re.fullmatch(r"([vsa])(\d+)", op)
    if m: return {(m.group(1), int(m.group(2)))}
    m = re.fullmatch(r"([vsa])\[(\d+):(\d+)\]", op)
    if m: return {(m.group(1), i) for i in range(int(m.group(2)), int(m.group(3)) + 1)}
    if op == "vcc": return {("vcc", 0)}
    if op == "exec": return {("exec", 0)}
    if op == "m0": return {("m0", 0)}
    return set()

TRANS = ("v_exp_f32", "v_log_f32", "v_rcp_f32", "v_rsq_f32", "v_sqrt_f32")

def parse(line):
    line = line.split(";")[0].strip()
    parts = line.split(None, 1)
    mn = parts[0]
    rest = parts[1] if len(parts) > 1 else ""
    ops = []
    depth = 0; cur = ""
    for ch in rest:
        if ch == "[": depth += 1
        if ch == "]": depth -= 1
        if ch == "," and depth == 0:
            ops.append(cur.strip()); cur = ""
        else:
            cur += ch
    if cur.strip(): ops.append(cur.strip())
    mods = ""
    if ops:
        last = ops[-1].split(None, 1)
        ops[-1] = last[0]
        mods = last[1] if len(last) > 1 else ""
    d = dict(mn=mn, ops=ops, mods=mods, w=set(), r=set(), kind="other", text=line)
    R = [regs_of(o) for o in ops]
    if mn.startswith("v_mfma"):
        d["kind"] = "mfma"; d["w"] = R[0]; d["ra"] = R[1] | R[2]; d["rc"] = R[3]; d["r"] = R[1] | R[2] | R[3]
    elif mn.startswith("v_cmp"):
        d["kind"] = "valu"; d["w"] = R[0]; d["r"] = set().union(*R[1:])
    elif mn.startswith("v_permlane"):
        d["kind"] = "valu"; d["w"] = R[0] | R[1]; d["r"] = R[0] | R[1]; d["perm"] = True
    elif mn.startswith("v_readfirstlane") or mn.startswith("v_readlane"):
        d["kind"] = "valu"; d["w"] = R[0]; d["r"] = set().union(*R[1:]); d["rl"] = True
    elif mn.startswith("v_"):
        d["kind"] = "valu"; d["w"] = R[0]; d["r"] = set().union(*R[1:]) if len(R) > 1 else set()
        if mn.startswith("v_dot2c") or mn.startswith("v_fmac") or mn.endswith("_dpp") or mn.startswith("v_writelane"):
            d["r"] = d["r"] | R[0]
        if mn.endswith("_dpp"):
            d["dpp"] = set().union(*R)
        if mn.startswith("v_dot"):
            d["dl"] = True
        if mn.startswith("v_cndmask") and len(ops) == 3:
            d["r"] |= {("vcc", 0)}
        if any(mn.startswith(t) for t in TRANS):
            d["trans"] = True
    elif mn.startswith("buffer_load") or mn.startswith("global_load"):
        d["kind"] = "vmem"
        if "lds" in mods.split():
            d["r"] = set().union(*R) | {("m0", 0)}
        else:
            d["w"] = R[0]; d["r"] = set().union(*R[1:])
    elif mn.startswith("buffer_store") or mn.startswith("buffer_atomic") or mn.startswith("global_store"):
        d["kind"] = "vmem"; d["r"] = set().union(*R)
        if "x4" in mn or "x3" in mn: d["wide"] = R[0]
        if mn.startswith("buffer_atomic") and "sc0" in mods: d["w"] = R[0]
    elif mn.startswith("ds_read") or "_rtn" in mn or mn.startswith("ds_bpermute") or mn.startswith("ds_swizzle"):
        d["kind"] = "ds"; d["w"] = R[0]; d["r"] = set().union(*R[1:])
    elif mn.startswith("ds_"):
        d["kind"] = "ds"; d["r"] = set().union(*R)
    elif mn.startswith("s_"):
        d["kind"] = "salu"
        if mn.startswith("s_cmp") or mn.startswith("s_cbranch") or mn in ("s_waitcnt", "s_nop", "s_barrier", "s_branch", "s_endpgm", "s_sleep", "s_setprio"):
            d["r"] = set().union(*R) if R else set()
        else:
            d["w"] = R[0] if R else set(); d["r"] = set().union(*R[1:]) if len(R) > 1 else set()
            if "saveexec" in mn: d["w"] |= {("exec", 0)}
    return d

def check(seq, name="", idxs=None, out=None):
    keep = [k for k, s in enumerate(seq) if not s.endswith(":") and not s.startswith(";")]
    ins = [parse(seq[k]) for k in keep]
    probs = []
    for j, c in enumerate(ins):
        dist = 0
        for i in range(j - 1, max(-1, j - 24), -1):
            p = ins[i]
            need = 0
            vw = {x for x in p["w"] if x[0] in "va"}
            sw = {x for x in p["w"] if x[0] in ("s", "vcc")}
            if p["kind"] == "valu":
                if c.get("dpp") and (vw & (c["dpp"])): need = max(need, 2)
                if c["kind"] == "mfma" and (vw & c["r"]): need = max(need, 2)
                if c.get("perm") and (vw & c["r"]): need = max(need, 2)
                if c.get("rl") and (vw & c["r"]): need = max(need, 1)
                if p.get("trans") and c["kind"] == "valu" and not c.get("trans") and (vw & c["r"]): need = max(need, 1)
                if p.get("dl") and (vw & (c["r"] | c["w"])):
                    same = c["mn"] == p["mn"]
                    if same:
                        if c["mn"].startswith("v_dot2c"):
                            ab = regs_of(c["ops"][1]) | regs_of(c["ops"][2])
                        else:
                            ab = regs_of(c["ops"][1]) | regs_of(c["ops"][2])
                        if vw & ab: need = max(need, 3)
                    else:
                        need = max(need, 3)
                if sw and c["kind"] == "vmem" and (sw & c["r"]): need = max(need, 5)
                if sw and c["kind"] in ("valu", "mfma") and (sw & c["r"]): need = max(need, 4 if c.get("rl") else 2)
                if ("exec", 0) in p["w"]: need = max(need, 5)
            if p["kind"] == "mfma":
                if c["kind"] == "mfma":
                    if p["w"] & c["ra"]: need = max(need, 8)
                    if (p["w"] & c["rc"]) and p["w"] != c["rc"]: need = max(need, 6)
                    if (p["w"] & c["w"]) and p["w"] != c["rc"]: need = max(need, 8)
                elif c["kind"] in ("valu", "vmem", "ds"):
                    if p["w"] & (c["r"] | c["w"]): need = max(need, 8)
                    if c["kind"] == "valu" and (p["rc"] & c["w"]): need = max(need, 3)
            if p.get("wide") and (p["wide"] & c["w"]): need = max(need, 2)
            if p["kind"] == "salu" and ("m0", 0) in p["w"] and ("m0", 0) in c["r"] and c["kind"] != "salu": need = max(need, 1)
            if p["kind"] == "salu" and ("exec", 0) in p["w"] and c.get("dpp"): pass
            if need > dist:
                probs.append(f"[{name}] need {need} have {dist}: '{p['text']}' -> '{c['text']}'")
                if out is not None:
                    k = idxs[keep[j]]
                    out[k] = max(out.get(k, 0), need - dist)
            if p["mn"] == "s_nop":
                dist += int(p["ops"][0], 0) + 1
            else:
                dist += 1
    return probs

def check_gen(g):
    probs = []
    for role in g.roles:
        seq = [s for s, r in g.items if r is None or r == role]
        probs += check(seq, role)
    return sorted(set(probs))

def fix_gen(g):
    n = 0
    while True:
        out = {}
        for role in g.roles:
            idxs = [i for i, (s, r) in enumerate(g.items) if r is None or r == role]
            check([g.items[i][0] for i in idxs], role, idxs, out)
        if not out:
            return n
        k = min(out)
        g.items.insert(k, (f"s_nop {out[k]-1}", g.items[k][1]))
        n += 1

def _need(p, c):
    need = 0
    vw = {x for x in p["w"] if x[0] in "va"}
    sw = {x for x in p["w"] if x[0] in ("s", "vcc")}
    if p["kind"] == "valu":
        if c.get("dpp") and (vw & (c["dpp"])): need = max(need, 2)
        if c["kind"] == "mfma" and (vw & c["r"]): need = max(need, 2)
        if c.get("perm") and (vw & c["r"]): need = max(need, 2)
        if c.get("rl") and (vw & c["r"]): need = max(need, 1)
        if p.get("trans") and c["kind"] == "valu" and not c.get("trans") and (vw & c["r"]): need = max(need, 1)
        if p.get("dl") and (vw & (c["r"] | c["w"])):
            if c["mn"] == p["mn"]:
                ab = regs_of(c["ops"][1]) | regs_of(c["ops"][2])
                if vw & ab: need = max(need, 3)
            else:
                need = max(need, 3)
        if sw and c["kind"] == "vmem" and (sw & c["r"]): need = max(need, 5)
        if sw and c["kind"] in ("valu", "mfma") and (sw & c["r"]): need = max(need, 4 if c.get("rl") else 2)
        if ("exec", 0) in p["w"]: need = max(need, 5)
    if p["kind"] == "mfma":
        if c["kind"] == "mfma":
            if p["w"] & c["ra"]: need = max(need, 8)
            if (p["w"] & c["rc"]) and (p["w"] != c["rc"] or p["mn"] != c["mn"]): need = max(need, 6)
            if (p["w"] & c["w"]) and p["w"] != c["rc"]: need = max(need, 8)
        elif c["kind"] in ("valu", "vmem", "ds"):
            if p["w"] & (c["r"] | c["w"]): need = max(need, 8)
            if c["kind"] == "valu" and (p["rc"] & c["w"]): need = max(need, 3)
    if p.get("wide") and (p["wide"] & c["w"]): need = max(need, 2)
    if p["kind"] == "salu" and ("m0", 0) in p["w"] and ("m0", 0) in c["r"] and c["kind"] != "salu": need = max(need, 1)
    return need

def cfg_problems(lines):
    idx = [k for k, s in enumerate(lines) if not s.endswith(":") and not s.startswith(";")]
    ins = [parse(lines[k]) for k in idx]
    pos = {}
    n = 0
    for k, s in enumerate(lines):
        if s.endswith(":"): pos[s[:-1]] = n
        elif not s.startswith(";"): n += 1
    preds = [[] for _ in ins]
    for j, c in enumerate(ins):
        if j + 1 < len(ins) and c["mn"] not in ("s_branch", "s_endpgm"): preds[j + 1].append(j)
        if c["mn"].startswith("s_cbranch") or c["mn"] == "s_branch":
            t = pos.get(c["ops"][0])
            if t is not None and t < len(ins): preds[t].append(j)
    out = {}; msgs = []
    for j, c in enumerate(ins):
        best = {}
        stack = [(p, 0) for p in preds[j]]
        while stack:
            i, dist = stack.pop()
            if dist >= 9 or best.get(i, 99) <= dist: continue
            best[i] = dist
            p = ins[i]
            need = _need(p, c)
            if need > dist:
                out[idx[j]] = max(out.get(idx[j], 0), need - dist)
                msgs.append(f"need {need} have {dist}: '{p['text']}' -> '{c['text']}'")
            d2 = dist + (int(p["ops"][0], 0) + 1 if p["mn"] == "s_nop" else 1)
            for q in preds[i]: stack.append((q, d2))
    return out, msgs

def fix_cfg(g):
    n = 0
    while True:
        out, msgs = cfg_problems([s for s, r in g.items])
        if not out: return n
        k = min(out)
        g.items.insert(k, (f"s_nop {out[k]-1}", g.items[k][1]))
        n += 1
```

```python
import sys, struct
from asmlib import Gen, fix_cfg, cfg_problems

KNAME = "gated_mix__sliding_block_cached__glu_gated_swiglu__decode_kernel"
def f2u(x): return struct.unpack("<I", struct.pack("<f", x))[0]

L_O, L_Q, L_H, L_G, L_ML, L_F = 0, 2304, 2560, 2816, 2848, 2912
L_X = 3072
L_P = L_X + 4096
LDS_BYTES = L_P + 16384
ACC_OFF = 1024 * 1024
STAMP_OFF = 4 * 1024 * 1024
WS_BYTES = 8 * 1024 * 1024

V_L16, V_WO, V_W2, V_KV, V_T0, V_T1, V_T2 = 1, 2, 3, 4, 5, 6, 7
Q = 8; MASK = 12; S = 16; A4 = 24; TT = 28; F = 30; ACC0 = 32; ACC1 = 36; AOP = 40
T = 48
V_S1 = 52; V_FAC = 52; V_MC = 53; V_XL = 54; V_I16 = 55
STG = 56
W2R = 72
X = 104
ZERO = 116
V_G = 120
V_C4 = 122; V_LH = 124; V_ST = 125; XU = 126
SLOT = 128
def slot(n): return SLOT + 4 * n
def r4(b): return f"v[{b}:{b+3}]"
def r2(b): return f"v[{b}:{b+1}]"
DPPF = "row_mask:0xf bank_mask:0xf"

def gen(D=5, PAT=(3,), PATV=None, FAST=1, PT=9, S1C=6, POLL=18, PW=4, SYNC=24, W2POS=(9, 11, 13, 15, 17, 19), WOK=(21, 23, 26, 29),
        WOPOS=(0, 2, 5, 7, 9, 11, 14, 16, 18, 21, 23, 26), B2AT=20, ZF=16, SL=2, BU=8, BW=3, B0=None, S1POS=None, PRE=0, WIDE=0, PEND=(57, 5), NB=None, XW=(), MLF=0, SYF=0, GW=0, ZW=1, PRIO=None, BQ=6, APOL='', OPOL='', ZPOL='sc1', SPEC=0, BS=64,
        stamps=False, kill=""):
    g = Gen(); g.roles = ['A']; g.done = {'A': 0}
    I = g.I
    if B0 is None: B0 = S1C + 2
    names = []
    def stamp(name):
        if stamps:
            if name not in names: names.append(name)
            k = names.index(name)
            assert k < 14
            I(f"s_memrealtime s[96:97]\ns_waitcnt lgkmcnt(0)\nv_writelane_b32 v{V_ST}, s96, {k}")
    def kvoff(n):
        return sum(((n >> k) & 1) << b for k, b in enumerate(NB))
    def kload(n):
        if NB:
            I(f"s_xor_b32 s74, s57, {kvoff(n)}")
            g.vm(f"buffer_load_dwordx4 {r4(slot(n))}, v{V_KV}, s[4:7], s74 offen nt", f"k{n}"); return
        if n % 4 == 0 and n > 0: I("s_add_u32 s74, s74, s75")
        g.vm(f"buffer_load_dwordx4 {r4(slot(n))}, v{V_KV}, s[4:7], s74 offen offset:{(n%4)*1024} nt", f"k{n}")
    def vload(n):
        if NB:
            I(f"s_xor_b32 s74, s57, {kvoff(n)}")
            g.vm(f"buffer_load_dwordx4 {r4(slot(n%8))}, v{V_KV}, s[8:11], s74 offen nt", f"v{n}"); return
        if n == 0: I("s_mov_b32 s74, s57")
        if n % 4 == 0 and n > 0: I("s_add_u32 s74, s74, s75")
        g.vm(f"buffer_load_dwordx4 {r4(slot(n%8))}, v{V_KV}, s[8:11], s74 offen offset:{(n%4)*1024} nt", f"v{n}")
    def w2load(j):
        so = ["0", "s84", "s75"][j // 2]
        g.vm(f"buffer_load_dwordx4 {r4(W2R+4*j)}, v{V_W2}, s[16:19], {so} offen offset:{(j%2)*1024} nt", f"w2_{j}")
    NE = 6
    def stage(n):
        if n < 4: return STG + 4 * n
        if n < NE: return W2R + 24 + 4 * (n - 4)
        return slot(24 + (n - NE) % 8)
    def woload(n):
        if n == 0: I("s_mov_b32 s83, 0")
        elif n % 2 == 0: I("s_add_u32 s83, s83, s84")
        g.vm(f"buffer_load_dwordx4 {r4(stage(n))}, v{V_WO}, s[12:15], s83 offen offset:{(n%2)*2048} nt", f"wo{n}")
    def s1load(j):
        g.vm(f"buffer_load_dwordx4 {r4(STG+4*j)}, v{V_S1}, s[20:23], s68 offen nt", f"s1_{j}")
        if j < 3: I(f"s_add_u32 s68, s68, {'s67' if j == 1 else 's76'}")

    if stamps: I("s_memrealtime s[60:61]")
    I(f"""
    s_load_dwordx2 s[4:5], s[0:1], 8
    s_load_dwordx2 s[28:29], s[0:1], 96
    s_lshr_b32 s3, s2, 8
    s_cbranch_scc1 L_end
    v_and_b32 v{V_L16}, 63, v0
    v_lshrrev_b32 v{V_T0}, 6, v0
    v_lshlrev_b32 v{V_L16}, 4, v{V_L16}
    """)
    if PT:
        I("; pull the kernel's own code towards L2 while the kernarg load is in flight\ns_getpc_b64 s[52:53]")
        g.label("L_pc")
        I(f"""
        v_mul_u32_u24 v{V_T2}, {PT*128}, v{V_T0}
        v_lshl_add_u32 v{V_T2}, v{V_L16}, 3, v{V_T2}
        v_min_u32 v{V_T2}, L_end-L_pc, v{V_T2}
        s_mov_b64 exec, {(1 << PT) - 1}
        global_load_dword v{S}, v{V_T2}, s[52:53]
        s_mov_b64 exec, -1
        """)
    I(f"""
    s_lshl_b32 s74, s2, 20
    v_lshl_add_u32 v{V_KV}, v{V_T0}, 12, v{V_L16}
    s_add_u32 s74, s74, 0xc0000
    s_brev_b32 s6, 8
    s_mov_b32 s7, 0x20000
    """)
    if NB:
        for (src, dst) in XW:
            I(f"s_bfe_u32 s57, s2, {(1<<16)|src:#x}\ns_lshl_b32 s57, s57, {dst}\ns_xor_b32 s74, s74, s57")
        I("s_mov_b32 s57, s74")
    if FAST:
        I("s_waitcnt lgkmcnt(0)")
        for n in range(FAST): kload(n)
    if stamps:
        names += ["start", "k0", "k1"]
        I("s_memrealtime s[58:59]")
    I(f"""
    v_readfirstlane_b32 s3, v{V_T0}
    s_bfe_u32 s70, s2, 0x20005
    s_load_dwordx2 s[24:25], s[0:1], 0
    s_lshl_b32 s86, s70, 3
    s_add_u32 s86, s86, 32
    s_cmp_lt_u32 s70, 2
    s_cselect_b32 s86, 24, s86
    s_load_dwordx2 s[20:21], s[0:1], s86
    s_lshr_b32 s44, s2, 5
    s_and_b32 s45, s2, 31
    s_and_b32 s87, s45, 7
    s_lshl_b32 s87, s87, 2
    s_lshr_b32 s88, s45, 3
    s_add_u32 s87, s87, s88
    s_mul_i32 s87, s87, {16*43691}
    s_add_u32 s87, s87, {2*43691}
    s_lshr_b32 s78, s87, 17
    s_add_u32 s87, s87, {16*43691}
    s_lshr_b32 s79, s87, 17
    s_cmp_eq_u32 s79, 171
    s_addc_u32 s79, s79, 0
    s_sub_u32 s89, s79, s78
    s_movk_i32 s26, 8192
    s_lshl_b32 s87, s45, 8
    s_lshl_b32 s88, s70, 7
    s_add_u32 s87, s87, s88
    s_lshl_b32 s88, s78, 4
    s_cmp_lt_u32 s70, 2
    s_cselect_b32 s76, s26, 2752
    s_cselect_b32 s87, s87, s88
    s_cselect_b32 s89, 8, s89
    s_lshl_b32 s22, s76, 9
    s_mov_b32 s23, 0x20000
    s_mov_b32 s27, 0x20000
    s_lshr_b32 s88, s44, 2
    s_lshl_b32 s88, s88, 3
    s_add_u32 s88, s88, s3
    s_lshl_b32 s69, s88, 6
    s_lshl_b32 s88, s88, 5
    s_mul_i32 s88, s88, s76
    s_add_u32 s68, s87, s88
    s_mul_i32 s67, s76, 15
    v_bfe_u32 v{T}, v0, 3, 3
    v_and_b32 v{V_T2}, 7, v0
    v_lshlrev_b32 v{T+1}, 1, v{T}
    v_lshlrev_b32 v{V_I16}, 4, v{V_T2}
    v_cmp_gt_u32 vcc, s89, v{V_T2}
    v_mad_u32_u24 v{V_S1}, v{T+1}, s76, v{V_I16}
    v_bfrev_b32 v{T+2}, 1
    v_cndmask_b32 v{V_S1}, v{T+2}, v{V_S1}, vcc
    v_lshlrev_b32 v{V_T2}, 3, v{V_T2}
    v_lshl_add_u32 v{T+3}, v{T}, 10, v{V_T2}
    {'' if NB else 's_mov_b32 s57, s74'}
    s_mov_b32 s75, 0x8000
    """)
    if "s" in kill: I("s_mov_b32 s22, 0")
    I("s_waitcnt lgkmcnt(0)")
    if stamps: I("s_memrealtime s[54:55]\ns_memtime s[64:65]")
    XOP = X + 8; Y = X
    s1n = [0]
    def s1_at(n):
        while s1n[0] < 4 and (S1POS is None or S1POS[s1n[0]] <= n):
            s1load(s1n[0]); s1n[0] += 1
    g.vm(f"buffer_load_dwordx2 {r2(XOP)}, v{T+3}, s[24:27], s69 offen", "xop")
    s1_at(FAST - 1)
    D0 = max(PAT[0] if PAT else D, FAST)
    for n in range(FAST, D0):
        kload(n); s1_at(n)
    I(f"""
    s_load_dwordx2 s[8:9], s[0:1], 16
    s_load_dwordx2 s[12:13], s[0:1], 32
    s_load_dwordx2 s[16:17], s[0:1], 64
    s_load_dwordx2 s[32:33], s[0:1], 88
    s_load_dwordx2 s[36:37], s[0:1], 80
    s_load_dwordx2 s[40:41], s[0:1], 72
    s_lshl_b32 s81, s45, 15
    s_lshl_b32 s87, s3, 7                 ; 128 w
    s_add_u32 s99, s81, 0x4000
    s_lshl_b32 s88, s44, 7
    s_add_u32 s100, s99, s88
    s_add_u32 s99, s99, s87
    s_waitcnt lgkmcnt(0)
    s_load_dword s98, s[28:29], s100
    s_load_dword s85, s[28:29], s99
    s_mov_b32 s30, {WS_BYTES}
    s_mov_b32 s31, 0x20000
    s_brev_b32 s10, 8
    s_mov_b32 s11, 0x20000
    s_mov_b32 s14, 0x400000
    s_mov_b32 s15, 0x20000
    s_lshl_b32 s18, s79, 13
    s_mov_b32 s19, 0x20000
    s_movk_i32 s34, 256
    s_mov_b32 s35, 0x20000
    s_movk_i32 s38, 8192
    s_mov_b32 s39, 0x20000
    s_movk_i32 s42, 1024
    s_mov_b32 s43, 0x20000
    s_cmp_lg_u32 s3, {GW}
    s_cbranch_scc1 L_nogl
    s_lshl_b32 s88, s44, 10
    buffer_load_dwordx4 {r4(AOP)}, v{V_L16}, s[24:27], s88 offen
    buffer_load_dwordx4 {r4(AOP+4)}, v{V_L16}, s[40:43], 0 offen
    """)
    g.label("L_nogl")
    g.q.append(("gmark", None))
    g.q.pop()
    gate_after = len(g.q)
    I(f"""
    s_mov_b32 s46, 0x05040100
    s_mov_b32 s47, 0x07060302
    s_movk_i32 s84, 16384
    s_mov_b32 s93, {f2u(1.4426950408889634):#x}
    s_mov_b32 s94, {f2u(128 ** -0.5):#x}
    s_mov_b32 s95, 0xffff0000
    s_lshl_b32 s89, s78, 13
    s_add_u32 s89, s89, s87
    v_lshl_add_u32 v{V_W2}, v{T+1}, 10, v{V_I16}
    v_add_u32 v{V_W2}, s89, v{V_W2}
    s_lshl_b32 s89, s45, 17
    s_add_u32 s89, s89, s87
    v_add_u32 v{V_WO}, s89, v{V_I16}
    v_bfe_u32 v{V_T0}, v0, 4, 2
    v_lshl_add_u32 v{V_WO}, v{V_T0}, 12, v{V_WO}
    v_bfe_u32 v{V_T1}, v0, 3, 1
    v_lshl_add_u32 v{V_WO}, v{V_T1}, 10, v{V_WO}
    v_lshl_add_u32 v{V_XL}, v{T}, 11, v{V_I16}
    v_and_b32 v{V_T1}, 1, v0
    v_lshl_add_u32 v{V_T1}, v{V_T0}, 1, v{V_T1}
    v_lshlrev_b32 v{V_LH}, 2, v{V_T1}                ; (2g + kh)*4
    s_lshl_b32 s89, s44, 11
    s_add_u32 s80, s81, s89
    s_lshl_b32 s89, s3, 8
    s_add_u32 s80, s80, s89
    s_lshl_b32 s89, s44, 8
    s_add_u32 s81, s81, s89
    s_and_b32 s89, s87, 128
    s_add_u32 s81, s81, s89
    s_lshl_b32 s82, s44, 12
    s_add_u32 s82, s82, {ACC_OFF}
    s_lshr_b32 s101, s2, 3
    s_lshl_b32 s101, s101, 3
    s_add_u32 s101, s101, s3
    ; masks
    v_and_b32 v{V_T1}, 1, v0
    v_lshlrev_b32 v{V_T1}, 4, v{V_T1}
    v_mov_b32 v{V_T2}, 0xffff
    v_lshlrev_b32 v{V_T1}, v{V_T1}, v{V_T2}
    v_bfe_u32 v{V_T2}, v0, 1, 2
    """)
    fill = [f"v_mov_b32 v{ZERO}, 0\nv_mov_b32 v{ZERO+1}, 0", f"v_mov_b32 v{ZERO+2}, 0\nv_mov_b32 v{ZERO+3}, 0",
            f"v_mov_b32 v{F}, 1.0\nv_mov_b32 v{F+1}, 1.0", f"v_mov_b32 v{XU}, 0\nv_mov_b32 v{XU+1}, 0"]
    for r in range(4):
        I(f"v_cmp_eq_u32 vcc, {r}, v{V_T2}\n{fill[r]}\nv_cndmask_b32 v{MASK+r}, 0, v{V_T1}, vcc")
    if SL:
        I(f"""
        s_lshr_b32 s87, s70, 1
        s_xor_b32 s87, s87, 1
        s_mul_i32 s71, s87, {BU}
        s_sub_u32 s87, s78, s79
        s_add_u32 s87, s87, 6
        s_mul_i32 s87, s87, {BW}
        s_add_u32 s71, s71, s87
        """)
        if BQ:
            I(f"s_and_b32 s87, s2, 0x63\ns_cmp_eq_u32 s87, 0x21\ns_cselect_b32 s87, {BQ}, 0\ns_sub_u32 s71, s71, s87")
    if WIDE == 1:
        I(f"""
        v_and_b32 v{V_T1}, 0xf0, v{V_L16}
        v_bfe_u32 v{V_T2}, v0, 7, 2
        v_lshl_add_u32 v{V_T1}, v{V_T2}, 8, v{V_T1}
        v_bfe_u32 v{V_T2}, v0, 4, 2
        v_lshl_add_u32 v{V_T1}, v{V_T2}, 12, v{V_T1}
        v_bfe_u32 v{V_T2}, v0, 6, 1
        s_lshl_b32 s89, s45, 17
        v_lshl_add_u32 v{V_WO}, v{V_T2}, 10, v{V_T1}
        v_add_u32 v{V_WO}, s89, v{V_WO}
        s_lshl_b32 s89, s78, 13
        v_lshl_add_u32 v{V_W2}, v{V_T2}, 11, v{V_T1}
        v_add_u32 v{V_W2}, s89, v{V_W2}
        """)
    if WIDE == 2:
        I(f"""
        v_bfe_u32 v{V_T2}, v0, 7, 2
        v_lshl_add_u32 v{V_T1}, v{V_T2}, 12, v{V_L16}
        v_bfe_u32 v{V_T2}, v0, 6, 1
        s_lshl_b32 s89, s45, 17
        v_lshl_add_u32 v{V_WO}, v{V_T2}, 10, v{V_T1}
        v_add_u32 v{V_WO}, s89, v{V_WO}
        s_lshl_b32 s89, s78, 13
        v_lshl_add_u32 v{V_W2}, v{V_T2}, 11, v{V_T1}
        v_add_u32 v{V_W2}, s89, v{V_W2}
        """)
    if "o" in kill: I("s_mov_b32 s14, 0")
    if "2" in kill: I("s_mov_b32 s18, 0")
    if "x" in kill: I(f"s_mov_b32 s80, {WS_BYTES}\ns_mov_b32 s81, {WS_BYTES}")
    if BS:
        import math
        lb = int(math.log2(BS))
        I(f"""
        v_bfe_u32 v{V_C4}, v0, 4, 2
        v_and_b32 v{V_T1}, 15, v0
        v_lshlrev_b32 v{V_C4}, {lb}, v{V_C4}
        v_lshl_add_u32 v{V_C4}, v{V_T1}, 2, v{V_C4}
        s_lshr_b32 s88, s2, 3
        s_cmp_lg_u32 s88, 1
        s_cbranch_scc1 L_nozero
        s_and_b32 s88, s2, 7
        s_lshl_b32 s88, s88, 3
        s_add_u32 s88, s88, s3
        s_lshl_b32 s88, s88, {lb+3}
        s_add_u32 s88, s88, {ACC_OFF}
        buffer_store_dword v{ZERO}, v{V_C4}, s[28:31], s88 offen {ZPOL}
        buffer_store_dword v{ZERO}, v{V_C4}, s[28:31], s88 offen offset:{4*BS} {ZPOL}
        """)
        ZF = SYNC + 1
    else:
        I(f"""
        s_cmp_lg_u32 s101, {8+ZW}
        s_cbranch_scc1 L_nozero
        s_and_b32 s88, s2, 7
        s_lshl_b32 s88, s88, 12
        s_add_u32 s88, s88, {ACC_OFF}
        buffer_store_dwordx4 {r4(ZERO)}, v{V_L16}, s[28:31], s88 offen {ZPOL}
        buffer_store_dwordx4 {r4(ZERO)}, v{V_L16}, s[28:31], s88 offen offset:1024 {ZPOL}
        buffer_store_dwordx4 {r4(ZERO)}, v{V_L16}, s[28:31], s88 offen offset:2048 {ZPOL}
        buffer_store_dwordx4 {r4(ZERO)}, v{V_L16}, s[28:31], s88 offen offset:3072 {ZPOL}
        """)
    g.label("L_nozero")
    if stamps:
        I(f"s_waitcnt lgkmcnt(0)\nv_mov_b32 v{V_ST}, 0\nv_writelane_b32 v{V_ST}, s60, 0\nv_writelane_b32 v{V_ST}, s58, 1\nv_writelane_b32 v{V_ST}, s54, 2")
    stamp("b0")

    W1FR = slot(20); W1ACC = slot(24)
    def stage1a():
        I(f"""
        s_lshl_b32 s87, s3, 9
        s_add_u32 s87, s87, {L_X}
        v_lshrrev_b32 v{A4}, 1, v{V_L16}
        v_add_u32 v{A4}, s87, v{A4}
        v_bfe_u32 v{A4+1}, v0, 1, 3
        v_lshl_add_u32 v{A4+1}, v{A4+1}, 6, v{V_LH}
        v_add_u32 v{A4+1}, s87, v{A4+1}
        """)
        if MLF or SYF:
            I(f"v_lshrrev_b32 v{A4+2}, 2, v{V_L16}\nv_and_b32 v{A4+2}, 0x7c, v{A4+2}\nds_write_b32 v{A4+2}, v{ZERO} offset:{L_ML}")
        g.wait("xop")
        I(f"""
        ds_write_b64 v{A4}, {r2(XOP)}
        ds_read2_b32 {r2(XOP)}, v{A4+1} offset0:0 offset1:8
        s_lshl_b32 s87, s3, 11
        v_lshl_add_u32 v{A4+2}, v{V_L16}, 1, s87
        """)
        for jj in range(2):
            g.wait(f"s1_{2*jj+1}")
            for q in range(4):
                for e in range(2):
                    I(f"v_perm_b32 v{W1FR+2*(2*q+e)+jj}, v{STG+4*(2*jj+1)+q}, v{STG+4*(2*jj)+q}, s{46+e}")
        I("s_waitcnt lgkmcnt(0)")
        for c in range(8):
            I(f"v_mfma_f32_16x16x16_bf16 {r4(W1ACC+4*c)}, {r2(XOP)}, {r2(W1FR+2*c)}, 0")
        for c in range(8):
            a = W1ACC + 4 * c
            I(f"v_add_f32_dpp v{Y+c}, v{a+1}, v{a} row_ror:8 row_mask:0xf bank_mask:0x3")
            I(f"v_add_f32_dpp v{Y+c}, v{a+2}, v{a+3} row_ror:8 row_mask:0xf bank_mask:0xc")
        I(f"""
        ds_write_b128 v{A4+2}, {r4(Y)} offset:{L_P}
        ds_write_b128 v{A4+2}, {r4(Y+4)} offset:{L_P+16}
        s_getreg_b32 s92, hwreg(HW_REG_XCC_ID, 0, 3)
        s_add_u32 s98, s98, 0x01010101
        s_add_u32 s85, s85, 0x01010101
        s_lshl_b32 s92, s92, 24
        s_and_b32 s73, s98, 0xf8ffffff
        s_or_b32 s73, s73, s92
        s_and_b32 s85, s85, 0xf8ffffff
        s_or_b32 s85, s85, s92
        v_and_b32 v{A4}, 0xf0, v{V_L16}
        v_bfe_u32 v{A4+1}, v0, 4, 2
        s_lshl_b32 s87, s3, 8
        v_lshl_add_u32 v{A4+1}, v{A4+1}, 11, v{A4}
        v_add_u32 v{A4+1}, s87, v{A4+1}
        v_bfe_u32 v{A4+2}, v0, 4, 1
        v_bfe_u32 v{A4+3}, v0, 5, 1
        v_lshl_add_u32 v{A4+2}, v{A4+2}, 1, v{A4+3} ; c4 = 2(g&1) + (g>>1)
        v_lshl_add_u32 v{A4}, v{A4+2}, 2, v{A4}
        v_lshlrev_b32 v{A4+2}, 3, v{A4+2}
        v_lshrrev_b32 v{A4+2}, v{A4+2}, s85
        s_movk_i32 s88, 0xff
        """)
    def stage1b():
        I(f"""
        s_waitcnt lgkmcnt(0)
        s_barrier
        ds_read_b128 {r4(Y)}, v{A4+1} offset:{L_P}
        ds_read_b128 {r4(Y+4)}, v{A4+1} offset:{L_P+8192}
        s_waitcnt lgkmcnt(0)
        v_pk_add_f32 {r2(Y)}, {r2(Y)}, {r2(Y+4)}
        v_pk_add_f32 {r2(Y+2)}, {r2(Y+2)}, {r2(Y+6)}
        v_permlane32_swap_b32 v{Y}, v{Y+1}
        v_permlane32_swap_b32 v{Y+2}, v{Y+3}
        v_add_f32 v{Y}, v{Y}, v{Y+1}
        v_add_f32 v{Y+2}, v{Y+2}, v{Y+3}
        v_permlane16_swap_b32 v{Y}, v{Y+2}
        v_add_f32 v{Y}, v{Y}, v{Y+2}
        v_bfi_b32 v{Y}, s88, v{A4+2}, v{Y}
        """)
        g.vm(f"buffer_store_dword v{Y}, v{A4}, s[28:31], s80 offen", "ex0")
        stamp("s1done")

    def allred(v, t, op):
        I(f"""
        {op}_dpp v{v}, v{v}, v{v} row_ror:4 {DPPF}
        {op}_dpp v{v}, v{v}, v{v} row_ror:8 {DPPF}
        v_mov_b32 v{t}, v{v}
        v_permlane16_swap_b32 v{v}, v{t}
        {op} v{v}, v{v}, v{t}
        v_mov_b32 v{t}, v{v}
        v_permlane32_swap_b32 v{v}, v{t}
        {op} v{v}, v{v}, v{t}
        """)

    def gate():
        a, b, c, d = ACC0, ACC0 + 1, ACC0 + 2, ACC0 + 3
        I(f"s_cmp_lg_u32 s3, {GW}\ns_cbranch_scc1 L_nogate")
        for q in range(4):
            I(f"""
            v_lshlrev_b32 v{a}, 16, v{AOP+q}
            v_and_b32 v{b}, s95, v{AOP+q}
            v_lshlrev_b32 v{c}, 16, v{AOP+4+q}
            v_and_b32 v{d}, s95, v{AOP+4+q}
            v_mul_f32 v{a}, v{a}, v{c}
            v_mul_f32 v{b}, v{b}, v{d}
            v_cvt_pk_bf16_f32 v{AOP+q}, v{a}, v{b}
            """)
        I(f"""
        v_mov_b32 v{a}, 0
        v_mov_b32 v{b}, 0x3f803f80
        v_dot2c_f32_bf16 v{a}, v{AOP}, v{b}
        v_dot2c_f32_bf16 v{a}, v{AOP+1}, v{b}
        v_dot2c_f32_bf16 v{a}, v{AOP+2}, v{b}
        v_dot2c_f32_bf16 v{a}, v{AOP+3}, v{b}
        v_add_f32_dpp v{a}, v{a}, v{a} quad_perm:[1,0,3,2] {DPPF}
        v_add_f32_dpp v{a}, v{a}, v{a} quad_perm:[2,3,0,1] {DPPF}
        """)
        allred(a, b, "v_add_f32")
        I(f"""
        v_cvt_pk_bf16_f32 v{a}, v{a}, v{a}
        v_and_b32 v{a}, s95, v{a}
        v_mul_f32 v{a}, s93, v{a}
        v_exp_f32 v{a}, -v{a}
        v_add_f32 v{a}, 1.0, v{a}
        v_rcp_f32 v{a}, v{a}
        v_cvt_pk_bf16_f32 v{a}, v{a}, v{a}
        v_and_b32 v{a}, s95, v{a}
        v_sub_f32 v{b}, 1.0, v{a}
        v_cvt_pk_bf16_f32 v{b}, v{b}, v{b}
        v_and_b32 v{b}, s95, v{b}
        ds_write_b64 v{ZERO}, {r2(a)} offset:{L_G}
        """)
        g.label("L_nogate")

    PX = X + 4
    def consumer():
        I(f"""
        v_bfe_u32 v{X}, v0, 3, 2
        v_lshrrev_b32 v{X+1}, 1, v{V_I16}
        v_lshl_add_u32 v{X}, v{X}, 7, v{X+1}
        v_bfe_u32 v{X+1}, v0, 5, 1
        v_lshl_add_u32 v{X}, v{X+1}, 2, v{X}
        v_and_b32 v{X+1}, 64, v0
        v_add_u32 v{X}, v{X+1}, v{X}
        s_mov_b32 s92, {0 if "x" in kill else 200000}
        s_mov_b32 s88, 0x0c0c0400
        s_mov_b32 s89, 0x04000c0c
        s_mov_b32 s90, -1
        s_movk_i32 s91, 0xff00
        """)
        g.wait("px")
        g.label("L_poll")
        I(f"""
        v_perm_b32 v{X+2}, v{PX+1}, v{PX}, s88
        v_perm_b32 v{X+3}, v{PX+3}, v{PX+2}, s89
        v_or_b32 v{X+2}, v{X+2}, v{X+3}
        v_xor_b32 v{X+2}, s73, v{X+2}
        v_and_b32 v{X+2}, s90, v{X+2}
        v_cmp_ne_u32 vcc, 0, v{X+2}
        s_cbranch_vccz L_polled
        s_sub_u32 s92, s92, 1
        s_cbranch_scc1 L_polled
        s_cmp_gt_u32 s92, {200000 - 5}
        s_cbranch_scc1 L_reload
        s_cmp_eq_u32 s90, -1
        s_cbranch_scc0 L_flushed
        s_mov_b32 s90, 0xf8ffffff
        s_waitcnt vmcnt(0)
        buffer_wbl2 sc1
        s_waitcnt vmcnt(0)""")
        g.label("L_flushed")
        I("buffer_inv sc1")
        g.label("L_reload")
        I(f"""
        buffer_load_dwordx4 {r4(PX)}, v{V_XL}, s[28:31], s81 offen sc1
        s_waitcnt vmcnt(0)
        s_branch L_poll""")
        g.label("L_polled")
        stamp("x2")
        if stamps: I(f"s_sub_u32 s96, 200000, s92\nv_writelane_b32 v{V_ST}, s96, 1")
        a, b, e0, e1 = X + 8, X + 9, X + 10, X + 11
        I(f"""
        v_and_b32 v{PX}, s91, v{PX}
        v_and_b32 v{PX+2}, s91, v{PX+2}
        v_and_b32 v{PX+1}, s91, v{PX+1}
        v_and_b32 v{PX+3}, s91, v{PX+3}
        v_permlane32_swap_b32 v{PX}, v{PX+2}
        v_permlane32_swap_b32 v{PX+1}, v{PX+3}
        v_add_f32 v{PX}, v{PX}, v{PX+2}
        v_add_f32 v{PX+1}, v{PX+1}, v{PX+3}
        v_cvt_pk_bf16_f32 v{PX}, v{PX}, v{PX+1}
        v_lshlrev_b32 v{a}, 16, v{PX}
        v_and_b32 v{b}, s95, v{PX}
        v_mul_f32 v{e0}, s93, v{a}
        v_mul_f32 v{e1}, s93, v{b}
        v_exp_f32 v{e0}, -v{e0}
        v_exp_f32 v{e1}, -v{e1}
        v_add_f32 v{e0}, 1.0, v{e0}
        v_add_f32 v{e1}, 1.0, v{e1}
        v_rcp_f32 v{e0}, v{e0}
        v_rcp_f32 v{e1}, v{e1}
        v_mul_f32 v{e0}, v{e0}, v{a}
        v_mul_f32 v{e1}, v{e1}, v{b}
        v_cvt_pk_bf16_f32 v{e1}, v{e0}, v{e1}
        v_lshlrev_b32 v{e0}, 16, v{e1}
        v_and_b32 v{e1}, s95, v{e1}
        v_mul_f32_dpp v{e0}, v{a}, v{e0} row_ror:8 {DPPF}
        v_mul_f32_dpp v{e1}, v{b}, v{e1} row_ror:8 {DPPF}
        v_cvt_pk_bf16_f32 v{e0}, v{e0}, v{e1}
        v_mov_b32_dpp v{PX}, v{e0} quad_perm:[0,1,2,3] row_mask:0xa bank_mask:0xf
        ds_write_b32 v{X}, v{PX} offset:{L_Q}
        """)
        if SYF:
            assert gate_done
            I(f"s_lshl_b32 s88, s3, 2\nv_mov_b32 v{X+1}, s88\nv_mov_b32 v{X+2}, 1\nds_write_b32 v{X+1}, v{X+2} offset:{L_F}")

    kgroups_done = [0]
    def consume_group(k):
        s0 = 4 * k
        for i in range(4):
            I(f"v_dot2_f32_bf16 v{A4+i}, v{slot(s0+i)}, v{Q}, 0")
        for q in range(1, 4):
            for i in range(4):
                I(f"v_dot2c_f32_bf16 v{A4+i}, v{slot(s0+i)+q}, v{Q+q}")
        I(f"""
        v_add_f32_dpp v{TT}, v{A4}, v{A4} row_ror:8 row_mask:0xf bank_mask:0x3
        v_add_f32_dpp v{TT}, v{A4+1}, v{A4+1} row_ror:8 row_mask:0xf bank_mask:0xc
        v_add_f32_dpp v{TT+1}, v{A4+2}, v{A4+2} row_ror:8 row_mask:0xf bank_mask:0x3
        v_add_f32_dpp v{TT+1}, v{A4+3}, v{A4+3} row_ror:8 row_mask:0xf bank_mask:0xc
        v_add_f32_dpp v{S+k}, v{TT}, v{TT} row_half_mirror row_mask:0xf bank_mask:0x5
        v_add_f32_dpp v{S+k}, v{TT+1}, v{TT+1} row_half_mirror row_mask:0xf bank_mask:0xa
        v_add_f32_dpp v{S+k}, v{S+k}, v{S+k} quad_perm:[1,0,3,2] {DPPF}
        v_add_f32_dpp v{S+k}, v{S+k}, v{S+k} quad_perm:[2,3,0,1] {DPPF}
        """)
        if k % 2 == 1:
            a, b = S + k - 1, S + k
            I(f"""
            v_cvt_pk_bf16_f32 v{TT}, v{a}, v{b}
            v_lshlrev_b32 v{a}, 16, v{TT}
            v_and_b32 v{b}, s95, v{TT}
            v_mul_f32 v{a}, s94, v{a}
            v_mul_f32 v{b}, s94, v{b}
            v_cvt_pk_bf16_f32 v{TT}, v{a}, v{b}
            v_lshlrev_b32 v{a}, 16, v{TT}
            v_and_b32 v{b}, s95, v{TT}
            """)
        kgroups_done[0] = k + 1

    def softmax1():
        m = TT
        I(f"""
        v_max3_f32 v{m}, v{S}, v{S+1}, v{S+2}
        v_max3_f32 v{m}, v{m}, v{S+3}, v{S+4}
        v_max3_f32 v{m}, v{m}, v{S+5}, v{S+6}
        v_max_f32 v{m}, v{m}, v{S+7}
        """)
        allred(m, A4, "v_max_f32")
        I(f"v_mul_f32 v{m}, s93, v{m}")
        for k in range(8):
            I(f"v_fma_f32 v{S+k}, v{S+k}, s93, -v{m}")
    def softmax2():
        for k in range(8):
            I(f"v_exp_f32 v{S+k}, v{S+k}")
        l = TT + 1
        I(f"v_add_f32 v{l}, v{S}, v{S+1}")
        for k in range(2, 8):
            I(f"v_add_f32 v{l}, v{l}, v{S+k}")
        for k in range(8):
            I(f"v_cvt_pk_bf16_f32 v{S+k}, v{S+k}, v{S+k}")
    def softmax3():
        allred(TT + 1, A4, "v_add_f32")
        I(f"""
        s_lshl_b32 s88, s3, 3
        v_mov_b32 v{A4}, s88
        v_mov_b32 v{V_MC}, v{TT}
        ds_write_b64 v{A4}, {r2(TT)} offset:{L_ML}
        s_lshl_b32 s99, s44, 5
        s_load_dword s98, s[32:33], s99
        """)

    def ffn_mm(q):
        if q == 0: I(f"v_mov_b32 v{X+3}, 0\nv_mov_b32 v{X+7}, 0")
        for e in range(2):
            for jj in range(3):
                I(f"v_perm_b32 v{X+4*e+jj}, v{W2R+4*(2*jj+1)+q}, v{W2R+4*(2*jj)+q}, s{46+e}")
        for e in range(2):
            I(f"v_mfma_f32_16x16x32_bf16 {r4(X+8+4*e)}, {r4(T)}, {r4(X+4*e)}, 0")
    def ffn_fold(q):
        for e in range(2):
            c = 2 * q + e
            a = X + 8 + 4 * e
            I(f"v_add_f32_dpp v{F+c//4}, v{a+1}, v{a} row_ror:8 row_mask:{1 << (c%4):#x} bank_mask:0x3")
        if q == 3:
            for u in range(2):
                I(f"v_mul_f32_dpp v{F+u}, v{F+u}, v{V_G+1} quad_perm:[0,1,2,3] row_mask:0xf bank_mask:0x3")

    def build_a(t):
        k, half = t // 2, t % 2
        for r in range(4):
            mir = (r >= 2) != (half == 1)
            d = AOP + 4 * (t % 2) + r
            if mir: I(f"v_and_b32_dpp v{d}, v{S+k}, v{MASK+r} row_half_mirror {DPPF}")
            else: I(f"v_and_b32 v{d}, v{S+k}, v{MASK+r}")

    vdone = [0]
    def pv(n):
        t = n // 2
        acc = ACC0 if n % 2 == 0 else ACC1
        c = "0" if n < 2 else r4(acc)
        I(f"v_mfma_f32_16x16x32_bf16 {r4(acc)}, {r4(AOP+4*(t%2))}, {r4(slot(n%8))}, {c}")
        vdone[0] = n + 1
        if n % 2 == 1 and t + 2 < 16: build_a(t + 2)

    wopairs = [0]
    def wo_perm(p):
        grp, jj = p // 4, p % 4
        a, b = stage(2 * p), stage(2 * p + 1)
        for q in range(4):
            for e in range(2):
                I(f"v_perm_b32 v{slot(8)+32*grp+4*(2*q+e)+jj}, v{b+q}, v{a+q}, s{46+e}")
        wopairs[0] = p + 1

    def ml_issue():
        I(f"""
        v_and_b32 v{A4+3}, 7, v0
        v_lshlrev_b32 v{A4+3}, 3, v{A4+3}
        s_waitcnt lgkmcnt(0)
        {"" if MLF else "s_barrier"}
        ds_read_b64 {r2(A4)}, v{A4+3} offset:{L_ML}
        s_cmp_eq_u32 s98, 1
        s_cbranch_scc1 L_zok
        s_mov_b32 s92, 200000
        v_mov_b32 v{TT}, 0
        s_mov_b64 exec, 1""")
        g.label("L_zpoll")
        I(f"""
        buffer_load_dword v{TT+1}, v{TT}, s[32:35], s99 offen sc1
        s_waitcnt vmcnt(0)
        v_cmp_eq_u32 vcc, 1, v{TT+1}
        s_cbranch_vccnz L_zdone
        s_sub_u32 s92, s92, 1
        s_cbranch_scc0 L_zpoll""")
        g.label("L_zdone")
        I("s_mov_b64 exec, -1")
        g.label("L_zok")
    def ml_combine():
        if MLF:
            g.label("L_ml")
            I(f"""
            s_waitcnt lgkmcnt(0)
            v_cmp_eq_u32 vcc, 0, v{A4+1}
            s_cbranch_vccz L_mlok
            ds_read_b64 {r2(A4)}, v{A4+3} offset:{L_ML}
            s_branch L_ml""")
            g.label("L_mlok")
        I(f"""
        s_waitcnt lgkmcnt(0)
        v_max_f32_dpp v{A4+2}, v{A4}, v{A4} quad_perm:[1,0,3,2] {DPPF}
        v_lshrrev_b32 v{V_T2}, 2, v{V_L16}
        s_mul_i32 s88, s3, 288
        v_max_f32_dpp v{A4+2}, v{A4+2}, v{A4+2} quad_perm:[2,3,0,1] {DPPF}
        v_and_b32 v{V_T0}, 32, v0
        v_bfe_u32 v{V_T1}, v0, 1, 3
        v_max_f32_dpp v{A4+2}, v{A4+2}, v{A4+2} row_half_mirror {DPPF}
        v_sub_f32 v{A4}, v{A4}, v{A4+2}
        v_sub_f32 v{V_MC}, v{V_MC}, v{A4+2}
        v_exp_f32 v{A4}, v{A4}
        v_exp_f32 v{V_MC}, v{V_MC}
        v_mul_f32 v{A4}, v{A4}, v{A4+1}
        v_mul_f32 v{V_MC}, v{V_MC}, v{V_G}
        v_mul_u32_u24 v{V_T1}, 288, v{V_T1}
        v_add_f32_dpp v{A4}, v{A4}, v{A4} quad_perm:[1,0,3,2] {DPPF}
        v_and_b32 v{A4+1}, 1, v0
        v_lshl_add_u32 v{V_T1}, v{A4+1}, 7, v{V_T1}
        v_add_f32_dpp v{A4}, v{A4}, v{A4} quad_perm:[2,3,0,1] {DPPF}
        v_lshl_add_u32 v{V_T0}, v{A4+1}, 3, v{V_T0}
        v_and_b32 v{A4+1}, 48, v0
        v_add_f32_dpp v{A4}, v{A4}, v{A4} row_half_mirror {DPPF}
        v_add_u32 v{V_T1}, v{A4+1}, v{V_T1}
        v_rcp_f32 v{A4}, v{A4}
        v_and_b32 v{V_W2}, 0xf0, v{V_L16}
        v_mul_f32 v{V_FAC}, v{V_MC}, v{A4}
        v_bfe_u32 v{A4+1}, v0, 4, 2
        v_lshl_add_u32 v{V_W2}, v{A4+1}, 1, v{V_W2}
        v_bfe_u32 v{A4+2}, v0, 3, 1
        v_lshl_add_u32 v{V_T0}, v{A4+2}, 4, v{V_T0}
        v_bfe_u32 v{A4+2}, v0, 4, 1
        v_lshl_add_u32 v{V_T0}, v{A4+2}, 2, v{V_T0}
        v_bfe_u32 v{A4+2}, v0, 1, 2
        v_add_u32 v{V_T0}, v{A4+2}, v{V_T0}
        v_lshl_add_u32 v{V_T0}, v{V_T0}, 2, s88
        s_lshl_b32 s88, s3, 9
        s_add_u32 s82, s82, s88
        s_lshl_b32 s72, s44, 10
        s_lshl_b32 s88, s3, 7
        s_add_u32 s72, s72, s88
        """)
        if BS:
            I(f"s_lshl_b32 s82, s44, 3\ns_add_u32 s82, s82, s3\ns_lshl_b32 s82, s82, {lb+3}\ns_add_u32 s82, s82, {ACC_OFF}")
        if "a" in kill: I(f"s_mov_b32 s82, {WS_BYTES}")

    def kvtag(i): return f"k{i}" if i < 32 else f"v{i-32}"
    nth = [0]
    def throttle(i, isw=False):
        p = PAT if (i < 32 or PATV is None) else PATV
        if p is None or p == "D":
            g.waitn(D - 1)
        elif not isw:
            d = p[i % len(p)]
            for last in (S1C + 1, SYNC - 1, 32 + B2AT - 1):
                if last - PRE < i <= last: d += PRE - (last - i)
            if PEND and i >= PEND[0]: d = PEND[1]
            if i - d >= 0: g.wait(kvtag(i - d))
        if SL and not isw and B0 <= i < B0 + BU + BW:
            saved = dict(g.done)
            nth[0] += 1
            I(f"s_cmp_le_u32 s71, {i - B0}\ns_cbranch_scc1 L_th{nth[0]}")
            g.wait(kvtag(i - SL))
            g.label(f"L_th{nth[0]}")
            g.done = saved
    def sync_reads():
        if SYF: I(f"ds_read_b32 v{X+2}, v{X+1} offset:{L_F}")
        I(f"""
        ds_read_b128 {r4(Q)}, v{V_T0} offset:{L_Q}
        ds_read2_b32 {r2(T)}, v{V_LH} offset0:0 offset1:8
        ds_read2_b32 {r2(T+2)}, v{V_LH} offset0:16 offset1:24
        ds_read_b64 {r2(V_G)}, v{ZERO} offset:{L_G}
        """)
    w2n = 0; won = 0
    synced = False; gate_done = False
    for n in range(D0, 32):
        if n == ZF:
            I(f"""
            s_cmp_lg_u32 s101, {8+ZW}
            s_cbranch_scc1 L_noflag
            v_mov_b32 v{X+1}, 1
            s_and_b32 s86, s2, 7
            s_lshl_b32 s86, s86, 5
            s_mov_b64 exec, 1
            buffer_store_dword v{X+1}, v{ZERO}, s[32:35], s86 offen sc1
            s_mov_b64 exec, -1
            """)
            g.label("L_noflag")
        if n == SYNC:
            stamp("sync")
            I(f"""
            v_and_b32 v{V_T0}, 0xf0, v{V_L16}
            v_add_u32 v{V_LH}, {L_H}, v{V_LH}
            """)
            if SYF: I(f"v_lshrrev_b32 v{X+1}, 2, v{V_I16}")
            else: I("s_waitcnt lgkmcnt(0)\ns_barrier")
            sync_reads()
        throttle(n)
        kload(n)
        s1_at(n)
        if n == S1C:
            assert n < 19
            stage1a()
        if n == S1C + 1: stage1b()
        if n == POLL:
            g.vm(f"buffer_load_dwordx4 {r4(PX)}, v{V_XL}, s[28:31], s81 offen sc1", "px")
        if n == POLL + PW:
            assert n < SYNC
            consumer()
        if n == SYNC:
            if SYF:
                g.label("L_sy")
                I(f"s_waitcnt lgkmcnt(0)\nv_cmp_eq_u32 vcc, 0, v{X+2}\ns_cbranch_vccz L_syok")
                sync_reads()
                I("s_branch L_sy")
                g.label("L_syok")
            I(f"""
            s_cmp_lg_u32 s3, 0
            s_cbranch_scc1 L_nobump
            v_mov_b32 v{X}, s98
            s_mov_b64 exec, 1
            buffer_store_dword v{X}, v{ZERO}, s[28:31], s100 offen
            s_mov_b64 exec, -1
            """)
            g.label("L_nobump")
            I("s_waitcnt lgkmcnt(0)")
            g.label("L_synced")
            stamp("synced")
            synced = True
        if not gate_done and g.done['A'] > gate_after and n > S1C + 1:
            assert n < SYNC
            gate(); gate_done = True
        if synced:
            k = kgroups_done[0]
            if k < 8 and 4 * k + 3 <= n and g.is_done(f"k{4*k+3}"):
                consume_group(k)
        while w2n < 6 and n == W2POS[w2n]:
            throttle(n, True)
            w2load(w2n); w2n += 1
        while won < len(WOK) and n == WOK[won]:
            assert won < NE and n > S1C
            throttle(n, True)
            woload(won); won += 1
    assert w2n == 6 and gate_done and won == len(WOK) and len(WOK) + len(WOPOS) == 16
    sm = 0; ffn_q = 0
    def after_step(n):
        nonlocal sm, ffn_q
        k = kgroups_done[0]
        if k < 8:
            if g.is_done(f"k{4*k+3}"): consume_group(k)
            return
        if sm == 0:
            softmax1(); sm = 1; return
        if sm == 1:
            softmax2(); build_a(0); build_a(1); sm = 2; stamp("smax")
        elif sm == 2:
            softmax3(); sm = 3
        while vdone[0] <= n and vdone[0] < 32 and g.is_done(f"v{vdone[0]}"):
            pv(vdone[0])
        p = wopairs[0]
        if p < 8 and 2 * p + 1 < won and g.is_done(f"wo{2*p+1}"):
            wo_perm(p)
        elif sm == 3 and ffn_q < 8 and g.is_done("w2_5"):
            if ffn_q % 2 == 0: ffn_mm(ffn_q // 2)
            else: ffn_fold(ffn_q // 2)
            ffn_q += 1
    for n in range(32):
        if PRIO is not None and n == PRIO:
            I("s_cmp_lt_u32 s3, 4\ns_cbranch_scc1 L_prio\ns_setprio 1")
            g.label("L_prio")
        if n == B2AT:
            assert sm == 3
            ml_issue()
        throttle(32 + n)
        if n < 8: assert kgroups_done[0] > n // 4
        else: assert vdone[0] > n - 8, (n, vdone[0])
        vload(n)
        if n == B2AT: ml_combine()
        after_step(n)
        while won < 16 and n == WOPOS[won - len(WOK)]:
            throttle(32 + n, True)
            assert won < NE or kgroups_done[0] >= (7 if won < NE + 4 else 8), (won, kgroups_done[0])
            assert won < NE + 8 or wopairs[0] > (won - 8) // 2, (won, wopairs[0])
            woload(won); won += 1
            after_step(n)
    assert won == 16 and ffn_q == 8
    stamp("issued")
    while vdone[0] < 32:
        g.wait(f"v{vdone[0]}")
        after_step(31)
    stamp("lastv")
    RS = A4
    def spec_issue():
        I("s_mov_b32 s86, 0x01ff01ff\ns_mov_b32 s87, 0x01ff01ff\ns_mov_b64 exec, s[86:87]")
        g.vm(f"buffer_load_dword v{RS}, v{V_T2}, s[28:31], s82 offen sc1", "sp0")
        g.vm(f"buffer_load_dword v{RS+1}, v{V_T2}, s[28:31], s82 offen offset:256 sc1", "sp1")
        I("s_mov_b64 exec, -1")
    if SPEC == 1: spec_issue()
    I(f"""
    v_permlane32_swap_b32 v{ACC1}, v{ACC0+1}
    v_permlane32_swap_b32 v{ACC1+2}, v{ACC0+3}
    v_add_f32_dpp v{T}, v{ACC0}, v{ACC0+1} quad_perm:[0,1,2,3] row_mask:0x3 bank_mask:0xf
    v_add_f32_dpp v{T+1}, v{ACC0+2}, v{ACC0+3} quad_perm:[0,1,2,3] row_mask:0x3 bank_mask:0xf
    v_add_f32_dpp v{T}, v{ACC1+1}, v{ACC1} quad_perm:[0,1,2,3] row_mask:0xc bank_mask:0xf
    v_add_f32_dpp v{T+1}, v{ACC1+3}, v{ACC1+2} quad_perm:[0,1,2,3] row_mask:0xc bank_mask:0xf
    v_mul_f32 v{T}, v{T}, v{V_FAC}
    v_mul_f32 v{T+1}, v{T+1}, v{V_FAC}
    v_cvt_pk_bf16_f32 v{T}, v{T}, v{T+1}
    ds_write_b32 v{V_T0}, v{T} offset:{L_O}
    s_waitcnt lgkmcnt(0)
    s_barrier
    """)
    stamp("b3")
    I(f"ds_read_b128 {r4(AOP)}, v{V_T1} offset:{L_O}")
    I(f"ds_read_b128 {r4(AOP+4)}, v{V_T1} offset:{L_O+64}")
    if SPEC == 2: spec_issue()
    while wopairs[0] < 8:
        g.wait(f"wo{2*wopairs[0]+1}")
        wo_perm(wopairs[0])
    TACC = slot(0); E = STG
    I(f"""
    s_mov_b32 s88, {f2u(31.0):#x}
    s_mov_b32 s90, 0x00ff00ff
    s_mov_b32 s91, 0x00ff00ff
    s_mov_b32 s86, 0x01ff01ff
    s_mov_b32 s87, 0x01ff01ff
    s_waitcnt lgkmcnt(0)
    """)
    def estep(c):
        a = TACC + 4 * c
        I(f"v_add_f32_dpp v{E+c}, v{a}, v{a+2} quad_perm:[0,1,2,3] row_mask:0xf bank_mask:0x3")
        I(f"v_add_f32_dpp v{E+c}, v{a+1}, v{a+3} quad_perm:[0,1,2,3] row_mask:0xf bank_mask:0xc")
    def s32(c): I(f"v_permlane32_swap_b32 v{E+c}, v{E+c+2}\nv_add_f32 v{E+c}, v{E+c}, v{E+c+2}")
    def s16(u): I(f"v_permlane16_swap_b32 v{E+4*u}, v{E+4*u+1}\nv_add_f32 v{E+4*u}, v{E+4*u}, v{E+4*u+1}")
    def fin(u): I(f"v_add_f32_dpp v{XU+u}, v{E+4*u}, v{E+4*u} row_ror:8 row_mask:0xf bank_mask:0x3")
    def mm(c):
        for grp in range(2):
            cc = "0" if grp == 0 else r4(TACC + 4 * c)
            I(f"v_mfma_f32_16x16x32_bf16 {r4(TACC+4*c)}, {r4(AOP+4*grp)}, {r4(slot(8)+32*grp+4*c)}, {cc}")
    mm(0); mm(2); mm(1); mm(3); mm(4)
    estep(0); estep(2); mm(6)
    s32(0); estep(1); estep(3); mm(5)
    estep(4); s32(1); mm(7)
    estep(6); s16(0); estep(5); s32(4); fin(0); estep(7)
    I(f"v_add_f32 v{T}, v{XU}, v{F}\nv_add_f32 v{XU}, v{XU}, v{F}")
    s32(5); s16(1); fin(1)
    stamp("preat")
    if SPEC:
        I(f"v_add_f32 v{T+1}, v{XU+1}, v{F+1}\nv_add_f32 v{XU+1}, v{XU+1}, v{F+1}\ns_mov_b64 exec, s[86:87]")
        g.wait("sp1")
        I(f"""
        v_mov_b32_dpp v{RS+2}, v{RS} row_newbcast:8 {DPPF}
        v_mov_b32_dpp v{RS+3}, v{RS+1} row_newbcast:8 {DPPF}
        v_cmp_neq_f32 vcc, s88, v{RS+2}
        v_cmp_neq_f32 s[84:85], s88, v{RS+3}
        s_or_b64 s[76:77], vcc, s[84:85]
        v_cndmask_b32 v{T}, v{RS}, v{T}, vcc
        v_cndmask_b32 v{T+1}, v{RS+1}, v{T+1}, s[84:85]
        s_cbranch_scc0 L_noat
        s_mov_b64 exec, s[84:85]
        buffer_atomic_add_f32 v{T+1}, v{V_T2}, s[28:31], s82 offen offset:256 sc0
        s_mov_b64 exec, vcc
        buffer_atomic_add_f32 v{T}, v{V_T2}, s[28:31], s82 offen sc0
        s_mov_b64 exec, s[86:87]
        s_waitcnt vmcnt(0)
        """)
        g.label("L_noat")
    else:
        I(f"""
        v_add_f32 v{T+1}, v{XU+1}, v{F+1}
        s_mov_b64 exec, s[86:87]
        """)
        g.vm(f"buffer_atomic_add_f32 v{T+1}, v{V_C4 if BS else V_T2}, s[28:31], s82 offen offset:{4*BS if BS else 256} sc0 {APOL}", "at1")
        g.vm(f"buffer_atomic_add_f32 v{T}, v{V_C4 if BS else V_T2}, s[28:31], s82 offen sc0 {APOL}", "at0")
        I(f"v_add_f32 v{XU+1}, v{XU+1}, v{F+1}")
        g.wait("at0")
    I(f"""
    v_mov_b32_dpp v{T+2}, v{T} row_newbcast:8 {DPPF}
    v_mov_b32_dpp v{T+3}, v{T+1} row_newbcast:8 {DPPF}
    v_add_f32 v{T}, v{T}, v{XU}
    v_add_f32 v{T+1}, v{T+1}, v{XU+1}
    v_cmp_eq_f32 vcc, s88, v{T+2}
    v_cmp_eq_f32 s[86:87], s88, v{T+3}
    v_cvt_pk_bf16_f32 v{T}, v{T}, v{T+1}
    s_and_b64 exec, vcc, s[90:91]
    s_cbranch_execz L_nost0
    buffer_store_short v{T}, v{V_W2}, s[36:39], s72 offen {OPOL}
    """)
    g.label("L_nost0")
    I(f"""
    s_and_b64 exec, s[86:87], s[90:91]
    s_cbranch_execz L_nost1
    buffer_store_short_d16_hi v{T}, v{V_W2}, s[36:39], s72 offen offset:8 {OPOL}
    """)
    g.label("L_nost1")
    if stamps:
        I("s_mov_b64 exec, -1\ns_memtime s[62:63]")
        stamp("end")
        I(f"""
        s_sub_u32 s62, s62, s64
        v_writelane_b32 v{V_ST}, s62, 14
        s_getreg_b32 s96, hwreg(HW_REG_XCC_ID)
        s_nop 0
        v_writelane_b32 v{V_ST}, s96, 15
        s_lshl_b32 s88, s2, 9
        s_lshl_b32 s89, s3, 6
        s_add_u32 s88, s88, s89
        s_add_u32 s88, s88, {STAMP_OFF}
        s_mov_b64 exec, 0xffff
        buffer_store_dword v{V_ST}, v{V_T2}, s[28:31], s88 offen
        """)
    fix_cfg(g)
    body = g.text()
    head = f"""; gated mix of sliding-window decode attention and SwiGLU FFN, one workgroup per (batch, head)
; @launch grid=(256,1,1) block=(512,1,1) lds={LDS_BYTES}
.amdgcn_target "amdgcn-amd-amdhsa--gfx950"
.text
.globl {KNAME}
.p2align 8
.type {KNAME},@function
{KNAME}:
"""
    foot = f"""L_end:
    s_endpgm
.section .rodata,"a"
.p2align 6
.amdhsa_kernel {KNAME}
  .amdhsa_next_free_vgpr 256
  .amdhsa_next_free_sgpr 102
  .amdhsa_accum_offset 256
  .amdhsa_group_segment_fixed_size 0
  .amdhsa_kernarg_size 104
  .amdhsa_user_sgpr_count 2
  .amdhsa_user_sgpr_kernarg_segment_ptr 1
  .amdhsa_system_sgpr_workgroup_id_x 1
  .amdhsa_float_denorm_mode_32 3
.end_amdhsa_kernel
"""
    return head + body + foot

if __name__ == "__main__":
    out = sys.argv[1]
    kw = {}
    for a in sys.argv[2:]:
        k, v = a.split("=")
        kw[k] = eval(v)
    open(out, "w").write(gen(**kw))
```

```python
import sys, struct
from asmlib import Gen, fix_cfg, cfg_problems

KNAME = "gated_mix__sliding_block_cached__glu_gated_swiglu__decode_kernel"
def f2u(x): return struct.unpack("<I", struct.pack("<f", x))[0]

L_O, L_Q, L_H, L_G, L_ML, L_F = 0, 2304, 2560, 2816, 2848, 2912
L_X = 3072
L_P = L_X + 4096
LDS_BYTES = L_P + 16384
ACC_OFF = 1024 * 1024
STAMP_OFF = 4 * 1024 * 1024
WS_BYTES = 8 * 1024 * 1024

V_L16, V_WO, V_W2, V_KV, V_T0, V_T1, V_T2 = 1, 2, 3, 4, 5, 6, 7
Q = 8; MASK = 12; S = 16; A4 = 24; TT = 28; F = 30; ACC0 = 32; ACC1 = 36; AOP = 40
T = 48
V_S1 = 52; V_FAC = 52; V_MC = 53; V_XL = 54; V_I16 = 55
STG = 56
W2R = 72
X = 104
ZERO = 116
V_G = 120
V_C4 = 122; V_LH = 124; V_ST = 125; XU = 126
SLOT = 128
def slot(n): return SLOT + 4 * n
def r4(b): return f"v[{b}:{b+3}]"
def r2(b): return f"v[{b}:{b+1}]"
DPPF = "row_mask:0xf bank_mask:0xf"

def gen(D=5, PAT=(3,), PATV=None, FAST=1, PT=9, S1C=6, POLL=18, PW=4, SYNC=24, W2POS=(9, 11, 13, 15, 17, 19), WOK=(21, 23, 26, 29),
        WOPOS=(0, 2, 5, 7, 9, 11, 14, 16, 18, 21, 23, 26), B2AT=20, ZF=16, SL=2, BU=8, BW=3, B0=None, S1POS=None, PRE=0, WIDE=0, PEND=(57, 5), NB=None, XW=(), MLF=0, SYF=0, GW=0, ZW=1, PRIO=None, BQ=6, APOL='', OPOL='', ZPOL='sc1', SPEC=0, BS=64, ZE=0, wopol='nt', SPF=None, SPFW=1, SPFX='', VPF=None, VPF2=None, EPF=0,
        stamps=False, kill=""):
    g = Gen(); g.roles = ['A']; g.done = {'A': 0}
    I = g.I
    if B0 is None: B0 = S1C + 2
    names = []
    def stamp(name):
        if stamps:
            if name not in names: names.append(name)
            k = names.index(name)
            assert k < 14
            I(f"s_memrealtime s[96:97]\ns_waitcnt lgkmcnt(0)\nv_writelane_b32 v{V_ST}, s96, {k}")
    def kvoff(n):
        return sum(((n >> k) & 1) << b for k, b in enumerate(NB))
    def kload(n):
        if NB:
            I(f"s_xor_b32 s74, s57, {kvoff(n)}")
            g.vm(f"buffer_load_dwordx4 {r4(slot(n))}, v{V_KV}, s[4:7], s74 offen nt", f"k{n}"); return
        if n % 4 == 0 and n > 0: I("s_add_u32 s74, s74, s75")
        g.vm(f"buffer_load_dwordx4 {r4(slot(n))}, v{V_KV}, s[4:7], s74 offen offset:{(n%4)*1024} nt", f"k{n}")
    def vload(n):
        if NB:
            I(f"s_xor_b32 s74, s57, {kvoff(n)}")
            g.vm(f"buffer_load_dwordx4 {r4(slot(n%8))}, v{V_KV}, s[8:11], s74 offen nt", f"v{n}"); return
        if n == 0: I("s_mov_b32 s74, s57")
        if n % 4 == 0 and n > 0: I("s_add_u32 s74, s74, s75")
        g.vm(f"buffer_load_dwordx4 {r4(slot(n%8))}, v{V_KV}, s[8:11], s74 offen offset:{(n%4)*1024} nt", f"v{n}")
    def w2load(j):
        so = ["0", "s84", "s75"][j // 2]
        g.vm(f"buffer_load_dwordx4 {r4(W2R+4*j)}, v{V_W2}, s[16:19], {so} offen offset:{(j%2)*1024} {wopol}", f"w2_{j}")
    NE = 6
    def stage(n):
        if n < 4: return STG + 4 * n
        if n < NE: return W2R + 24 + 4 * (n - 4)
        return slot(24 + (n - NE) % 8)
    def woload(n):
        if n == 0: I("s_mov_b32 s83, 0")
        elif n % 2 == 0: I("s_add_u32 s83, s83, s84")
        if "n" in kill and n % 2 == 0: I(f"s_cmp_eq_u32 s44, {n // 2}\ns_cselect_b32 s14, 0x400000, 0")
        g.vm(f"buffer_load_dwordx4 {r4(stage(n))}, v{V_WO}, s[12:15], s83 offen offset:{(n%2)*2048} {wopol}", f"wo{n}")
    def s1load(j):
        g.vm(f"buffer_load_dwordx4 {r4(STG+4*j)}, v{V_S1}, s[20:23], s68 offen nt", f"s1_{j}")
        if j < 3: I(f"s_add_u32 s68, s68, {'s67' if j == 1 else 's76'}")

    if stamps: I("s_memrealtime s[60:61]")
    I(f"""
    s_load_dwordx2 s[4:5], s[0:1], 8
    s_load_dwordx2 s[28:29], s[0:1], 96
    s_lshr_b32 s3, s2, 8
    s_cbranch_scc1 L_end
    v_and_b32 v{V_L16}, 63, v0
    v_lshrrev_b32 v{V_T0}, 6, v0
    v_lshlrev_b32 v{V_L16}, 4, v{V_L16}
    """)
    if PT:
        I("; pull the kernel's own code towards L2 while the kernarg load is in flight\ns_getpc_b64 s[52:53]")
        g.label("L_pc")
        I(f"""
        v_mul_u32_u24 v{V_T2}, {PT*128}, v{V_T0}
        v_lshl_add_u32 v{V_T2}, v{V_L16}, 3, v{V_T2}
        v_min_u32 v{V_T2}, L_end-L_pc, v{V_T2}
        s_mov_b64 exec, {(1 << PT) - 1}
        global_load_dword v{S}, v{V_T2}, s[52:53]
        s_mov_b64 exec, -1
        """)
    I(f"""
    s_lshl_b32 s74, s2, 20
    v_lshl_add_u32 v{V_KV}, v{V_T0}, 12, v{V_L16}
    s_add_u32 s74, s74, 0xc0000
    s_brev_b32 s6, 8
    s_mov_b32 s7, 0x20000
    """)
    if NB:
        for (src, dst) in XW:
            I(f"s_bfe_u32 s57, s2, {(1<<16)|src:#x}\ns_lshl_b32 s57, s57, {dst}\ns_xor_b32 s74, s74, s57")
        I("s_mov_b32 s57, s74")
    if FAST:
        I("s_waitcnt lgkmcnt(0)")
        for n in range(FAST): kload(n)
    if ZE:
        assert FAST and BS == 64
        I("s_lshr_b32 s88, s2, 3\ns_cmp_eq_u32 s88, 1\ns_cbranch_scc1 L_zero")
        g.label("L_zret")
    if stamps:
        names += ["start", "k0", "k1"]
        I("s_memrealtime s[58:59]")
    I(f"""
    v_readfirstlane_b32 s3, v{V_T0}
    s_bfe_u32 s70, s2, 0x20005
    s_load_dwordx2 s[24:25], s[0:1], 0
    s_lshl_b32 s86, s70, 3
    s_add_u32 s86, s86, 32
    s_cmp_lt_u32 s70, 2
    s_cselect_b32 s86, 24, s86
    s_load_dwordx2 s[20:21], s[0:1], s86
    {"s_load_dwordx2 s[12:13], s[0:1], 32" if EPF else ""}
    {"s_load_dwordx2 s[16:17], s[0:1], 64" if EPF else ""}
    s_lshr_b32 s44, s2, 5
    s_and_b32 s45, s2, 31
    s_and_b32 s87, s45, 7
    s_lshl_b32 s87, s87, 2
    s_lshr_b32 s88, s45, 3
    s_add_u32 s87, s87, s88
    s_mul_i32 s87, s87, {16*43691}
    s_add_u32 s87, s87, {2*43691}
    s_lshr_b32 s78, s87, 17
    s_add_u32 s87, s87, {16*43691}
    s_lshr_b32 s79, s87, 17
    s_cmp_eq_u32 s79, 171
    s_addc_u32 s79, s79, 0
    s_sub_u32 s89, s79, s78
    s_movk_i32 s26, 8192
    s_lshl_b32 s87, s45, 8
    s_lshl_b32 s88, s70, 7
    s_add_u32 s87, s87, s88
    s_lshl_b32 s88, s78, 4
    s_cmp_lt_u32 s70, 2
    s_cselect_b32 s76, s26, 2752
    s_cselect_b32 s87, s87, s88
    s_cselect_b32 s89, 8, s89
    s_lshl_b32 s22, s76, 9
    s_mov_b32 s23, 0x20000
    s_mov_b32 s27, 0x20000
    s_lshr_b32 s88, s44, 2
    s_lshl_b32 s88, s88, 3
    s_add_u32 s88, s88, s3
    s_lshl_b32 s69, s88, 6
    s_lshl_b32 s88, s88, 5
    s_mul_i32 s88, s88, s76
    s_add_u32 s68, s87, s88
    s_mul_i32 s67, s76, 15
    v_bfe_u32 v{T}, v0, 3, 3
    v_and_b32 v{V_T2}, 7, v0
    v_lshlrev_b32 v{T+1}, 1, v{T}
    v_lshlrev_b32 v{V_I16}, 4, v{V_T2}
    v_cmp_gt_u32 vcc, s89, v{V_T2}
    v_mad_u32_u24 v{V_S1}, v{T+1}, s76, v{V_I16}
    v_bfrev_b32 v{T+2}, 1
    v_cndmask_b32 v{V_S1}, v{T+2}, v{V_S1}, vcc
    v_lshlrev_b32 v{V_T2}, 3, v{V_T2}
    v_lshl_add_u32 v{T+3}, v{T}, 10, v{V_T2}
    {'' if NB else 's_mov_b32 s57, s74'}
    s_mov_b32 s75, 0x8000
    """)
    if "s" in kill: I("s_mov_b32 s22, 0")
    I("s_waitcnt lgkmcnt(0)")
    if stamps: I("s_memrealtime s[54:55]\ns_memtime s[64:65]")
    XOP = X + 8; Y = X
    s1n = [0]
    def s1_at(n):
        while s1n[0] < 4 and (S1POS is None or S1POS[s1n[0]] <= n):
            s1load(s1n[0]); s1n[0] += 1
    g.vm(f"buffer_load_dwordx2 {r2(XOP)}, v{T+3}, s[24:27], s69 offen", "xop")
    def epf():
        I(f"""
        s_mov_b32 s14, 0x400000
        s_mov_b32 s15, 0x20000
        s_lshl_b32 s18, s79, 13
        s_mov_b32 s19, 0x20000
        s_lshl_b32 s56, s44, 3
        s_add_u32 s56, s56, s3
        s_mul_i32 s55, s56, 768
        s_lshl_b32 s56, s56, 11
        s_lshl_b32 s87, s45, 17
        s_add_u32 s56, s56, s87
        s_lshl_b32 s87, s78, 13
        s_add_u32 s55, s55, s87
        v_lshlrev_b32 v123, 3, v{V_L16}
        s_mov_b64 exec, 0xffff
        """)
        g.vm(f"buffer_load_dword v{S+1}, v123, s[12:15], s56 offen", "pfo")
        I("s_mov_b64 exec, 63")
        g.vm(f"buffer_load_dword v{S+2}, v123, s[16:19], s55 offen", "pf2")
        I("s_mov_b64 exec, -1")
    if EPF == 2: epf()
    s1_at(FAST - 1)
    if EPF == 1: epf()
    D0 = max(PAT[0] if PAT else D, FAST)
    for n in range(FAST, D0):
        kload(n); s1_at(n)
    if EPF == 3: epf()
    I(f"""
    s_load_dwordx2 s[8:9], s[0:1], 16
    {"" if EPF else "s_load_dwordx2 s[12:13], s[0:1], 32"}
    {"" if EPF else "s_load_dwordx2 s[16:17], s[0:1], 64"}
    s_load_dwordx2 s[32:33], s[0:1], 88
    s_load_dwordx2 s[36:37], s[0:1], 80
    s_load_dwordx2 s[40:41], s[0:1], 72
    s_lshl_b32 s81, s45, 15
    s_lshl_b32 s87, s3, 7                 ; 128 w
    s_add_u32 s99, s81, 0x4000
    s_lshl_b32 s88, s44, 7
    s_add_u32 s100, s99, s88
    s_add_u32 s99, s99, s87
    s_waitcnt lgkmcnt(0)
    s_load_dword s98, s[28:29], s100
    s_load_dword s85, s[28:29], s99
    s_mov_b32 s30, {WS_BYTES}
    s_mov_b32 s31, 0x20000
    s_brev_b32 s10, 8
    s_mov_b32 s11, 0x20000
    s_mov_b32 s14, 0x400000
    s_mov_b32 s15, 0x20000
    s_lshl_b32 s18, s79, 13
    s_mov_b32 s19, 0x20000
    s_movk_i32 s34, 256
    s_mov_b32 s35, 0x20000
    s_movk_i32 s38, 8192
    s_mov_b32 s39, 0x20000
    s_movk_i32 s42, 1024
    s_mov_b32 s43, 0x20000
    s_cmp_lg_u32 s3, {GW}
    s_cbranch_scc1 L_nogl
    s_lshl_b32 s88, s44, 10
    buffer_load_dwordx4 {r4(AOP)}, v{V_L16}, s[24:27], s88 offen
    buffer_load_dwordx4 {r4(AOP+4)}, v{V_L16}, s[40:43], 0 offen
    """)
    g.label("L_nogl")
    g.q.append(("gmark", None))
    g.q.pop()
    gate_after = len(g.q)
    I(f"""
    s_mov_b32 s46, 0x05040100
    s_mov_b32 s47, 0x07060302
    s_movk_i32 s84, 16384
    s_mov_b32 s93, {f2u(1.4426950408889634):#x}
    s_mov_b32 s94, {f2u(128 ** -0.5):#x}
    s_mov_b32 s95, 0xffff0000
    s_lshl_b32 s89, s78, 13
    s_add_u32 s89, s89, s87
    v_lshl_add_u32 v{V_W2}, v{T+1}, 10, v{V_I16}
    v_add_u32 v{V_W2}, s89, v{V_W2}
    s_lshl_b32 s89, s45, 17
    s_add_u32 s89, s89, s87
    v_add_u32 v{V_WO}, s89, v{V_I16}
    v_bfe_u32 v{V_T0}, v0, 4, 2
    v_lshl_add_u32 v{V_WO}, v{V_T0}, 12, v{V_WO}
    v_bfe_u32 v{V_T1}, v0, 3, 1
    v_lshl_add_u32 v{V_WO}, v{V_T1}, 10, v{V_WO}
    v_lshl_add_u32 v{V_XL}, v{T}, 11, v{V_I16}
    v_and_b32 v{V_T1}, 1, v0
    v_lshl_add_u32 v{V_T1}, v{V_T0}, 1, v{V_T1}
    v_lshlrev_b32 v{V_LH}, 2, v{V_T1}                ; (2g + kh)*4
    s_lshl_b32 s89, s44, 11
    s_add_u32 s80, s81, s89
    s_lshl_b32 s89, s3, 8
    s_add_u32 s80, s80, s89
    s_lshl_b32 s89, s44, 8
    s_add_u32 s81, s81, s89
    s_and_b32 s89, s87, 128
    s_add_u32 s81, s81, s89
    s_lshl_b32 s82, s44, 12
    s_add_u32 s82, s82, {ACC_OFF}
    s_lshr_b32 s101, s2, 3
    s_lshl_b32 s101, s101, 3
    s_add_u32 s101, s101, s3
    ; masks
    v_and_b32 v{V_T1}, 1, v0
    v_lshlrev_b32 v{V_T1}, 4, v{V_T1}
    v_mov_b32 v{V_T2}, 0xffff
    v_lshlrev_b32 v{V_T1}, v{V_T1}, v{V_T2}
    v_bfe_u32 v{V_T2}, v0, 1, 2
    """)
    fill = [f"v_mov_b32 v{ZERO}, 0\nv_mov_b32 v{ZERO+1}, 0", f"v_mov_b32 v{ZERO+2}, 0\nv_mov_b32 v{ZERO+3}, 0",
            f"v_mov_b32 v{F}, 1.0\nv_mov_b32 v{F+1}, 1.0", f"v_mov_b32 v{XU}, 0\nv_mov_b32 v{XU+1}, 0"]
    for r in range(4):
        I(f"v_cmp_eq_u32 vcc, {r}, v{V_T2}\n{fill[r]}\nv_cndmask_b32 v{MASK+r}, 0, v{V_T1}, vcc")
    if SL:
        I(f"""
        s_lshr_b32 s87, s70, 1
        s_xor_b32 s87, s87, 1
        s_mul_i32 s71, s87, {BU}
        s_sub_u32 s87, s78, s79
        s_add_u32 s87, s87, 6
        s_mul_i32 s87, s87, {BW}
        s_add_u32 s71, s71, s87
        """)
        if BQ:
            I(f"s_and_b32 s87, s2, 0x63\ns_cmp_eq_u32 s87, 0x21\ns_cselect_b32 s87, {BQ}, 0\ns_sub_u32 s71, s71, s87")
    if WIDE == 1:
        I(f"""
        v_and_b32 v{V_T1}, 0xf0, v{V_L16}
        v_bfe_u32 v{V_T2}, v0, 7, 2
        v_lshl_add_u32 v{V_T1}, v{V_T2}, 8, v{V_T1}
        v_bfe_u32 v{V_T2}, v0, 4, 2
        v_lshl_add_u32 v{V_T1}, v{V_T2}, 12, v{V_T1}
        v_bfe_u32 v{V_T2}, v0, 6, 1
        s_lshl_b32 s89, s45, 17
        v_lshl_add_u32 v{V_WO}, v{V_T2}, 10, v{V_T1}
        v_add_u32 v{V_WO}, s89, v{V_WO}
        s_lshl_b32 s89, s78, 13
        v_lshl_add_u32 v{V_W2}, v{V_T2}, 11, v{V_T1}
        v_add_u32 v{V_W2}, s89, v{V_W2}
        """)
    if WIDE == 2:
        I(f"""
        v_bfe_u32 v{V_T2}, v0, 7, 2
        v_lshl_add_u32 v{V_T1}, v{V_T2}, 12, v{V_L16}
        v_bfe_u32 v{V_T2}, v0, 6, 1
        s_lshl_b32 s89, s45, 17
        v_lshl_add_u32 v{V_WO}, v{V_T2}, 10, v{V_T1}
        v_add_u32 v{V_WO}, s89, v{V_WO}
        s_lshl_b32 s89, s78, 13
        v_lshl_add_u32 v{V_W2}, v{V_T2}, 11, v{V_T1}
        v_add_u32 v{V_W2}, s89, v{V_W2}
        """)
    if "o" in kill: I("s_mov_b32 s14, 0")
    if "2" in kill: I("s_mov_b32 s18, 0")
    if "x" in kill: I(f"s_mov_b32 s80, {WS_BYTES}\ns_mov_b32 s81, {WS_BYTES}")
    if BS:
        import math
        lb = int(math.log2(BS))
        I(f"""
        v_bfe_u32 v{V_C4}, v0, 4, 2
        v_and_b32 v{V_T1}, 15, v0
        v_lshlrev_b32 v{V_C4}, {lb}, v{V_C4}
        v_lshl_add_u32 v{V_C4}, v{V_T1}, 2, v{V_C4}
        s_lshr_b32 s88, s2, 3
        s_cmp_lg_u32 s88, {99 if ("z" in kill or ZE) else 1}
        s_cbranch_scc1 L_nozero
        s_and_b32 s88, s2, 7
        s_lshl_b32 s88, s88, 3
        s_add_u32 s88, s88, s3
        s_lshl_b32 s88, s88, {lb+3}
        s_add_u32 s88, s88, {ACC_OFF}
        buffer_store_dword v{ZERO}, v{V_C4}, s[28:31], s88 offen {ZPOL}
        buffer_store_dword v{ZERO}, v{V_C4}, s[28:31], s88 offen offset:{4*BS} {ZPOL}
        """)
        ZF = SYNC + 1
    else:
        I(f"""
        s_cmp_lg_u32 s101, {8+ZW}
        s_cbranch_scc1 L_nozero
        s_and_b32 s88, s2, 7
        s_lshl_b32 s88, s88, 12
        s_add_u32 s88, s88, {ACC_OFF}
        buffer_store_dwordx4 {r4(ZERO)}, v{V_L16}, s[28:31], s88 offen {ZPOL}
        buffer_store_dwordx4 {r4(ZERO)}, v{V_L16}, s[28:31], s88 offen offset:1024 {ZPOL}
        buffer_store_dwordx4 {r4(ZERO)}, v{V_L16}, s[28:31], s88 offen offset:2048 {ZPOL}
        buffer_store_dwordx4 {r4(ZERO)}, v{V_L16}, s[28:31], s88 offen offset:3072 {ZPOL}
        """)
    g.label("L_nozero")
    if stamps:
        I(f"s_waitcnt lgkmcnt(0)\nv_mov_b32 v{V_ST}, 0\nv_writelane_b32 v{V_ST}, s60, 0\nv_writelane_b32 v{V_ST}, s58, 1\nv_writelane_b32 v{V_ST}, s54, 2")
    stamp("b0")

    W1FR = slot(20); W1ACC = slot(24)
    def stage1a():
        I(f"""
        s_lshl_b32 s87, s3, 9
        s_add_u32 s87, s87, {L_X}
        v_lshrrev_b32 v{A4}, 1, v{V_L16}
        v_add_u32 v{A4}, s87, v{A4}
        v_bfe_u32 v{A4+1}, v0, 1, 3
        v_lshl_add_u32 v{A4+1}, v{A4+1}, 6, v{V_LH}
        v_add_u32 v{A4+1}, s87, v{A4+1}
        """)
        if MLF or SYF:
            I(f"v_lshrrev_b32 v{A4+2}, 2, v{V_L16}\nv_and_b32 v{A4+2}, 0x7c, v{A4+2}\nds_write_b32 v{A4+2}, v{ZERO} offset:{L_ML}")
        g.wait("xop")
        I(f"""
        ds_write_b64 v{A4}, {r2(XOP)}
        ds_read2_b32 {r2(XOP)}, v{A4+1} offset0:0 offset1:8
        s_lshl_b32 s87, s3, 11
        v_lshl_add_u32 v{A4+2}, v{V_L16}, 1, s87
        """)
        for jj in range(2):
            g.wait(f"s1_{2*jj+1}")
            for q in range(4):
                for e in range(2):
                    I(f"v_perm_b32 v{W1FR+2*(2*q+e)+jj}, v{STG+4*(2*jj+1)+q}, v{STG+4*(2*jj)+q}, s{46+e}")
        I("s_waitcnt lgkmcnt(0)")
        for c in range(8):
            I(f"v_mfma_f32_16x16x16_bf16 {r4(W1ACC+4*c)}, {r2(XOP)}, {r2(W1FR+2*c)}, 0")
        for c in range(8):
            a = W1ACC + 4 * c
            I(f"v_add_f32_dpp v{Y+c}, v{a+1}, v{a} row_ror:8 row_mask:0xf bank_mask:0x3")
            I(f"v_add_f32_dpp v{Y+c}, v{a+2}, v{a+3} row_ror:8 row_mask:0xf bank_mask:0xc")
        I(f"""
        ds_write_b128 v{A4+2}, {r4(Y)} offset:{L_P}
        ds_write_b128 v{A4+2}, {r4(Y+4)} offset:{L_P+16}
        s_getreg_b32 s92, hwreg(HW_REG_XCC_ID, 0, 3)
        s_add_u32 s98, s98, 0x01010101
        s_add_u32 s85, s85, 0x01010101
        s_lshl_b32 s92, s92, 24
        s_and_b32 s73, s98, 0xf8ffffff
        s_or_b32 s73, s73, s92
        s_and_b32 s85, s85, 0xf8ffffff
        s_or_b32 s85, s85, s92
        v_and_b32 v{A4}, 0xf0, v{V_L16}
        v_bfe_u32 v{A4+1}, v0, 4, 2
        s_lshl_b32 s87, s3, 8
        v_lshl_add_u32 v{A4+1}, v{A4+1}, 11, v{A4}
        v_add_u32 v{A4+1}, s87, v{A4+1}
        v_bfe_u32 v{A4+2}, v0, 4, 1
        v_bfe_u32 v{A4+3}, v0, 5, 1
        v_lshl_add_u32 v{A4+2}, v{A4+2}, 1, v{A4+3} ; c4 = 2(g&1) + (g>>1)
        v_lshl_add_u32 v{A4}, v{A4+2}, 2, v{A4}
        v_lshlrev_b32 v{A4+2}, 3, v{A4+2}
        v_lshrrev_b32 v{A4+2}, v{A4+2}, s85
        s_movk_i32 s88, 0xff
        """)
    def stage1b():
        I(f"""
        s_waitcnt lgkmcnt(0)
        s_barrier
        ds_read_b128 {r4(Y)}, v{A4+1} offset:{L_P}
        ds_read_b128 {r4(Y+4)}, v{A4+1} offset:{L_P+8192}
        s_waitcnt lgkmcnt(0)
        v_pk_add_f32 {r2(Y)}, {r2(Y)}, {r2(Y+4)}
        v_pk_add_f32 {r2(Y+2)}, {r2(Y+2)}, {r2(Y+6)}
        v_permlane32_swap_b32 v{Y}, v{Y+1}
        v_permlane32_swap_b32 v{Y+2}, v{Y+3}
        v_add_f32 v{Y}, v{Y}, v{Y+1}
        v_add_f32 v{Y+2}, v{Y+2}, v{Y+3}
        v_permlane16_swap_b32 v{Y}, v{Y+2}
        v_add_f32 v{Y}, v{Y}, v{Y+2}
        v_bfi_b32 v{Y}, s88, v{A4+2}, v{Y}
        """)
        g.vm(f"buffer_store_dword v{Y}, v{A4}, s[28:31], s80 offen", "ex0")
        stamp("s1done")

    def allred(v, t, op):
        I(f"""
        {op}_dpp v{v}, v{v}, v{v} row_ror:4 {DPPF}
        {op}_dpp v{v}, v{v}, v{v} row_ror:8 {DPPF}
        v_mov_b32 v{t}, v{v}
        v_permlane16_swap_b32 v{v}, v{t}
        {op} v{v}, v{v}, v{t}
        v_mov_b32 v{t}, v{v}
        v_permlane32_swap_b32 v{v}, v{t}
        {op} v{v}, v{v}, v{t}
        """)

    def gate():
        a, b, c, d = ACC0, ACC0 + 1, ACC0 + 2, ACC0 + 3
        I(f"s_cmp_lg_u32 s3, {GW}\ns_cbranch_scc1 L_nogate")
        for q in range(4):
            I(f"""
            v_lshlrev_b32 v{a}, 16, v{AOP+q}
            v_and_b32 v{b}, s95, v{AOP+q}
            v_lshlrev_b32 v{c}, 16, v{AOP+4+q}
            v_and_b32 v{d}, s95, v{AOP+4+q}
            v_mul_f32 v{a}, v{a}, v{c}
            v_mul_f32 v{b}, v{b}, v{d}
            v_cvt_pk_bf16_f32 v{AOP+q}, v{a}, v{b}
            """)
        I(f"""
        v_mov_b32 v{a}, 0
        v_mov_b32 v{b}, 0x3f803f80
        v_dot2c_f32_bf16 v{a}, v{AOP}, v{b}
        v_dot2c_f32_bf16 v{a}, v{AOP+1}, v{b}
        v_dot2c_f32_bf16 v{a}, v{AOP+2}, v{b}
        v_dot2c_f32_bf16 v{a}, v{AOP+3}, v{b}
        v_add_f32_dpp v{a}, v{a}, v{a} quad_perm:[1,0,3,2] {DPPF}
        v_add_f32_dpp v{a}, v{a}, v{a} quad_perm:[2,3,0,1] {DPPF}
        """)
        allred(a, b, "v_add_f32")
        I(f"""
        v_cvt_pk_bf16_f32 v{a}, v{a}, v{a}
        v_and_b32 v{a}, s95, v{a}
        v_mul_f32 v{a}, s93, v{a}
        v_exp_f32 v{a}, -v{a}
        v_add_f32 v{a}, 1.0, v{a}
        v_rcp_f32 v{a}, v{a}
        v_cvt_pk_bf16_f32 v{a}, v{a}, v{a}
        v_and_b32 v{a}, s95, v{a}
        v_sub_f32 v{b}, 1.0, v{a}
        v_cvt_pk_bf16_f32 v{b}, v{b}, v{b}
        v_and_b32 v{b}, s95, v{b}
        ds_write_b64 v{ZERO}, {r2(a)} offset:{L_G}
        """)
        g.label("L_nogate")

    PX = X + 4
    def consumer():
        I(f"""
        v_bfe_u32 v{X}, v0, 3, 2
        v_lshrrev_b32 v{X+1}, 1, v{V_I16}
        v_lshl_add_u32 v{X}, v{X}, 7, v{X+1}
        v_bfe_u32 v{X+1}, v0, 5, 1
        v_lshl_add_u32 v{X}, v{X+1}, 2, v{X}
        v_and_b32 v{X+1}, 64, v0
        v_add_u32 v{X}, v{X+1}, v{X}
        s_mov_b32 s92, {0 if "x" in kill else 200000}
        s_mov_b32 s88, 0x0c0c0400
        s_mov_b32 s89, 0x04000c0c
        s_mov_b32 s90, -1
        s_movk_i32 s91, 0xff00
        """)
        g.wait("px")
        g.label("L_poll")
        I(f"""
        v_perm_b32 v{X+2}, v{PX+1}, v{PX}, s88
        v_perm_b32 v{X+3}, v{PX+3}, v{PX+2}, s89
        v_or_b32 v{X+2}, v{X+2}, v{X+3}
        v_xor_b32 v{X+2}, s73, v{X+2}
        v_and_b32 v{X+2}, s90, v{X+2}
        v_cmp_ne_u32 vcc, 0, v{X+2}
        s_cbranch_vccz L_polled
        s_sub_u32 s92, s92, 1
        s_cbranch_scc1 L_polled
        s_cmp_gt_u32 s92, {200000 - 5}
        s_cbranch_scc1 L_reload
        s_cmp_eq_u32 s90, -1
        s_cbranch_scc0 L_flushed
        s_mov_b32 s90, 0xf8ffffff
        s_waitcnt vmcnt(0)
        buffer_wbl2 sc1
        s_waitcnt vmcnt(0)""")
        g.label("L_flushed")
        I("buffer_inv sc1")
        g.label("L_reload")
        I(f"""
        buffer_load_dwordx4 {r4(PX)}, v{V_XL}, s[28:31], s81 offen sc1
        s_waitcnt vmcnt(0)
        s_branch L_poll""")
        g.label("L_polled")
        stamp("x2")
        if stamps: I(f"s_sub_u32 s96, 200000, s92\nv_writelane_b32 v{V_ST}, s96, 1")
        a, b, e0, e1 = X + 8, X + 9, X + 10, X + 11
        I(f"""
        v_and_b32 v{PX}, s91, v{PX}
        v_and_b32 v{PX+2}, s91, v{PX+2}
        v_and_b32 v{PX+1}, s91, v{PX+1}
        v_and_b32 v{PX+3}, s91, v{PX+3}
        v_permlane32_swap_b32 v{PX}, v{PX+2}
        v_permlane32_swap_b32 v{PX+1}, v{PX+3}
        v_add_f32 v{PX}, v{PX}, v{PX+2}
        v_add_f32 v{PX+1}, v{PX+1}, v{PX+3}
        v_cvt_pk_bf16_f32 v{PX}, v{PX}, v{PX+1}
        v_lshlrev_b32 v{a}, 16, v{PX}
        v_and_b32 v{b}, s95, v{PX}
        v_mul_f32 v{e0}, s93, v{a}
        v_mul_f32 v{e1}, s93, v{b}
        v_exp_f32 v{e0}, -v{e0}
        v_exp_f32 v{e1}, -v{e1}
        v_add_f32 v{e0}, 1.0, v{e0}
        v_add_f32 v{e1}, 1.0, v{e1}
        v_rcp_f32 v{e0}, v{e0}
        v_rcp_f32 v{e1}, v{e1}
        v_mul_f32 v{e0}, v{e0}, v{a}
        v_mul_f32 v{e1}, v{e1}, v{b}
        v_cvt_pk_bf16_f32 v{e1}, v{e0}, v{e1}
        v_lshlrev_b32 v{e0}, 16, v{e1}
        v_and_b32 v{e1}, s95, v{e1}
        v_mul_f32_dpp v{e0}, v{a}, v{e0} row_ror:8 {DPPF}
        v_mul_f32_dpp v{e1}, v{b}, v{e1} row_ror:8 {DPPF}
        v_cvt_pk_bf16_f32 v{e0}, v{e0}, v{e1}
        v_mov_b32_dpp v{PX}, v{e0} quad_perm:[0,1,2,3] row_mask:0xa bank_mask:0xf
        ds_write_b32 v{X}, v{PX} offset:{L_Q}
        """)
        if SYF:
            assert gate_done
            I(f"s_lshl_b32 s88, s3, 2\nv_mov_b32 v{X+1}, s88\nv_mov_b32 v{X+2}, 1\nds_write_b32 v{X+1}, v{X+2} offset:{L_F}")

    kgroups_done = [0]
    def consume_group(k):
        s0 = 4 * k
        for i in range(4):
            I(f"v_dot2_f32_bf16 v{A4+i}, v{slot(s0+i)}, v{Q}, 0")
        for q in range(1, 4):
            for i in range(4):
                I(f"v_dot2c_f32_bf16 v{A4+i}, v{slot(s0+i)+q}, v{Q+q}")
        I(f"""
        v_add_f32_dpp v{TT}, v{A4}, v{A4} row_ror:8 row_mask:0xf bank_mask:0x3
        v_add_f32_dpp v{TT}, v{A4+1}, v{A4+1} row_ror:8 row_mask:0xf bank_mask:0xc
        v_add_f32_dpp v{TT+1}, v{A4+2}, v{A4+2} row_ror:8 row_mask:0xf bank_mask:0x3
        v_add_f32_dpp v{TT+1}, v{A4+3}, v{A4+3} row_ror:8 row_mask:0xf bank_mask:0xc
        v_add_f32_dpp v{S+k}, v{TT}, v{TT} row_half_mirror row_mask:0xf bank_mask:0x5
        v_add_f32_dpp v{S+k}, v{TT+1}, v{TT+1} row_half_mirror row_mask:0xf bank_mask:0xa
        v_add_f32_dpp v{S+k}, v{S+k}, v{S+k} quad_perm:[1,0,3,2] {DPPF}
        v_add_f32_dpp v{S+k}, v{S+k}, v{S+k} quad_perm:[2,3,0,1] {DPPF}
        """)
        if k % 2 == 1:
            a, b = S + k - 1, S + k
            I(f"""
            v_cvt_pk_bf16_f32 v{TT}, v{a}, v{b}
            v_lshlrev_b32 v{a}, 16, v{TT}
            v_and_b32 v{b}, s95, v{TT}
            v_mul_f32 v{a}, s94, v{a}
            v_mul_f32 v{b}, s94, v{b}
            v_cvt_pk_bf16_f32 v{TT}, v{a}, v{b}
            v_lshlrev_b32 v{a}, 16, v{TT}
            v_and_b32 v{b}, s95, v{TT}
            """)
        kgroups_done[0] = k + 1

    def softmax1():
        m = TT
        I(f"""
        v_max3_f32 v{m}, v{S}, v{S+1}, v{S+2}
        v_max3_f32 v{m}, v{m}, v{S+3}, v{S+4}
        v_max3_f32 v{m}, v{m}, v{S+5}, v{S+6}
        v_max_f32 v{m}, v{m}, v{S+7}
        """)
        allred(m, A4, "v_max_f32")
        I(f"v_mul_f32 v{m}, s93, v{m}")
        for k in range(8):
            I(f"v_fma_f32 v{S+k}, v{S+k}, s93, -v{m}")
    def softmax2():
        for k in range(8):
            I(f"v_exp_f32 v{S+k}, v{S+k}")
        l = TT + 1
        I(f"v_add_f32 v{l}, v{S}, v{S+1}")
        for k in range(2, 8):
            I(f"v_add_f32 v{l}, v{l}, v{S+k}")
        for k in range(8):
            I(f"v_cvt_pk_bf16_f32 v{S+k}, v{S+k}, v{S+k}")
    def softmax3():
        allred(TT + 1, A4, "v_add_f32")
        I(f"""
        s_lshl_b32 s88, s3, 3
        v_mov_b32 v{A4}, s88
        v_mov_b32 v{V_MC}, v{TT}
        ds_write_b64 v{A4}, {r2(TT)} offset:{L_ML}
        s_lshl_b32 s99, s44, 5
        s_load_dword s98, s[32:33], s99
        """)

    def ffn_mm(q):
        if q == 0: I(f"v_mov_b32 v{X+3}, 0\nv_mov_b32 v{X+7}, 0")
        for e in range(2):
            for jj in range(3):
                I(f"v_perm_b32 v{X+4*e+jj}, v{W2R+4*(2*jj+1)+q}, v{W2R+4*(2*jj)+q}, s{46+e}")
        for e in range(2):
            I(f"v_mfma_f32_16x16x32_bf16 {r4(X+8+4*e)}, {r4(T)}, {r4(X+4*e)}, 0")
    def ffn_fold(q):
        for e in range(2):
            c = 2 * q + e
            a = X + 8 + 4 * e
            I(f"v_add_f32_dpp v{F+c//4}, v{a+1}, v{a} row_ror:8 row_mask:{1 << (c%4):#x} bank_mask:0x3")
        if q == 3:
            for u in range(2):
                I(f"v_mul_f32_dpp v{F+u}, v{F+u}, v{V_G+1} quad_perm:[0,1,2,3] row_mask:0xf bank_mask:0x3")

    def build_a(t):
        k, half = t // 2, t % 2
        for r in range(4):
            mir = (r >= 2) != (half == 1)
            d = AOP + 4 * (t % 2) + r
            if mir: I(f"v_and_b32_dpp v{d}, v{S+k}, v{MASK+r} row_half_mirror {DPPF}")
            else: I(f"v_and_b32 v{d}, v{S+k}, v{MASK+r}")

    vdone = [0]
    def pv(n):
        t = n // 2
        acc = ACC0 if n % 2 == 0 else ACC1
        c = "0" if n < 2 else r4(acc)
        I(f"v_mfma_f32_16x16x32_bf16 {r4(acc)}, {r4(AOP+4*(t%2))}, {r4(slot(n%8))}, {c}")
        vdone[0] = n + 1
        if n % 2 == 1 and t + 2 < 16: build_a(t + 2)

    wopairs = [0]
    def wo_perm(p):
        grp, jj = p // 4, p % 4
        a, b = stage(2 * p), stage(2 * p + 1)
        for q in range(4):
            for e in range(2):
                I(f"v_perm_b32 v{slot(8)+32*grp+4*(2*q+e)+jj}, v{b+q}, v{a+q}, s{46+e}")
        wopairs[0] = p + 1

    def ml_issue():
        I(f"""
        v_and_b32 v{A4+3}, 7, v0
        v_lshlrev_b32 v{A4+3}, 3, v{A4+3}
        s_waitcnt lgkmcnt(0)
        {"" if MLF else "s_barrier"}
        ds_read_b64 {r2(A4)}, v{A4+3} offset:{L_ML}
        s_cmp_eq_u32 s98, 1
        s_cbranch_scc1 L_zok
        s_mov_b32 s92, 200000
        v_mov_b32 v{TT}, 0
        s_mov_b64 exec, 1""")
        g.label("L_zpoll")
        I(f"""
        buffer_load_dword v{TT+1}, v{TT}, s[32:35], s99 offen sc1
        s_waitcnt vmcnt(0)
        v_cmp_eq_u32 vcc, 1, v{TT+1}
        s_cbranch_vccnz L_zdone
        s_sub_u32 s92, s92, 1
        s_cbranch_scc0 L_zpoll""")
        g.label("L_zdone")
        I("s_mov_b64 exec, -1")
        g.label("L_zok")
    def ml_combine():
        if MLF:
            g.label("L_ml")
            I(f"""
            s_waitcnt lgkmcnt(0)
            v_cmp_eq_u32 vcc, 0, v{A4+1}
            s_cbranch_vccz L_mlok
            ds_read_b64 {r2(A4)}, v{A4+3} offset:{L_ML}
            s_branch L_ml""")
            g.label("L_mlok")
        I(f"""
        s_waitcnt lgkmcnt(0)
        v_max_f32_dpp v{A4+2}, v{A4}, v{A4} quad_perm:[1,0,3,2] {DPPF}
        v_lshrrev_b32 v{V_T2}, 2, v{V_L16}
        s_mul_i32 s88, s3, 288
        v_max_f32_dpp v{A4+2}, v{A4+2}, v{A4+2} quad_perm:[2,3,0,1] {DPPF}
        v_and_b32 v{V_T0}, 32, v0
        v_bfe_u32 v{V_T1}, v0, 1, 3
        v_max_f32_dpp v{A4+2}, v{A4+2}, v{A4+2} row_half_mirror {DPPF}
        v_sub_f32 v{A4}, v{A4}, v{A4+2}
        v_sub_f32 v{V_MC}, v{V_MC}, v{A4+2}
        v_exp_f32 v{A4}, v{A4}
        v_exp_f32 v{V_MC}, v{V_MC}
        v_mul_f32 v{A4}, v{A4}, v{A4+1}
        v_mul_f32 v{V_MC}, v{V_MC}, v{V_G}
        v_mul_u32_u24 v{V_T1}, 288, v{V_T1}
        v_add_f32_dpp v{A4}, v{A4}, v{A4} quad_perm:[1,0,3,2] {DPPF}
        v_and_b32 v{A4+1}, 1, v0
        v_lshl_add_u32 v{V_T1}, v{A4+1}, 7, v{V_T1}
        v_add_f32_dpp v{A4}, v{A4}, v{A4} quad_perm:[2,3,0,1] {DPPF}
        v_lshl_add_u32 v{V_T0}, v{A4+1}, 3, v{V_T0}
        v_and_b32 v{A4+1}, 48, v0
        v_add_f32_dpp v{A4}, v{A4}, v{A4} row_half_mirror {DPPF}
        v_add_u32 v{V_T1}, v{A4+1}, v{V_T1}
        v_rcp_f32 v{A4}, v{A4}
        v_and_b32 v{V_W2}, 0xf0, v{V_L16}
        v_mul_f32 v{V_FAC}, v{V_MC}, v{A4}
        v_bfe_u32 v{A4+1}, v0, 4, 2
        v_lshl_add_u32 v{V_W2}, v{A4+1}, 1, v{V_W2}
        v_bfe_u32 v{A4+2}, v0, 3, 1
        v_lshl_add_u32 v{V_T0}, v{A4+2}, 4, v{V_T0}
        v_bfe_u32 v{A4+2}, v0, 4, 1
        v_lshl_add_u32 v{V_T0}, v{A4+2}, 2, v{V_T0}
        v_bfe_u32 v{A4+2}, v0, 1, 2
        v_add_u32 v{V_T0}, v{A4+2}, v{V_T0}
        v_lshl_add_u32 v{V_T0}, v{V_T0}, 2, s88
        s_lshl_b32 s88, s3, 9
        s_add_u32 s82, s82, s88
        s_lshl_b32 s72, s44, 10
        s_lshl_b32 s88, s3, 7
        s_add_u32 s72, s72, s88
        """)
        if BS:
            I(f"s_lshl_b32 s82, s44, 3\ns_add_u32 s82, s82, s3\ns_lshl_b32 s82, s82, {lb+3}\ns_add_u32 s82, s82, {ACC_OFF}")
        if "a" in kill: I(f"s_mov_b32 s82, {WS_BYTES}")

    def kvtag(i): return f"k{i}" if i < 32 else f"v{i-32}"
    nth = [0]
    def throttle(i, isw=False):
        p = PAT if (i < 32 or PATV is None) else PATV
        if p is None or p == "D":
            g.waitn(D - 1)
        elif not isw:
            d = p[i % len(p)]
            for last in (S1C + 1, SYNC - 1, 32 + B2AT - 1):
                if last - PRE < i <= last: d += PRE - (last - i)
            if PEND and i >= PEND[0]: d = PEND[1]
            if i - d >= 0: g.wait(kvtag(i - d))
        if SL and not isw and B0 <= i < B0 + BU + BW:
            saved = dict(g.done)
            nth[0] += 1
            I(f"s_cmp_le_u32 s71, {i - B0}\ns_cbranch_scc1 L_th{nth[0]}")
            g.wait(kvtag(i - SL))
            g.label(f"L_th{nth[0]}")
            g.done = saved
    vpn = [0]
    def vpf_at(i):
        if VPF2 is not None and i == VPF2:
            I(f"""
            s_lshl_b32 s56, s44, 3
            s_add_u32 s56, s56, s3
            s_mul_i32 s56, s56, 768
            s_lshl_b32 s55, s78, 13
            s_add_u32 s56, s56, s55
            v_lshlrev_b32 v123, 3, v{V_L16}
            s_mov_b64 exec, 63
            buffer_load_dword v{S+1}, v123, s[16:19], s56 offen
            s_mov_b64 exec, -1
            """)
        while VPF and vpn[0] < len(VPF) and i == VPF[vpn[0]]:
            per = 16 // len(VPF)
            I(f"""
            s_lshl_b32 s56, s44, 3
            s_add_u32 s56, s56, s3
            s_mul_i32 s56, s56, {per*128}
            s_lshl_b32 s51, s45, 17
            s_add_u32 s56, s56, s51
            s_add_u32 s56, s56, {vpn[0] * (131072 // len(VPF))}
            v_lshlrev_b32 v123, 3, v{V_L16}
            s_mov_b64 exec, {(1 << per) - 1}
            buffer_load_dword v123, v123, s[48:51], s56 offen
            s_mov_b64 exec, -1
            """.replace("s51", "s55").replace("s[48:55]", "s[48:51]"))
            vpn[0] += 1
    if VPF:
        I("s_mov_b32 s48, s12\ns_mov_b32 s49, s13\ns_mov_b32 s50, 0x400000\ns_mov_b32 s51, 0x20000")
    vpf_at(-1)
    spn = [0]
    def spf_at(i):
        if SPF and spn[0] < 8 and i == SPF[spn[0]]:
            while spn[0] < 8 and i == SPF[spn[0]]:
                p = spn[0]
                if p == 0:
                    I("s_lshl_b32 s56, s44, 3\ns_add_u32 s56, s56, s3\ns_lshl_b32 s56, s56, 8\ns_lshl_b32 s51, s45, 17\ns_add_u32 s56, s56, s51")
                else:
                    I("s_add_u32 s56, s56, s84")
                step = 128 // SPFW
                for k in range(2 * SPFW):
                    if k == 0: I(f"s_load_dword s48, s[12:13], s56 {SPFX}")
                    else: I(f"s_add_u32 s51, s56, {k*step}\ns_load_dword s48, s[12:13], s51 {SPFX}")
                spn[0] += 1
    def sync_reads():
        if SYF: I(f"ds_read_b32 v{X+2}, v{X+1} offset:{L_F}")
        I(f"""
        ds_read_b128 {r4(Q)}, v{V_T0} offset:{L_Q}
        ds_read2_b32 {r2(T)}, v{V_LH} offset0:0 offset1:8
        ds_read2_b32 {r2(T+2)}, v{V_LH} offset0:16 offset1:24
        ds_read_b64 {r2(V_G)}, v{ZERO} offset:{L_G}
        """)
    w2n = 0; won = 0
    synced = False; gate_done = False
    for n in range(D0, 32):
        if n == ZF:
            I(f"""
            s_cmp_lg_u32 s101, {8+ZW}
            s_cbranch_scc1 L_noflag
            v_mov_b32 v{X+1}, 1
            s_and_b32 s86, s2, 7
            s_lshl_b32 s86, s86, 5
            s_mov_b64 exec, 1
            buffer_store_dword v{X+1}, v{ZERO}, s[32:35], s86 offen sc1
            s_mov_b64 exec, -1
            """)
            g.label("L_noflag")
        if n == SYNC:
            stamp("sync")
            I(f"""
            v_and_b32 v{V_T0}, 0xf0, v{V_L16}
            v_add_u32 v{V_LH}, {L_H}, v{V_LH}
            """)
            if SYF: I(f"v_lshrrev_b32 v{X+1}, 2, v{V_I16}")
            else: I("s_waitcnt lgkmcnt(0)\ns_barrier")
            sync_reads()
        throttle(n)
        kload(n)
        spf_at(n); vpf_at(n)
        s1_at(n)
        if n == S1C:
            assert n < 19
            stage1a()
        if n == S1C + 1: stage1b()
        if n == POLL:
            g.vm(f"buffer_load_dwordx4 {r4(PX)}, v{V_XL}, s[28:31], s81 offen sc1", "px")
        if n == POLL + PW:
            assert n < SYNC
            consumer()
        if n == SYNC:
            if SYF:
                g.label("L_sy")
                I(f"s_waitcnt lgkmcnt(0)\nv_cmp_eq_u32 vcc, 0, v{X+2}\ns_cbranch_vccz L_syok")
                sync_reads()
                I("s_branch L_sy")
                g.label("L_syok")
            I(f"""
            s_cmp_lg_u32 s3, {9 if "p" in kill else 0}
            s_cbranch_scc1 L_nobump
            v_mov_b32 v{X}, s98
            s_mov_b64 exec, 1
            buffer_store_dword v{X}, v{ZERO}, s[28:31], s100 offen
            s_mov_b64 exec, -1
            """)
            g.label("L_nobump")
            I("s_waitcnt lgkmcnt(0)")
            g.label("L_synced")
            stamp("synced")
            synced = True
        if not gate_done and g.done['A'] > gate_after and n > S1C + 1:
            assert n < SYNC
            gate(); gate_done = True
        if synced:
            k = kgroups_done[0]
            if k < 8 and 4 * k + 3 <= n and g.is_done(f"k{4*k+3}"):
                consume_group(k)
        while w2n < 6 and n == W2POS[w2n]:
            throttle(n, True)
            w2load(w2n); w2n += 1
        while won < len(WOK) and n == WOK[won]:
            assert won < NE and n > S1C
            throttle(n, True)
            woload(won); won += 1
    assert w2n == 6 and gate_done and won == len(WOK) and len(WOK) + len(WOPOS) == 16
    sm = 0; ffn_q = 0
    def after_step(n):
        nonlocal sm, ffn_q
        k = kgroups_done[0]
        if k < 8:
            if g.is_done(f"k{4*k+3}"): consume_group(k)
            return
        if sm == 0:
            softmax1(); sm = 1; return
        if sm == 1:
            softmax2(); build_a(0); build_a(1); sm = 2; stamp("smax")
        elif sm == 2:
            softmax3(); sm = 3
        while vdone[0] <= n and vdone[0] < 32 and g.is_done(f"v{vdone[0]}"):
            pv(vdone[0])
        p = wopairs[0]
        if p < 8 and 2 * p + 1 < won and g.is_done(f"wo{2*p+1}"):
            wo_perm(p)
        elif sm == 3 and ffn_q < 8 and g.is_done("w2_5"):
            if ffn_q % 2 == 0: ffn_mm(ffn_q // 2)
            else: ffn_fold(ffn_q // 2)
            ffn_q += 1
    for n in range(32):
        if PRIO is not None and n == PRIO:
            I("s_cmp_lt_u32 s3, 4\ns_cbranch_scc1 L_prio\ns_setprio 1")
            g.label("L_prio")
        if n == B2AT:
            assert sm == 3
            ml_issue()
        throttle(32 + n)
        if n < 8: assert kgroups_done[0] > n // 4
        else: assert vdone[0] > n - 8, (n, vdone[0])
        vload(n)
        spf_at(32 + n); vpf_at(32 + n)
        if n == B2AT: ml_combine()
        after_step(n)
        while won < 16 and n == WOPOS[won - len(WOK)]:
            throttle(32 + n, True)
            assert won < NE or kgroups_done[0] >= (7 if won < NE + 4 else 8), (won, kgroups_done[0])
            assert won < NE + 8 or wopairs[0] > (won - 8) // 2, (won, wopairs[0])
            woload(won); won += 1
            after_step(n)
    assert won == 16 and ffn_q == 8
    stamp("issued")
    while vdone[0] < 32:
        g.wait(f"v{vdone[0]}")
        after_step(31)
    stamp("lastv")
    RS = A4
    def spec_issue():
        I("s_mov_b32 s86, 0x01ff01ff\ns_mov_b32 s87, 0x01ff01ff\ns_mov_b64 exec, s[86:87]")
        g.vm(f"buffer_load_dword v{RS}, v{V_T2}, s[28:31], s82 offen sc1", "sp0")
        g.vm(f"buffer_load_dword v{RS+1}, v{V_T2}, s[28:31], s82 offen offset:256 sc1", "sp1")
        I("s_mov_b64 exec, -1")
    if SPEC == 1: spec_issue()
    I(f"""
    v_permlane32_swap_b32 v{ACC1}, v{ACC0+1}
    v_permlane32_swap_b32 v{ACC1+2}, v{ACC0+3}
    v_add_f32_dpp v{T}, v{ACC0}, v{ACC0+1} quad_perm:[0,1,2,3] row_mask:0x3 bank_mask:0xf
    v_add_f32_dpp v{T+1}, v{ACC0+2}, v{ACC0+3} quad_perm:[0,1,2,3] row_mask:0x3 bank_mask:0xf
    v_add_f32_dpp v{T}, v{ACC1+1}, v{ACC1} quad_perm:[0,1,2,3] row_mask:0xc bank_mask:0xf
    v_add_f32_dpp v{T+1}, v{ACC1+3}, v{ACC1+2} quad_perm:[0,1,2,3] row_mask:0xc bank_mask:0xf
    v_mul_f32 v{T}, v{T}, v{V_FAC}
    v_mul_f32 v{T+1}, v{T+1}, v{V_FAC}
    v_cvt_pk_bf16_f32 v{T}, v{T}, v{T+1}
    ds_write_b32 v{V_T0}, v{T} offset:{L_O}
    s_waitcnt lgkmcnt(0)
    s_barrier
    """)
    stamp("b3")
    I(f"ds_read_b128 {r4(AOP)}, v{V_T1} offset:{L_O}")
    I(f"ds_read_b128 {r4(AOP+4)}, v{V_T1} offset:{L_O+64}")
    if SPEC == 2: spec_issue()
    while wopairs[0] < 8:
        g.wait(f"wo{2*wopairs[0]+1}")
        wo_perm(wopairs[0])
    TACC = slot(0); E = STG
    I(f"""
    s_mov_b32 s88, {f2u(31.0):#x}
    s_mov_b32 s90, 0x00ff00ff
    s_mov_b32 s91, 0x00ff00ff
    s_mov_b32 s86, 0x01ff01ff
    s_mov_b32 s87, 0x01ff01ff
    s_waitcnt lgkmcnt(0)
    """)
    def estep(c):
        a = TACC + 4 * c
        I(f"v_add_f32_dpp v{E+c}, v{a}, v{a+2} quad_perm:[0,1,2,3] row_mask:0xf bank_mask:0x3")
        I(f"v_add_f32_dpp v{E+c}, v{a+1}, v{a+3} quad_perm:[0,1,2,3] row_mask:0xf bank_mask:0xc")
    def s32(c): I(f"v_permlane32_swap_b32 v{E+c}, v{E+c+2}\nv_add_f32 v{E+c}, v{E+c}, v{E+c+2}")
    def s16(u): I(f"v_permlane16_swap_b32 v{E+4*u}, v{E+4*u+1}\nv_add_f32 v{E+4*u}, v{E+4*u}, v{E+4*u+1}")
    def fin(u): I(f"v_add_f32_dpp v{XU+u}, v{E+4*u}, v{E+4*u} row_ror:8 row_mask:0xf bank_mask:0x3")
    def mm(c):
        for grp in range(2):
            cc = "0" if grp == 0 else r4(TACC + 4 * c)
            I(f"v_mfma_f32_16x16x32_bf16 {r4(TACC+4*c)}, {r4(AOP+4*grp)}, {r4(slot(8)+32*grp+4*c)}, {cc}")
    mm(0); mm(2); mm(1); mm(3); mm(4)
    estep(0); estep(2); mm(6)
    s32(0); estep(1); estep(3); mm(5)
    estep(4); s32(1); mm(7)
    estep(6); s16(0); estep(5); s32(4); fin(0); estep(7)
    I(f"v_add_f32 v{T}, v{XU}, v{F}\nv_add_f32 v{XU}, v{XU}, v{F}")
    s32(5); s16(1); fin(1)
    stamp("preat")
    if SPEC:
        I(f"v_add_f32 v{T+1}, v{XU+1}, v{F+1}\nv_add_f32 v{XU+1}, v{XU+1}, v{F+1}\ns_mov_b64 exec, s[86:87]")
        g.wait("sp1")
        I(f"""
        v_mov_b32_dpp v{RS+2}, v{RS} row_newbcast:8 {DPPF}
        v_mov_b32_dpp v{RS+3}, v{RS+1} row_newbcast:8 {DPPF}
        v_cmp_neq_f32 vcc, s88, v{RS+2}
        v_cmp_neq_f32 s[84:85], s88, v{RS+3}
        s_or_b64 s[76:77], vcc, s[84:85]
        v_cndmask_b32 v{T}, v{RS}, v{T}, vcc
        v_cndmask_b32 v{T+1}, v{RS+1}, v{T+1}, s[84:85]
        s_cbranch_scc0 L_noat
        s_mov_b64 exec, s[84:85]
        buffer_atomic_add_f32 v{T+1}, v{V_T2}, s[28:31], s82 offen offset:256 sc0
        s_mov_b64 exec, vcc
        buffer_atomic_add_f32 v{T}, v{V_T2}, s[28:31], s82 offen sc0
        s_mov_b64 exec, s[86:87]
        s_waitcnt vmcnt(0)
        """)
        g.label("L_noat")
    else:
        I(f"""
        v_add_f32 v{T+1}, v{XU+1}, v{F+1}
        s_mov_b64 exec, s[86:87]
        """)
        g.vm(f"buffer_atomic_add_f32 v{T+1}, v{V_C4 if BS else V_T2}, s[28:31], s82 offen offset:{4*BS if BS else 256} sc0 {APOL}", "at1")
        g.vm(f"buffer_atomic_add_f32 v{T}, v{V_C4 if BS else V_T2}, s[28:31], s82 offen sc0 {APOL}", "at0")
        I(f"v_add_f32 v{XU+1}, v{XU+1}, v{F+1}")
        g.wait("at0")
    I(f"""
    v_mov_b32_dpp v{T+2}, v{T} row_newbcast:8 {DPPF}
    v_mov_b32_dpp v{T+3}, v{T+1} row_newbcast:8 {DPPF}
    v_add_f32 v{T}, v{T}, v{XU}
    v_add_f32 v{T+1}, v{T+1}, v{XU+1}
    v_cmp_eq_f32 vcc, s88, v{T+2}
    v_cmp_eq_f32 s[86:87], s88, v{T+3}
    v_cvt_pk_bf16_f32 v{T}, v{T}, v{T+1}
    s_and_b64 exec, vcc, s[90:91]
    s_cbranch_execz L_nost0
    buffer_store_short v{T}, v{V_W2}, s[36:39], s72 offen {OPOL}
    """)
    g.label("L_nost0")
    I(f"""
    s_and_b64 exec, s[86:87], s[90:91]
    s_cbranch_execz L_nost1
    buffer_store_short_d16_hi v{T}, v{V_W2}, s[36:39], s72 offen offset:8 {OPOL}
    """)
    g.label("L_nost1")
    if stamps:
        I("s_mov_b64 exec, -1\ns_memtime s[62:63]")
        stamp("end")
        I(f"""
        s_sub_u32 s62, s62, s64
        v_writelane_b32 v{V_ST}, s62, 14
        s_getreg_b32 s96, hwreg(HW_REG_XCC_ID)
        s_nop 0
        v_writelane_b32 v{V_ST}, s96, 15
        s_lshl_b32 s88, s2, 9
        s_lshl_b32 s89, s3, 6
        s_add_u32 s88, s88, s89
        s_add_u32 s88, s88, {STAMP_OFF}
        s_mov_b64 exec, 0xffff
        buffer_store_dword v{V_ST}, v{V_T2}, s[28:31], s88 offen
        """)
    if ZE:
        I("s_endpgm")
        g.label("L_zero")
        I(f"""
        s_mov_b32 s30, {WS_BYTES}
        s_mov_b32 s31, 0x20000
        s_and_b32 s88, s2, 7
        s_lshl_b32 s88, s88, 12
        s_add_u32 s88, s88, {ACC_OFF}
        v_mov_b32 v{ZERO}, 0
        v_mov_b32 v{ZERO+1}, 0
        v_lshlrev_b32 v{V_T1}, 3, v0
        buffer_store_dwordx2 {r2(ZERO)}, v{V_T1}, s[28:31], s88 offen {ZPOL}
        s_branch L_zret
        """)
    fix_cfg(g)
    body = g.text()
    head = f"""; gated mix of sliding-window decode attention and SwiGLU FFN, one workgroup per (batch, head)
; @launch grid=(256,1,1) block=(512,1,1) lds={LDS_BYTES}
.amdgcn_target "amdgcn-amd-amdhsa--gfx950"
.text
.globl {KNAME}
.p2align 8
.type {KNAME},@function
{KNAME}:
"""
    foot = f"""L_end:
    s_endpgm
.section .rodata,"a"
.p2align 6
.amdhsa_kernel {KNAME}
  .amdhsa_next_free_vgpr 256
  .amdhsa_next_free_sgpr 102
  .amdhsa_accum_offset 256
  .amdhsa_group_segment_fixed_size 0
  .amdhsa_kernarg_size 104
  .amdhsa_user_sgpr_count 2
  .amdhsa_user_sgpr_kernarg_segment_ptr 1
  .amdhsa_system_sgpr_workgroup_id_x 1
  .amdhsa_float_denorm_mode_32 3
.end_amdhsa_kernel
"""
    return head + body + foot

if __name__ == "__main__":
    out = sys.argv[1]
    kw = {}
    for a in sys.argv[2:]:
        k, v = a.split("=")
        kw[k] = eval(v)
    open(out, "w").write(gen(**kw))
```

```python
import sys, struct
from asmlib import Gen, fix_cfg, cfg_problems

KNAME = "gated_mix__sliding_block_cached__glu_gated_swiglu__decode_kernel"
def f2u(x): return struct.unpack("<I", struct.pack("<f", x))[0]

L_O, L_Q, L_H, L_G, L_ML, L_F = 0, 2304, 2560, 2816, 2848, 2912
L_X = 3072
L_P = L_X + 4096
LDS_BYTES = L_P + 16384
ACC_OFF = 1024 * 1024
STAMP_OFF = 4 * 1024 * 1024
WS_BYTES = 8 * 1024 * 1024

V_L16, V_WO, V_W2, V_KV, V_T0, V_T1, V_T2 = 1, 2, 3, 4, 5, 6, 7
Q = 8; MASK = 12; S = 16; A4 = 24; TT = 28; F = 30; ACC0 = 32; ACC1 = 36; AOP = 40
T = 48
V_S1 = 52; V_FAC = 52; V_MC = 53; V_XL = 54; V_I16 = 55
STG = 56
W2R = 72
X = 104
ZERO = 116
V_G = 120
V_C4 = 122; V_LH = 124; V_ST = 125; XU = 126
SLOT = 128
def slot(n): return SLOT + 4 * n
def r4(b): return f"v[{b}:{b+3}]"
def r2(b): return f"v[{b}:{b+1}]"
DPPF = "row_mask:0xf bank_mask:0xf"

def gen(D=5, PAT=(3,), PATV=None, FAST=0, PT=9, S1C=4, POLL=18, PW=4, SYNC=24, W2POS=(9, 11, 13, 15, 17, 19), WOK=(21, 23, 26, 29),
        WOPOS=(0, 2, 5, 7, 9, 11, 14, 16, 18, 21, 23, 26), B2AT=20, ZF=16, SL=2, BU=8, BW=3, B0=None, S1POS=None, PRE=0, WIDE=0, PEND=(57, 5), NB=None, XW=(), MLF=0, SYF=0, GW=0, ZW=1, PRIO=None, BQ=6, APOL='', OPOL='', ZPOL='sc1', SPEC=0, BS=64, ZE=0, wopol='nt', SPF=None, SPFW=1, SPFX='', VPF=None, VPF2=None, EPF=1, XPF=1, XL='sc1', XWB=0, XWP='sc1', PP='', INV=None, INVP='sc0', TP=None, EWO=1, DZ=None,
        stamps=False, kill=""):
    g = Gen(); g.roles = ['A']; g.done = {'A': 0}
    I = g.I
    if B0 is None: B0 = S1C + 2
    names = []
    def stamp(name):
        if stamps:
            if name not in names: names.append(name)
            k = names.index(name)
            assert k < 14
            I(f"s_memrealtime s[96:97]\ns_waitcnt lgkmcnt(0)\nv_writelane_b32 v{V_ST}, s96, {k}")
    def kvoff(n):
        return sum(((n >> k) & 1) << b for k, b in enumerate(NB))
    def kload(n):
        if NB:
            I(f"s_xor_b32 s74, s57, {kvoff(n)}")
            g.vm(f"buffer_load_dwordx4 {r4(slot(n))}, v{V_KV}, s[4:7], s74 offen nt", f"k{n}"); return
        if n % 4 == 0 and n > 0: I("s_add_u32 s74, s74, s75")
        g.vm(f"buffer_load_dwordx4 {r4(slot(n))}, v{V_KV}, s[4:7], s74 offen offset:{(n%4)*1024} nt", f"k{n}")
    def vload(n):
        if NB:
            I(f"s_xor_b32 s74, s57, {kvoff(n)}")
            g.vm(f"buffer_load_dwordx4 {r4(slot(n%8))}, v{V_KV}, s[8:11], s74 offen nt", f"v{n}"); return
        if n == 0: I("s_mov_b32 s74, s57")
        if n % 4 == 0 and n > 0: I("s_add_u32 s74, s74, s75")
        g.vm(f"buffer_load_dwordx4 {r4(slot(n%8))}, v{V_KV}, s[8:11], s74 offen offset:{(n%4)*1024} nt", f"v{n}")
    def w2load(j):
        so = ["0", "s84", "s75"][j // 2]
        g.vm(f"buffer_load_dwordx4 {r4(W2R+4*j)}, v{V_W2}, s[16:19], {so} offen offset:{(j%2)*1024} {wopol}", f"w2_{j}")
    NE = 6
    def stage(n):
        if n < 4: return STG + 4 * n
        if n < NE: return W2R + 24 + 4 * (n - 4)
        return slot(24 + (n - NE) % 8)
    def woload(n):
        if n == 0: I("s_mov_b32 s83, 0")
        elif n % 2 == 0: I("s_add_u32 s83, s83, s84")
        if "n" in kill and n % 2 == 0: I(f"s_cmp_eq_u32 s44, {n // 2}\ns_cselect_b32 s14, 0x400000, 0")
        g.vm(f"buffer_load_dwordx4 {r4(stage(n))}, v{V_WO}, s[12:15], s83 offen offset:{(n%2)*2048} {TP[1] if (TP and n >= TP[0]) else wopol}", f"wo{n}")
    def s1load(j):
        g.vm(f"buffer_load_dwordx4 {r4(STG+4*j)}, v{V_S1}, s[20:23], s68 offen nt", f"s1_{j}")
        if j < 3: I(f"s_add_u32 s68, s68, {'s67' if j == 1 else 's76'}")

    if stamps: I("s_memrealtime s[60:61]")
    I(f"""
    s_load_dwordx2 s[4:5], s[0:1], 8
    s_load_dwordx2 s[28:29], s[0:1], 96
    {"s_load_dwordx2 s[12:13], s[0:1], 32" if EWO else ""}
    s_lshr_b32 s3, s2, 8
    s_cbranch_scc1 L_end
    v_and_b32 v{V_L16}, 63, v0
    v_lshrrev_b32 v{V_T0}, 6, v0
    v_lshlrev_b32 v{V_L16}, 4, v{V_L16}
    """)
    if PT:
        I("; pull the kernel's own code towards L2 while the kernarg load is in flight\ns_getpc_b64 s[52:53]")
        g.label("L_pc")
        I(f"""
        v_mul_u32_u24 v{V_T2}, {PT*128}, v{V_T0}
        v_lshl_add_u32 v{V_T2}, v{V_L16}, 3, v{V_T2}
        v_min_u32 v{V_T2}, L_end-L_pc, v{V_T2}
        s_mov_b64 exec, {(1 << PT) - 1}
        global_load_dword v{S}, v{V_T2}, s[52:53] {PP}
        s_mov_b64 exec, -1
        """)
    I(f"""
    s_lshl_b32 s74, s2, 20
    v_lshl_add_u32 v{V_KV}, v{V_T0}, 12, v{V_L16}
    s_add_u32 s74, s74, 0xc0000
    s_brev_b32 s6, 8
    s_mov_b32 s7, 0x20000
    """)
    if NB:
        for (src, dst) in XW:
            I(f"s_bfe_u32 s57, s2, {(1<<16)|src:#x}\ns_lshl_b32 s57, s57, {dst}\ns_xor_b32 s74, s74, s57")
        I("s_mov_b32 s57, s74")
    if EWO:
        I(f"""
        s_lshr_b32 s44, s2, 5
        s_and_b32 s45, s2, 31
        s_lshl_b32 s56, s45, 3
        s_add_u32 s56, s56, s44
        s_lshl_b32 s56, s56, 14
        v_lshlrev_b32 v123, 3, v{V_L16}
        v_lshl_add_u32 v{V_T1}, v{V_T0}, 11, v123
        s_mov_b32 s14, 0x400000
        s_mov_b32 s15, s7
        s_mov_b64 exec, 0xffff
        s_waitcnt lgkmcnt(0)
        """)
        g.vm(f"buffer_load_dword v{S+1}, v{V_T1}, s[12:15], s56 offen {PP}", "pfo")
        I("s_mov_b64 exec, -1")
        for n in range(FAST): kload(n)
    elif FAST:
        I("s_waitcnt lgkmcnt(0)")
        for n in range(FAST): kload(n)
    if ZE:
        assert FAST and BS == 64
        I("s_lshr_b32 s88, s2, 3\ns_cmp_eq_u32 s88, 1\ns_cbranch_scc1 L_zero")
        g.label("L_zret")
    if stamps:
        names += ["start", "k0", "k1"]
        I("s_memrealtime s[58:59]")
    I(f"""
    v_readfirstlane_b32 s3, v{V_T0}
    s_bfe_u32 s70, s2, 0x20005
    s_load_dwordx2 s[24:25], s[0:1], 0
    s_lshl_b32 s86, s70, 3
    s_add_u32 s86, s86, 32
    s_cmp_lt_u32 s70, 2
    s_cselect_b32 s86, 24, s86
    s_load_dwordx2 s[20:21], s[0:1], s86
    {"s_load_dwordx2 s[12:13], s[0:1], 32" if (EPF and not EWO) else ""}
    {"s_load_dwordx2 s[16:17], s[0:1], 64" if EPF else ""}
    {"" if EWO else "s_lshr_b32 s44, s2, 5"}
    {"" if EWO else "s_and_b32 s45, s2, 31"}
    s_and_b32 s87, s45, 7
    s_lshl_b32 s87, s87, 2
    s_lshr_b32 s88, s45, 3
    s_add_u32 s87, s87, s88
    s_mul_i32 s87, s87, {16*43691}
    s_add_u32 s87, s87, {2*43691}
    s_lshr_b32 s78, s87, 17
    s_add_u32 s87, s87, {16*43691}
    s_lshr_b32 s79, s87, 17
    s_cmp_eq_u32 s79, 171
    s_addc_u32 s79, s79, 0
    s_sub_u32 s89, s79, s78
    s_movk_i32 s26, 8192
    s_lshl_b32 s87, s45, 8
    s_lshl_b32 s88, s70, 7
    s_add_u32 s87, s87, s88
    s_lshl_b32 s88, s78, 4
    s_cmp_lt_u32 s70, 2
    s_cselect_b32 s76, s26, 2752
    s_cselect_b32 s87, s87, s88
    s_cselect_b32 s89, 8, s89
    s_lshl_b32 s22, s76, 9
    s_mov_b32 s23, 0x20000
    s_mov_b32 s27, 0x20000
    s_lshr_b32 s88, s44, 2
    s_lshl_b32 s88, s88, 3
    s_add_u32 s88, s88, s3
    s_lshl_b32 s69, s88, 6
    s_lshl_b32 s88, s88, 5
    s_mul_i32 s88, s88, s76
    s_add_u32 s68, s87, s88
    s_mul_i32 s67, s76, 15
    v_bfe_u32 v{T}, v0, 3, 3
    v_and_b32 v{V_T2}, 7, v0
    v_lshlrev_b32 v{T+1}, 1, v{T}
    v_lshlrev_b32 v{V_I16}, 4, v{V_T2}
    v_cmp_gt_u32 vcc, s89, v{V_T2}
    v_mad_u32_u24 v{V_S1}, v{T+1}, s76, v{V_I16}
    v_bfrev_b32 v{T+2}, 1
    v_cndmask_b32 v{V_S1}, v{T+2}, v{V_S1}, vcc
    v_lshlrev_b32 v{V_T2}, 3, v{V_T2}
    v_lshl_add_u32 v{T+3}, v{T}, 10, v{V_T2}
    {'' if NB else 's_mov_b32 s57, s74'}
    s_mov_b32 s75, 0x8000
    """)
    if "s" in kill: I("s_mov_b32 s22, 0")
    I("s_waitcnt lgkmcnt(0)")
    if stamps: I("s_memrealtime s[54:55]\ns_memtime s[64:65]")
    XOP = X + 8; Y = X
    s1n = [0]
    def s1_at(n):
        while s1n[0] < 4 and (S1POS is None or S1POS[s1n[0]] <= n):
            s1load(s1n[0]); s1n[0] += 1
    g.vm(f"buffer_load_dwordx2 {r2(XOP)}, v{T+3}, s[24:27], s69 offen", "xop")
    def epf():
        if EWO:
            I(f"""
            s_lshl_b32 s18, s79, 13
            s_mov_b32 s19, 0x20000
            s_lshl_b32 s56, s44, 3
            s_add_u32 s56, s56, s3
            s_mul_i32 s55, s56, 768
            s_lshl_b32 s87, s78, 13
            s_add_u32 s55, s55, s87
            """)
        else:
            I(f"""
            s_mov_b32 s14, 0x400000
            s_mov_b32 s15, 0x20000
            s_lshl_b32 s18, s79, 13
            s_mov_b32 s19, 0x20000
            s_lshl_b32 s56, s44, 3
            s_add_u32 s56, s56, s3
            s_mul_i32 s55, s56, 768
            s_lshl_b32 s56, s56, 11
            s_lshl_b32 s87, s45, 17
            s_add_u32 s56, s56, s87
            s_lshl_b32 s87, s78, 13
            s_add_u32 s55, s55, s87
            v_lshlrev_b32 v123, 3, v{V_L16}
            s_mov_b64 exec, 0xffff
            """)
            g.vm(f"buffer_load_dword v{S+1}, v123, s[12:15], s56 offen {PP}", "pfo")
        I("s_mov_b64 exec, 63")
        g.vm(f"buffer_load_dword v{S+2}, v123, s[16:19], s55 offen {PP}", "pf2")
        if XPF:
            I(f"""
            s_mov_b32 s30, {WS_BYTES}
            s_mov_b32 s31, 0x20000
            s_lshl_b32 s55, s44, 3
            s_add_u32 s55, s55, s3
            s_lshl_b32 s55, s55, 8
            s_lshl_b32 s87, s45, 15
            s_add_u32 s55, s55, s87
            s_mov_b64 exec, 3
            """)
            g.vm(f"buffer_load_dword v{S+3}, v123, s[28:31], s55 offen {PP}", "pfx")
        I("s_mov_b64 exec, -1")
    if EPF == 2: epf()
    s1_at(FAST - 1)
    if EPF == 1: epf()
    D0 = max(PAT[0] if PAT else D, FAST) if DZ is None else DZ
    for n in range(FAST, D0):
        kload(n); s1_at(n)
    if EPF == 3: epf()
    I(f"""
    s_load_dwordx2 s[8:9], s[0:1], 16
    {"" if EPF else "s_load_dwordx2 s[12:13], s[0:1], 32"}
    {"" if EPF else "s_load_dwordx2 s[16:17], s[0:1], 64"}
    s_load_dwordx2 s[32:33], s[0:1], 88
    s_load_dwordx2 s[36:37], s[0:1], 80
    s_load_dwordx2 s[40:41], s[0:1], 72
    s_lshl_b32 s81, s45, 15
    s_lshl_b32 s87, s3, 7                 ; 128 w
    s_add_u32 s99, s81, 0x4000
    s_lshl_b32 s88, s44, 7
    s_add_u32 s100, s99, s88
    s_add_u32 s99, s99, s87
    s_waitcnt lgkmcnt(0)
    s_load_dword s98, s[28:29], s100
    s_load_dword s85, s[28:29], s99
    s_mov_b32 s30, {WS_BYTES}
    s_mov_b32 s31, 0x20000
    s_brev_b32 s10, 8
    s_mov_b32 s11, 0x20000
    s_mov_b32 s14, 0x400000
    s_mov_b32 s15, 0x20000
    s_lshl_b32 s18, s79, 13
    s_mov_b32 s19, 0x20000
    s_movk_i32 s34, 256
    s_mov_b32 s35, 0x20000
    s_movk_i32 s38, 8192
    s_mov_b32 s39, 0x20000
    s_movk_i32 s42, 1024
    s_mov_b32 s43, 0x20000
    s_cmp_lg_u32 s3, {GW}
    s_cbranch_scc1 L_nogl
    s_lshl_b32 s88, s44, 10
    buffer_load_dwordx4 {r4(AOP)}, v{V_L16}, s[24:27], s88 offen
    buffer_load_dwordx4 {r4(AOP+4)}, v{V_L16}, s[40:43], 0 offen
    """)
    g.label("L_nogl")
    g.q.append(("gmark", None))
    g.q.pop()
    gate_after = len(g.q)
    I(f"""
    s_mov_b32 s46, 0x05040100
    s_mov_b32 s47, 0x07060302
    s_movk_i32 s84, 16384
    s_mov_b32 s93, {f2u(1.4426950408889634):#x}
    s_mov_b32 s94, {f2u(128 ** -0.5):#x}
    s_mov_b32 s95, 0xffff0000
    s_lshl_b32 s89, s78, 13
    s_add_u32 s89, s89, s87
    v_lshl_add_u32 v{V_W2}, v{T+1}, 10, v{V_I16}
    v_add_u32 v{V_W2}, s89, v{V_W2}
    s_lshl_b32 s89, s45, 17
    s_add_u32 s89, s89, s87
    v_add_u32 v{V_WO}, s89, v{V_I16}
    v_bfe_u32 v{V_T0}, v0, 4, 2
    v_lshl_add_u32 v{V_WO}, v{V_T0}, 12, v{V_WO}
    v_bfe_u32 v{V_T1}, v0, 3, 1
    v_lshl_add_u32 v{V_WO}, v{V_T1}, 10, v{V_WO}
    v_lshl_add_u32 v{V_XL}, v{T}, 11, v{V_I16}
    v_and_b32 v{V_T1}, 1, v0
    v_lshl_add_u32 v{V_T1}, v{V_T0}, 1, v{V_T1}
    v_lshlrev_b32 v{V_LH}, 2, v{V_T1}                ; (2g + kh)*4
    s_lshl_b32 s89, s44, 11
    s_add_u32 s80, s81, s89
    s_lshl_b32 s89, s3, 8
    s_add_u32 s80, s80, s89
    s_lshl_b32 s89, s44, 8
    s_add_u32 s81, s81, s89
    s_and_b32 s89, s87, 128
    s_add_u32 s81, s81, s89
    s_lshl_b32 s82, s44, 12
    s_add_u32 s82, s82, {ACC_OFF}
    s_lshr_b32 s101, s2, 3
    s_lshl_b32 s101, s101, 3
    s_add_u32 s101, s101, s3
    ; masks
    v_and_b32 v{V_T1}, 1, v0
    v_lshlrev_b32 v{V_T1}, 4, v{V_T1}
    v_mov_b32 v{V_T2}, 0xffff
    v_lshlrev_b32 v{V_T1}, v{V_T1}, v{V_T2}
    v_bfe_u32 v{V_T2}, v0, 1, 2
    """)
    fill = [f"v_mov_b32 v{ZERO}, 0\nv_mov_b32 v{ZERO+1}, 0", f"v_mov_b32 v{ZERO+2}, 0\nv_mov_b32 v{ZERO+3}, 0",
            f"v_mov_b32 v{F}, 1.0\nv_mov_b32 v{F+1}, 1.0", f"v_mov_b32 v{XU}, 0\nv_mov_b32 v{XU+1}, 0"]
    for r in range(4):
        I(f"v_cmp_eq_u32 vcc, {r}, v{V_T2}\n{fill[r]}\nv_cndmask_b32 v{MASK+r}, 0, v{V_T1}, vcc")
    if SL:
        I(f"""
        s_lshr_b32 s87, s70, 1
        s_xor_b32 s87, s87, 1
        s_mul_i32 s71, s87, {BU}
        s_sub_u32 s87, s78, s79
        s_add_u32 s87, s87, 6
        s_mul_i32 s87, s87, {BW}
        s_add_u32 s71, s71, s87
        """)
        if BQ:
            I(f"s_and_b32 s87, s2, 0x63\ns_cmp_eq_u32 s87, 0x21\ns_cselect_b32 s87, {BQ}, 0\ns_sub_u32 s71, s71, s87")
    if WIDE == 1:
        I(f"""
        v_and_b32 v{V_T1}, 0xf0, v{V_L16}
        v_bfe_u32 v{V_T2}, v0, 7, 2
        v_lshl_add_u32 v{V_T1}, v{V_T2}, 8, v{V_T1}
        v_bfe_u32 v{V_T2}, v0, 4, 2
        v_lshl_add_u32 v{V_T1}, v{V_T2}, 12, v{V_T1}
        v_bfe_u32 v{V_T2}, v0, 6, 1
        s_lshl_b32 s89, s45, 17
        v_lshl_add_u32 v{V_WO}, v{V_T2}, 10, v{V_T1}
        v_add_u32 v{V_WO}, s89, v{V_WO}
        s_lshl_b32 s89, s78, 13
        v_lshl_add_u32 v{V_W2}, v{V_T2}, 11, v{V_T1}
        v_add_u32 v{V_W2}, s89, v{V_W2}
        """)
    if WIDE == 2:
        I(f"""
        v_bfe_u32 v{V_T2}, v0, 7, 2
        v_lshl_add_u32 v{V_T1}, v{V_T2}, 12, v{V_L16}
        v_bfe_u32 v{V_T2}, v0, 6, 1
        s_lshl_b32 s89, s45, 17
        v_lshl_add_u32 v{V_WO}, v{V_T2}, 10, v{V_T1}
        v_add_u32 v{V_WO}, s89, v{V_WO}
        s_lshl_b32 s89, s78, 13
        v_lshl_add_u32 v{V_W2}, v{V_T2}, 11, v{V_T1}
        v_add_u32 v{V_W2}, s89, v{V_W2}
        """)
    if "o" in kill: I("s_mov_b32 s14, 0")
    if "2" in kill: I("s_mov_b32 s18, 0")
    if "x" in kill: I(f"s_mov_b32 s80, {WS_BYTES}\ns_mov_b32 s81, {WS_BYTES}")
    if BS:
        import math
        lb = int(math.log2(BS))
        I(f"""
        v_bfe_u32 v{V_C4}, v0, 4, 2
        v_and_b32 v{V_T1}, 15, v0
        v_lshlrev_b32 v{V_C4}, {lb}, v{V_C4}
        v_lshl_add_u32 v{V_C4}, v{V_T1}, 2, v{V_C4}
        s_lshr_b32 s88, s2, 3
        s_cmp_lg_u32 s88, {99 if ("z" in kill or ZE) else 1}
        s_cbranch_scc1 L_nozero
        s_and_b32 s88, s2, 7
        s_lshl_b32 s88, s88, 3
        s_add_u32 s88, s88, s3
        s_lshl_b32 s88, s88, {lb+3}
        s_add_u32 s88, s88, {ACC_OFF}
        buffer_store_dword v{ZERO}, v{V_C4}, s[28:31], s88 offen {ZPOL}
        buffer_store_dword v{ZERO}, v{V_C4}, s[28:31], s88 offen offset:{4*BS} {ZPOL}
        """)
        ZF = SYNC + 1
    else:
        I(f"""
        s_cmp_lg_u32 s101, {8+ZW}
        s_cbranch_scc1 L_nozero
        s_and_b32 s88, s2, 7
        s_lshl_b32 s88, s88, 12
        s_add_u32 s88, s88, {ACC_OFF}
        buffer_store_dwordx4 {r4(ZERO)}, v{V_L16}, s[28:31], s88 offen {ZPOL}
        buffer_store_dwordx4 {r4(ZERO)}, v{V_L16}, s[28:31], s88 offen offset:1024 {ZPOL}
        buffer_store_dwordx4 {r4(ZERO)}, v{V_L16}, s[28:31], s88 offen offset:2048 {ZPOL}
        buffer_store_dwordx4 {r4(ZERO)}, v{V_L16}, s[28:31], s88 offen offset:3072 {ZPOL}
        """)
    g.label("L_nozero")
    if stamps:
        I(f"s_waitcnt lgkmcnt(0)\nv_mov_b32 v{V_ST}, 0\nv_writelane_b32 v{V_ST}, s60, 0\nv_writelane_b32 v{V_ST}, s58, 1\nv_writelane_b32 v{V_ST}, s54, 2")
    stamp("b0")

    W1FR = slot(20); W1ACC = slot(24)
    def stage1a():
        I(f"""
        s_lshl_b32 s87, s3, 9
        s_add_u32 s87, s87, {L_X}
        v_lshrrev_b32 v{A4}, 1, v{V_L16}
        v_add_u32 v{A4}, s87, v{A4}
        v_bfe_u32 v{A4+1}, v0, 1, 3
        v_lshl_add_u32 v{A4+1}, v{A4+1}, 6, v{V_LH}
        v_add_u32 v{A4+1}, s87, v{A4+1}
        """)
        if MLF or SYF:
            I(f"v_lshrrev_b32 v{A4+2}, 2, v{V_L16}\nv_and_b32 v{A4+2}, 0x7c, v{A4+2}\nds_write_b32 v{A4+2}, v{ZERO} offset:{L_ML}")
        g.wait("xop")
        I(f"""
        ds_write_b64 v{A4}, {r2(XOP)}
        ds_read2_b32 {r2(XOP)}, v{A4+1} offset0:0 offset1:8
        s_lshl_b32 s87, s3, 11
        v_lshl_add_u32 v{A4+2}, v{V_L16}, 1, s87
        """)
        for jj in range(2):
            g.wait(f"s1_{2*jj+1}")
            for q in range(4):
                for e in range(2):
                    I(f"v_perm_b32 v{W1FR+2*(2*q+e)+jj}, v{STG+4*(2*jj+1)+q}, v{STG+4*(2*jj)+q}, s{46+e}")
        I("s_waitcnt lgkmcnt(0)")
        for c in range(8):
            I(f"v_mfma_f32_16x16x16_bf16 {r4(W1ACC+4*c)}, {r2(XOP)}, {r2(W1FR+2*c)}, 0")
        for c in range(8):
            a = W1ACC + 4 * c
            I(f"v_add_f32_dpp v{Y+c}, v{a+1}, v{a} row_ror:8 row_mask:0xf bank_mask:0x3")
            I(f"v_add_f32_dpp v{Y+c}, v{a+2}, v{a+3} row_ror:8 row_mask:0xf bank_mask:0xc")
        I(f"""
        ds_write_b128 v{A4+2}, {r4(Y)} offset:{L_P}
        ds_write_b128 v{A4+2}, {r4(Y+4)} offset:{L_P+16}
        s_getreg_b32 s92, hwreg(HW_REG_XCC_ID, 0, 3)
        s_add_u32 s98, s98, 0x01010101
        s_add_u32 s85, s85, 0x01010101
        s_lshl_b32 s92, s92, 24
        s_and_b32 s73, s98, 0xf8ffffff
        s_or_b32 s73, s73, s92
        s_and_b32 s85, s85, 0xf8ffffff
        s_or_b32 s85, s85, s92
        v_and_b32 v{A4}, 0xf0, v{V_L16}
        v_bfe_u32 v{A4+1}, v0, 4, 2
        s_lshl_b32 s87, s3, 8
        v_lshl_add_u32 v{A4+1}, v{A4+1}, 11, v{A4}
        v_add_u32 v{A4+1}, s87, v{A4+1}
        v_bfe_u32 v{A4+2}, v0, 4, 1
        v_bfe_u32 v{A4+3}, v0, 5, 1
        v_lshl_add_u32 v{A4+2}, v{A4+2}, 1, v{A4+3} ; c4 = 2(g&1) + (g>>1)
        v_lshl_add_u32 v{A4}, v{A4+2}, 2, v{A4}
        v_lshlrev_b32 v{A4+2}, 3, v{A4+2}
        v_lshrrev_b32 v{A4+2}, v{A4+2}, s85
        s_movk_i32 s88, 0xff
        """)
    def stage1b():
        I(f"""
        s_waitcnt lgkmcnt(0)
        s_barrier
        ds_read_b128 {r4(Y)}, v{A4+1} offset:{L_P}
        ds_read_b128 {r4(Y+4)}, v{A4+1} offset:{L_P+8192}
        s_waitcnt lgkmcnt(0)
        v_pk_add_f32 {r2(Y)}, {r2(Y)}, {r2(Y+4)}
        v_pk_add_f32 {r2(Y+2)}, {r2(Y+2)}, {r2(Y+6)}
        v_permlane32_swap_b32 v{Y}, v{Y+1}
        v_permlane32_swap_b32 v{Y+2}, v{Y+3}
        v_add_f32 v{Y}, v{Y}, v{Y+1}
        v_add_f32 v{Y+2}, v{Y+2}, v{Y+3}
        v_permlane16_swap_b32 v{Y}, v{Y+2}
        v_add_f32 v{Y}, v{Y}, v{Y+2}
        v_bfi_b32 v{Y}, s88, v{A4+2}, v{Y}
        """)
        g.vm(f"buffer_store_dword v{Y}, v{A4}, s[28:31], s80 offen", "ex0")
        if XWB: I(f"v_mov_b32 v123, v{Y}\nv_mov_b32 v{V_S1+1}, v{A4}\ns_mov_b32 s66, s98")
        stamp("s1done")

    def allred(v, t, op):
        I(f"""
        {op}_dpp v{v}, v{v}, v{v} row_ror:4 {DPPF}
        {op}_dpp v{v}, v{v}, v{v} row_ror:8 {DPPF}
        v_mov_b32 v{t}, v{v}
        v_permlane16_swap_b32 v{v}, v{t}
        {op} v{v}, v{v}, v{t}
        v_mov_b32 v{t}, v{v}
        v_permlane32_swap_b32 v{v}, v{t}
        {op} v{v}, v{v}, v{t}
        """)

    def gate():
        a, b, c, d = ACC0, ACC0 + 1, ACC0 + 2, ACC0 + 3
        I(f"s_cmp_lg_u32 s3, {GW}\ns_cbranch_scc1 L_nogate")
        for q in range(4):
            I(f"""
            v_lshlrev_b32 v{a}, 16, v{AOP+q}
            v_and_b32 v{b}, s95, v{AOP+q}
            v_lshlrev_b32 v{c}, 16, v{AOP+4+q}
            v_and_b32 v{d}, s95, v{AOP+4+q}
            v_mul_f32 v{a}, v{a}, v{c}
            v_mul_f32 v{b}, v{b}, v{d}
            v_cvt_pk_bf16_f32 v{AOP+q}, v{a}, v{b}
            """)
        I(f"""
        v_mov_b32 v{a}, 0
        v_mov_b32 v{b}, 0x3f803f80
        v_dot2c_f32_bf16 v{a}, v{AOP}, v{b}
        v_dot2c_f32_bf16 v{a}, v{AOP+1}, v{b}
        v_dot2c_f32_bf16 v{a}, v{AOP+2}, v{b}
        v_dot2c_f32_bf16 v{a}, v{AOP+3}, v{b}
        v_add_f32_dpp v{a}, v{a}, v{a} quad_perm:[1,0,3,2] {DPPF}
        v_add_f32_dpp v{a}, v{a}, v{a} quad_perm:[2,3,0,1] {DPPF}
        """)
        allred(a, b, "v_add_f32")
        I(f"""
        v_cvt_pk_bf16_f32 v{a}, v{a}, v{a}
        v_and_b32 v{a}, s95, v{a}
        v_mul_f32 v{a}, s93, v{a}
        v_exp_f32 v{a}, -v{a}
        v_add_f32 v{a}, 1.0, v{a}
        v_rcp_f32 v{a}, v{a}
        v_cvt_pk_bf16_f32 v{a}, v{a}, v{a}
        v_and_b32 v{a}, s95, v{a}
        v_sub_f32 v{b}, 1.0, v{a}
        v_cvt_pk_bf16_f32 v{b}, v{b}, v{b}
        v_and_b32 v{b}, s95, v{b}
        ds_write_b64 v{ZERO}, {r2(a)} offset:{L_G}
        """)
        g.label("L_nogate")

    PX = X + 4
    def consumer():
        I(f"""
        v_bfe_u32 v{X}, v0, 3, 2
        v_lshrrev_b32 v{X+1}, 1, v{V_I16}
        v_lshl_add_u32 v{X}, v{X}, 7, v{X+1}
        v_bfe_u32 v{X+1}, v0, 5, 1
        v_lshl_add_u32 v{X}, v{X+1}, 2, v{X}
        v_and_b32 v{X+1}, 64, v0
        v_add_u32 v{X}, v{X+1}, v{X}
        s_mov_b32 s92, {0 if "x" in kill else 200000}
        s_mov_b32 s88, 0x0c0c0400
        s_mov_b32 s89, 0x04000c0c
        s_mov_b32 s90, -1
        s_movk_i32 s91, 0xff00
        """)
        g.wait("px")
        g.label("L_poll")
        I(f"""
        v_perm_b32 v{X+2}, v{PX+1}, v{PX}, s88
        v_perm_b32 v{X+3}, v{PX+3}, v{PX+2}, s89
        v_or_b32 v{X+2}, v{X+2}, v{X+3}
        v_xor_b32 v{X+2}, s73, v{X+2}
        v_and_b32 v{X+2}, s90, v{X+2}
        v_cmp_ne_u32 vcc, 0, v{X+2}
        s_cbranch_vccz L_polled
        s_sub_u32 s92, s92, 1
        s_cbranch_scc1 L_polled
        s_cmp_gt_u32 s92, {200000 - 5}
        s_cbranch_scc1 L_reload
        s_cmp_eq_u32 s90, -1
        s_cbranch_scc0 L_flushed
        s_mov_b32 s90, 0xf8ffffff
        s_waitcnt vmcnt(0)
        buffer_wbl2 sc1
        s_waitcnt vmcnt(0)""")
        g.label("L_flushed")
        I("buffer_inv sc1")
        g.label("L_reload")
        I(f"""
        buffer_load_dwordx4 {r4(PX)}, v{V_XL}, s[28:31], s81 offen sc1
        s_waitcnt vmcnt(0)
        s_branch L_poll""")
        g.label("L_polled")
        stamp("x2")
        if stamps: I(f"s_sub_u32 s96, 200000, s92\nv_writelane_b32 v{V_ST}, s96, 1")
        a, b, e0, e1 = X + 8, X + 9, X + 10, X + 11
        I(f"""
        v_and_b32 v{PX}, s91, v{PX}
        v_and_b32 v{PX+2}, s91, v{PX+2}
        v_and_b32 v{PX+1}, s91, v{PX+1}
        v_and_b32 v{PX+3}, s91, v{PX+3}
        v_permlane32_swap_b32 v{PX}, v{PX+2}
        v_permlane32_swap_b32 v{PX+1}, v{PX+3}
        v_add_f32 v{PX}, v{PX}, v{PX+2}
        v_add_f32 v{PX+1}, v{PX+1}, v{PX+3}
        v_cvt_pk_bf16_f32 v{PX}, v{PX}, v{PX+1}
        v_lshlrev_b32 v{a}, 16, v{PX}
        v_and_b32 v{b}, s95, v{PX}
        v_mul_f32 v{e0}, s93, v{a}
        v_mul_f32 v{e1}, s93, v{b}
        v_exp_f32 v{e0}, -v{e0}
        v_exp_f32 v{e1}, -v{e1}
        v_add_f32 v{e0}, 1.0, v{e0}
        v_add_f32 v{e1}, 1.0, v{e1}
        v_rcp_f32 v{e0}, v{e0}
        v_rcp_f32 v{e1}, v{e1}
        v_mul_f32 v{e0}, v{e0}, v{a}
        v_mul_f32 v{e1}, v{e1}, v{b}
        v_cvt_pk_bf16_f32 v{e1}, v{e0}, v{e1}
        v_lshlrev_b32 v{e0}, 16, v{e1}
        v_and_b32 v{e1}, s95, v{e1}
        v_mul_f32_dpp v{e0}, v{a}, v{e0} row_ror:8 {DPPF}
        v_mul_f32_dpp v{e1}, v{b}, v{e1} row_ror:8 {DPPF}
        v_cvt_pk_bf16_f32 v{e0}, v{e0}, v{e1}
        v_mov_b32_dpp v{PX}, v{e0} quad_perm:[0,1,2,3] row_mask:0xa bank_mask:0xf
        ds_write_b32 v{X}, v{PX} offset:{L_Q}
        """)
        if XWB: I(f"v_mov_b32 v{V_XL}, v{V_S1+1}")
        if SYF:
            assert gate_done
            I(f"s_lshl_b32 s88, s3, 2\nv_mov_b32 v{X+1}, s88\nv_mov_b32 v{X+2}, 1\nds_write_b32 v{X+1}, v{X+2} offset:{L_F}")

    kgroups_done = [0]
    def consume_group(k):
        s0 = 4 * k
        for i in range(4):
            I(f"v_dot2_f32_bf16 v{A4+i}, v{slot(s0+i)}, v{Q}, 0")
        for q in range(1, 4):
            for i in range(4):
                I(f"v_dot2c_f32_bf16 v{A4+i}, v{slot(s0+i)+q}, v{Q+q}")
        I(f"""
        v_add_f32_dpp v{TT}, v{A4}, v{A4} row_ror:8 row_mask:0xf bank_mask:0x3
        v_add_f32_dpp v{TT}, v{A4+1}, v{A4+1} row_ror:8 row_mask:0xf bank_mask:0xc
        v_add_f32_dpp v{TT+1}, v{A4+2}, v{A4+2} row_ror:8 row_mask:0xf bank_mask:0x3
        v_add_f32_dpp v{TT+1}, v{A4+3}, v{A4+3} row_ror:8 row_mask:0xf bank_mask:0xc
        v_add_f32_dpp v{S+k}, v{TT}, v{TT} row_half_mirror row_mask:0xf bank_mask:0x5
        v_add_f32_dpp v{S+k}, v{TT+1}, v{TT+1} row_half_mirror row_mask:0xf bank_mask:0xa
        v_add_f32_dpp v{S+k}, v{S+k}, v{S+k} quad_perm:[1,0,3,2] {DPPF}
        v_add_f32_dpp v{S+k}, v{S+k}, v{S+k} quad_perm:[2,3,0,1] {DPPF}
        """)
        if k % 2 == 1:
            a, b = S + k - 1, S + k
            I(f"""
            v_cvt_pk_bf16_f32 v{TT}, v{a}, v{b}
            v_lshlrev_b32 v{a}, 16, v{TT}
            v_and_b32 v{b}, s95, v{TT}
            v_mul_f32 v{a}, s94, v{a}
            v_mul_f32 v{b}, s94, v{b}
            v_cvt_pk_bf16_f32 v{TT}, v{a}, v{b}
            v_lshlrev_b32 v{a}, 16, v{TT}
            v_and_b32 v{b}, s95, v{TT}
            """)
        kgroups_done[0] = k + 1

    def softmax1():
        m = TT
        I(f"""
        v_max3_f32 v{m}, v{S}, v{S+1}, v{S+2}
        v_max3_f32 v{m}, v{m}, v{S+3}, v{S+4}
        v_max3_f32 v{m}, v{m}, v{S+5}, v{S+6}
        v_max_f32 v{m}, v{m}, v{S+7}
        """)
        allred(m, A4, "v_max_f32")
        I(f"v_mul_f32 v{m}, s93, v{m}")
        for k in range(8):
            I(f"v_fma_f32 v{S+k}, v{S+k}, s93, -v{m}")
    def softmax2():
        for k in range(8):
            I(f"v_exp_f32 v{S+k}, v{S+k}")
        l = TT + 1
        I(f"v_add_f32 v{l}, v{S}, v{S+1}")
        for k in range(2, 8):
            I(f"v_add_f32 v{l}, v{l}, v{S+k}")
        for k in range(8):
            I(f"v_cvt_pk_bf16_f32 v{S+k}, v{S+k}, v{S+k}")
    def softmax3():
        allred(TT + 1, A4, "v_add_f32")
        I(f"""
        s_lshl_b32 s88, s3, 3
        v_mov_b32 v{A4}, s88
        v_mov_b32 v{V_MC}, v{TT}
        ds_write_b64 v{A4}, {r2(TT)} offset:{L_ML}
        s_lshl_b32 s99, s44, 5
        s_load_dword s98, s[32:33], s99
        """)

    def ffn_mm(q):
        if q == 0: I(f"v_mov_b32 v{X+3}, 0\nv_mov_b32 v{X+7}, 0")
        for e in range(2):
            for jj in range(3):
                I(f"v_perm_b32 v{X+4*e+jj}, v{W2R+4*(2*jj+1)+q}, v{W2R+4*(2*jj)+q}, s{46+e}")
        for e in range(2):
            I(f"v_mfma_f32_16x16x32_bf16 {r4(X+8+4*e)}, {r4(T)}, {r4(X+4*e)}, 0")
    def ffn_fold(q):
        for e in range(2):
            c = 2 * q + e
            a = X + 8 + 4 * e
            I(f"v_add_f32_dpp v{F+c//4}, v{a+1}, v{a} row_ror:8 row_mask:{1 << (c%4):#x} bank_mask:0x3")
        if q == 3:
            for u in range(2):
                I(f"v_mul_f32_dpp v{F+u}, v{F+u}, v{V_G+1} quad_perm:[0,1,2,3] row_mask:0xf bank_mask:0x3")

    def build_a(t):
        k, half = t // 2, t % 2
        for r in range(4):
            mir = (r >= 2) != (half == 1)
            d = AOP + 4 * (t % 2) + r
            if mir: I(f"v_and_b32_dpp v{d}, v{S+k}, v{MASK+r} row_half_mirror {DPPF}")
            else: I(f"v_and_b32 v{d}, v{S+k}, v{MASK+r}")

    vdone = [0]
    def pv(n):
        t = n // 2
        acc = ACC0 if n % 2 == 0 else ACC1
        c = "0" if n < 2 else r4(acc)
        I(f"v_mfma_f32_16x16x32_bf16 {r4(acc)}, {r4(AOP+4*(t%2))}, {r4(slot(n%8))}, {c}")
        vdone[0] = n + 1
        if n % 2 == 1 and t + 2 < 16: build_a(t + 2)

    wopairs = [0]
    def wo_perm(p):
        grp, jj = p // 4, p % 4
        a, b = stage(2 * p), stage(2 * p + 1)
        for q in range(4):
            for e in range(2):
                I(f"v_perm_b32 v{slot(8)+32*grp+4*(2*q+e)+jj}, v{b+q}, v{a+q}, s{46+e}")
        wopairs[0] = p + 1

    def ml_issue():
        I(f"""
        v_and_b32 v{A4+3}, 7, v0
        v_lshlrev_b32 v{A4+3}, 3, v{A4+3}
        s_waitcnt lgkmcnt(0)
        {"" if MLF else "s_barrier"}
        ds_read_b64 {r2(A4)}, v{A4+3} offset:{L_ML}
        s_cmp_eq_u32 s98, 1
        s_cbranch_scc1 L_zok
        s_mov_b32 s92, 200000
        v_mov_b32 v{TT}, 0
        s_mov_b64 exec, 1""")
        g.label("L_zpoll")
        I(f"""
        buffer_load_dword v{TT+1}, v{TT}, s[32:35], s99 offen sc1
        s_waitcnt vmcnt(0)
        v_cmp_eq_u32 vcc, 1, v{TT+1}
        s_cbranch_vccnz L_zdone
        s_sub_u32 s92, s92, 1
        s_cbranch_scc0 L_zpoll""")
        g.label("L_zdone")
        I("s_mov_b64 exec, -1")
        g.label("L_zok")
    def ml_combine():
        if MLF:
            g.label("L_ml")
            I(f"""
            s_waitcnt lgkmcnt(0)
            v_cmp_eq_u32 vcc, 0, v{A4+1}
            s_cbranch_vccz L_mlok
            ds_read_b64 {r2(A4)}, v{A4+3} offset:{L_ML}
            s_branch L_ml""")
            g.label("L_mlok")
        I(f"""
        s_waitcnt lgkmcnt(0)
        v_max_f32_dpp v{A4+2}, v{A4}, v{A4} quad_perm:[1,0,3,2] {DPPF}
        v_lshrrev_b32 v{V_T2}, 2, v{V_L16}
        s_mul_i32 s88, s3, 288
        v_max_f32_dpp v{A4+2}, v{A4+2}, v{A4+2} quad_perm:[2,3,0,1] {DPPF}
        v_and_b32 v{V_T0}, 32, v0
        v_bfe_u32 v{V_T1}, v0, 1, 3
        v_max_f32_dpp v{A4+2}, v{A4+2}, v{A4+2} row_half_mirror {DPPF}
        v_sub_f32 v{A4}, v{A4}, v{A4+2}
        v_sub_f32 v{V_MC}, v{V_MC}, v{A4+2}
        v_exp_f32 v{A4}, v{A4}
        v_exp_f32 v{V_MC}, v{V_MC}
        v_mul_f32 v{A4}, v{A4}, v{A4+1}
        v_mul_f32 v{V_MC}, v{V_MC}, v{V_G}
        v_mul_u32_u24 v{V_T1}, 288, v{V_T1}
        v_add_f32_dpp v{A4}, v{A4}, v{A4} quad_perm:[1,0,3,2] {DPPF}
        v_and_b32 v{A4+1}, 1, v0
        v_lshl_add_u32 v{V_T1}, v{A4+1}, 7, v{V_T1}
        v_add_f32_dpp v{A4}, v{A4}, v{A4} quad_perm:[2,3,0,1] {DPPF}
        v_lshl_add_u32 v{V_T0}, v{A4+1}, 3, v{V_T0}
        v_and_b32 v{A4+1}, 48, v0
        v_add_f32_dpp v{A4}, v{A4}, v{A4} row_half_mirror {DPPF}
        v_add_u32 v{V_T1}, v{A4+1}, v{V_T1}
        v_rcp_f32 v{A4}, v{A4}
        v_and_b32 v{V_W2}, 0xf0, v{V_L16}
        v_mul_f32 v{V_FAC}, v{V_MC}, v{A4}
        v_bfe_u32 v{A4+1}, v0, 4, 2
        v_lshl_add_u32 v{V_W2}, v{A4+1}, 1, v{V_W2}
        v_bfe_u32 v{A4+2}, v0, 3, 1
        v_lshl_add_u32 v{V_T0}, v{A4+2}, 4, v{V_T0}
        v_bfe_u32 v{A4+2}, v0, 4, 1
        v_lshl_add_u32 v{V_T0}, v{A4+2}, 2, v{V_T0}
        v_bfe_u32 v{A4+2}, v0, 1, 2
        v_add_u32 v{V_T0}, v{A4+2}, v{V_T0}
        v_lshl_add_u32 v{V_T0}, v{V_T0}, 2, s88
        s_lshl_b32 s88, s3, 9
        s_add_u32 s82, s82, s88
        s_lshl_b32 s72, s44, 10
        s_lshl_b32 s88, s3, 7
        s_add_u32 s72, s72, s88
        """)
        if BS:
            I(f"s_lshl_b32 s82, s44, 3\ns_add_u32 s82, s82, s3\ns_lshl_b32 s82, s82, {lb+3}\ns_add_u32 s82, s82, {ACC_OFF}")
        if "a" in kill: I(f"s_mov_b32 s82, {WS_BYTES}")

    def kvtag(i): return f"k{i}" if i < 32 else f"v{i-32}"
    nth = [0]
    def throttle(i, isw=False):
        p = PAT if (i < 32 or PATV is None) else PATV
        if p is None or p == "D":
            g.waitn(D - 1)
        elif not isw:
            d = p[i % len(p)]
            for last in (S1C + 1, SYNC - 1, 32 + B2AT - 1):
                if last - PRE < i <= last: d += PRE - (last - i)
            if PEND and i >= PEND[0]: d = PEND[1]
            if i - d >= 0: g.wait(kvtag(i - d))
        if SL and not isw and B0 <= i < B0 + BU + BW:
            saved = dict(g.done)
            nth[0] += 1
            I(f"s_cmp_le_u32 s71, {i - B0}\ns_cbranch_scc1 L_th{nth[0]}")
            g.wait(kvtag(i - SL))
            g.label(f"L_th{nth[0]}")
            g.done = saved
    vpn = [0]
    def vpf_at(i):
        if VPF2 is not None and i == VPF2:
            I(f"""
            s_lshl_b32 s56, s44, 3
            s_add_u32 s56, s56, s3
            s_mul_i32 s56, s56, 768
            s_lshl_b32 s55, s78, 13
            s_add_u32 s56, s56, s55
            v_lshlrev_b32 v123, 3, v{V_L16}
            s_mov_b64 exec, 63
            buffer_load_dword v{S+1}, v123, s[16:19], s56 offen
            s_mov_b64 exec, -1
            """)
        while VPF and vpn[0] < len(VPF) and i == VPF[vpn[0]]:
            per = 16 // len(VPF)
            I(f"""
            s_lshl_b32 s56, s44, 3
            s_add_u32 s56, s56, s3
            s_mul_i32 s56, s56, {per*128}
            s_lshl_b32 s51, s45, 17
            s_add_u32 s56, s56, s51
            s_add_u32 s56, s56, {vpn[0] * (131072 // len(VPF))}
            v_lshlrev_b32 v123, 3, v{V_L16}
            s_mov_b64 exec, {(1 << per) - 1}
            buffer_load_dword v123, v123, s[48:51], s56 offen
            s_mov_b64 exec, -1
            """.replace("s51", "s55").replace("s[48:55]", "s[48:51]"))
            vpn[0] += 1
    if VPF:
        I("s_mov_b32 s48, s12\ns_mov_b32 s49, s13\ns_mov_b32 s50, 0x400000\ns_mov_b32 s51, 0x20000")
    vpf_at(-1)
    spn = [0]
    def spf_at(i):
        if SPF and spn[0] < 8 and i == SPF[spn[0]]:
            while spn[0] < 8 and i == SPF[spn[0]]:
                p = spn[0]
                if p == 0:
                    I("s_lshl_b32 s56, s44, 3\ns_add_u32 s56, s56, s3\ns_lshl_b32 s56, s56, 8\ns_lshl_b32 s51, s45, 17\ns_add_u32 s56, s56, s51")
                else:
                    I("s_add_u32 s56, s56, s84")
                step = 128 // SPFW
                for k in range(2 * SPFW):
                    if k == 0: I(f"s_load_dword s48, s[12:13], s56 {SPFX}")
                    else: I(f"s_add_u32 s51, s56, {k*step}\ns_load_dword s48, s[12:13], s51 {SPFX}")
                spn[0] += 1
    def sync_reads():
        if SYF: I(f"ds_read_b32 v{X+2}, v{X+1} offset:{L_F}")
        I(f"""
        ds_read_b128 {r4(Q)}, v{V_T0} offset:{L_Q}
        ds_read2_b32 {r2(T)}, v{V_LH} offset0:0 offset1:8
        ds_read2_b32 {r2(T+2)}, v{V_LH} offset0:16 offset1:24
        ds_read_b64 {r2(V_G)}, v{ZERO} offset:{L_G}
        """)
    w2n = 0; won = 0
    synced = False; gate_done = False
    for n in range(D0, 32):
        if n == ZF:
            I(f"""
            s_cmp_lg_u32 s101, {8+ZW}
            s_cbranch_scc1 L_noflag
            v_mov_b32 v{X+1}, 1
            s_and_b32 s86, s2, 7
            s_lshl_b32 s86, s86, 5
            s_mov_b64 exec, 1
            buffer_store_dword v{X+1}, v{ZERO}, s[32:35], s86 offen sc1
            s_mov_b64 exec, -1
            """)
            g.label("L_noflag")
        if n == SYNC:
            stamp("sync")
            I(f"""
            v_and_b32 v{V_T0}, 0xf0, v{V_L16}
            v_add_u32 v{V_LH}, {L_H}, v{V_LH}
            """)
            if SYF: I(f"v_lshrrev_b32 v{X+1}, 2, v{V_I16}")
            else: I("s_waitcnt lgkmcnt(0)\ns_barrier")
            sync_reads()
        throttle(n)
        kload(n)
        spf_at(n); vpf_at(n)
        if INV == n:
            I(f"s_cmp_lg_u32 s3, 7\ns_cbranch_scc1 L_noinv\nbuffer_inv {INVP}")
            g.label("L_noinv")
        s1_at(n)
        if n == S1C:
            assert n < 19
            stage1a()
        if n == S1C + 1: stage1b()
        if n == POLL:
            g.vm(f"buffer_load_dwordx4 {r4(PX)}, v{V_XL}, s[28:31], s81 offen {XL}", "px")
        if n == POLL + PW:
            assert n < SYNC
            consumer()
        if n == SYNC:
            if SYF:
                g.label("L_sy")
                I(f"s_waitcnt lgkmcnt(0)\nv_cmp_eq_u32 vcc, 0, v{X+2}\ns_cbranch_vccz L_syok")
                sync_reads()
                I("s_branch L_sy")
                g.label("L_syok")
            I(f"""
            s_cmp_lg_u32 s3, {9 if ("p" in kill or XWB) else 0}
            s_cbranch_scc1 L_nobump
            v_mov_b32 v{X}, s98
            s_mov_b64 exec, 1
            buffer_store_dword v{X}, v{ZERO}, s[28:31], s100 offen
            s_mov_b64 exec, -1
            """)
            g.label("L_nobump")
            I("s_waitcnt lgkmcnt(0)")
            g.label("L_synced")
            stamp("synced")
            synced = True
        if not gate_done and g.done['A'] > gate_after and n > S1C + 1:
            assert n < SYNC
            gate(); gate_done = True
        if synced:
            k = kgroups_done[0]
            if k < 8 and 4 * k + 3 <= n and g.is_done(f"k{4*k+3}"):
                consume_group(k)
        while w2n < 6 and n == W2POS[w2n]:
            throttle(n, True)
            w2load(w2n); w2n += 1
        while won < len(WOK) and n == WOK[won]:
            assert won < NE and n > S1C
            throttle(n, True)
            woload(won); won += 1
    assert w2n == 6 and gate_done and won == len(WOK) and len(WOK) + len(WOPOS) == 16
    sm = 0; ffn_q = 0
    def after_step(n):
        nonlocal sm, ffn_q
        k = kgroups_done[0]
        if k < 8:
            if g.is_done(f"k{4*k+3}"): consume_group(k)
            return
        if sm == 0:
            softmax1(); sm = 1; return
        if sm == 1:
            softmax2(); build_a(0); build_a(1); sm = 2; stamp("smax")
        elif sm == 2:
            softmax3(); sm = 3
        while vdone[0] <= n and vdone[0] < 32 and g.is_done(f"v{vdone[0]}"):
            pv(vdone[0])
        p = wopairs[0]
        if p < 8 and 2 * p + 1 < won and g.is_done(f"wo{2*p+1}"):
            wo_perm(p)
        elif sm == 3 and ffn_q < 8 and g.is_done("w2_5"):
            if ffn_q % 2 == 0: ffn_mm(ffn_q // 2)
            else: ffn_fold(ffn_q // 2)
            ffn_q += 1
    for n in range(32):
        if PRIO is not None and n == PRIO:
            I("s_cmp_lt_u32 s3, 4\ns_cbranch_scc1 L_prio\ns_setprio 1")
            g.label("L_prio")
        if n == B2AT:
            assert sm == 3
            ml_issue()
        throttle(32 + n)
        if n < 8: assert kgroups_done[0] > n // 4
        else: assert vdone[0] > n - 8, (n, vdone[0])
        vload(n)
        spf_at(32 + n); vpf_at(32 + n)
        if n == B2AT: ml_combine()
        after_step(n)
        while won < 16 and n == WOPOS[won - len(WOK)]:
            throttle(32 + n, True)
            assert won < NE or kgroups_done[0] >= (7 if won < NE + 4 else 8), (won, kgroups_done[0])
            assert won < NE + 8 or wopairs[0] > (won - 8) // 2, (won, wopairs[0])
            woload(won); won += 1
            after_step(n)
    assert won == 16 and ffn_q == 8
    def xwb():
        I(f"""
        buffer_store_dword v123, v{V_XL}, s[28:31], s80 offen {XWP}
        s_cmp_lg_u32 s3, 0
        s_cbranch_scc1 L_nobump2
        v_mov_b32 v{TT}, s66
        v_mov_b32 v{TT+1}, 0
        s_mov_b64 exec, 1
        buffer_store_dword v{TT}, v{TT+1}, s[28:31], s100 offen {XWP}
        s_mov_b64 exec, -1
        """)
        g.label("L_nobump2")
    stamp("issued")
    while vdone[0] < 32:
        g.wait(f"v{vdone[0]}")
        after_step(31)
    stamp("lastv")
    if XWB == 1: xwb()
    RS = A4
    def spec_issue():
        I("s_mov_b32 s86, 0x01ff01ff\ns_mov_b32 s87, 0x01ff01ff\ns_mov_b64 exec, s[86:87]")
        g.vm(f"buffer_load_dword v{RS}, v{V_T2}, s[28:31], s82 offen sc1", "sp0")
        g.vm(f"buffer_load_dword v{RS+1}, v{V_T2}, s[28:31], s82 offen offset:256 sc1", "sp1")
        I("s_mov_b64 exec, -1")
    if SPEC == 1: spec_issue()
    I(f"""
    v_permlane32_swap_b32 v{ACC1}, v{ACC0+1}
    v_permlane32_swap_b32 v{ACC1+2}, v{ACC0+3}
    v_add_f32_dpp v{T}, v{ACC0}, v{ACC0+1} quad_perm:[0,1,2,3] row_mask:0x3 bank_mask:0xf
    v_add_f32_dpp v{T+1}, v{ACC0+2}, v{ACC0+3} quad_perm:[0,1,2,3] row_mask:0x3 bank_mask:0xf
    v_add_f32_dpp v{T}, v{ACC1+1}, v{ACC1} quad_perm:[0,1,2,3] row_mask:0xc bank_mask:0xf
    v_add_f32_dpp v{T+1}, v{ACC1+3}, v{ACC1+2} quad_perm:[0,1,2,3] row_mask:0xc bank_mask:0xf
    v_mul_f32 v{T}, v{T}, v{V_FAC}
    v_mul_f32 v{T+1}, v{T+1}, v{V_FAC}
    v_cvt_pk_bf16_f32 v{T}, v{T}, v{T+1}
    ds_write_b32 v{V_T0}, v{T} offset:{L_O}
    s_waitcnt lgkmcnt(0)
    s_barrier
    """)
    stamp("b3")
    I(f"ds_read_b128 {r4(AOP)}, v{V_T1} offset:{L_O}")
    I(f"ds_read_b128 {r4(AOP+4)}, v{V_T1} offset:{L_O+64}")
    if SPEC == 2: spec_issue()
    if XWB == 2: xwb()
    while wopairs[0] < 8:
        g.wait(f"wo{2*wopairs[0]+1}")
        wo_perm(wopairs[0])
    TACC = slot(0); E = STG
    I(f"""
    s_mov_b32 s88, {f2u(31.0):#x}
    s_mov_b32 s90, 0x00ff00ff
    s_mov_b32 s91, 0x00ff00ff
    s_mov_b32 s86, 0x01ff01ff
    s_mov_b32 s87, 0x01ff01ff
    s_waitcnt lgkmcnt(0)
    """)
    def estep(c):
        a = TACC + 4 * c
        I(f"v_add_f32_dpp v{E+c}, v{a}, v{a+2} quad_perm:[0,1,2,3] row_mask:0xf bank_mask:0x3")
        I(f"v_add_f32_dpp v{E+c}, v{a+1}, v{a+3} quad_perm:[0,1,2,3] row_mask:0xf bank_mask:0xc")
    def s32(c): I(f"v_permlane32_swap_b32 v{E+c}, v{E+c+2}\nv_add_f32 v{E+c}, v{E+c}, v{E+c+2}")
    def s16(u): I(f"v_permlane16_swap_b32 v{E+4*u}, v{E+4*u+1}\nv_add_f32 v{E+4*u}, v{E+4*u}, v{E+4*u+1}")
    def fin(u): I(f"v_add_f32_dpp v{XU+u}, v{E+4*u}, v{E+4*u} row_ror:8 row_mask:0xf bank_mask:0x3")
    def mm(c):
        for grp in range(2):
            cc = "0" if grp == 0 else r4(TACC + 4 * c)
            I(f"v_mfma_f32_16x16x32_bf16 {r4(TACC+4*c)}, {r4(AOP+4*grp)}, {r4(slot(8)+32*grp+4*c)}, {cc}")
    mm(0); mm(2); mm(1); mm(3); mm(4)
    estep(0); estep(2); mm(6)
    s32(0); estep(1); estep(3); mm(5)
    estep(4); s32(1); mm(7)
    estep(6); s16(0); estep(5); s32(4); fin(0); estep(7)
    I(f"v_add_f32 v{T}, v{XU}, v{F}\nv_add_f32 v{XU}, v{XU}, v{F}")
    s32(5); s16(1); fin(1)
    stamp("preat")
    if SPEC:
        I(f"v_add_f32 v{T+1}, v{XU+1}, v{F+1}\nv_add_f32 v{XU+1}, v{XU+1}, v{F+1}\ns_mov_b64 exec, s[86:87]")
        g.wait("sp1")
        I(f"""
        v_mov_b32_dpp v{RS+2}, v{RS} row_newbcast:8 {DPPF}
        v_mov_b32_dpp v{RS+3}, v{RS+1} row_newbcast:8 {DPPF}
        v_cmp_neq_f32 vcc, s88, v{RS+2}
        v_cmp_neq_f32 s[84:85], s88, v{RS+3}
        s_or_b64 s[76:77], vcc, s[84:85]
        v_cndmask_b32 v{T}, v{RS}, v{T}, vcc
        v_cndmask_b32 v{T+1}, v{RS+1}, v{T+1}, s[84:85]
        s_cbranch_scc0 L_noat
        s_mov_b64 exec, s[84:85]
        buffer_atomic_add_f32 v{T+1}, v{V_T2}, s[28:31], s82 offen offset:256 sc0
        s_mov_b64 exec, vcc
        buffer_atomic_add_f32 v{T}, v{V_T2}, s[28:31], s82 offen sc0
        s_mov_b64 exec, s[86:87]
        s_waitcnt vmcnt(0)
        """)
        g.label("L_noat")
    else:
        I(f"""
        v_add_f32 v{T+1}, v{XU+1}, v{F+1}
        s_mov_b64 exec, s[86:87]
        """)
        g.vm(f"buffer_atomic_add_f32 v{T+1}, v{V_C4 if BS else V_T2}, s[28:31], s82 offen offset:{4*BS if BS else 256} sc0 {APOL}", "at1")
        g.vm(f"buffer_atomic_add_f32 v{T}, v{V_C4 if BS else V_T2}, s[28:31], s82 offen sc0 {APOL}", "at0")
        I(f"v_add_f32 v{XU+1}, v{XU+1}, v{F+1}")
        g.wait("at0")
    I(f"""
    v_mov_b32_dpp v{T+2}, v{T} row_newbcast:8 {DPPF}
    v_mov_b32_dpp v{T+3}, v{T+1} row_newbcast:8 {DPPF}
    v_add_f32 v{T}, v{T}, v{XU}
    v_add_f32 v{T+1}, v{T+1}, v{XU+1}
    v_cmp_eq_f32 vcc, s88, v{T+2}
    v_cmp_eq_f32 s[86:87], s88, v{T+3}
    v_cvt_pk_bf16_f32 v{T}, v{T}, v{T+1}
    s_and_b64 exec, vcc, s[90:91]
    s_cbranch_execz L_nost0
    buffer_store_short v{T}, v{V_W2}, s[36:39], s72 offen {OPOL}
    """)
    g.label("L_nost0")
    I(f"""
    s_and_b64 exec, s[86:87], s[90:91]
    s_cbranch_execz L_nost1
    buffer_store_short_d16_hi v{T}, v{V_W2}, s[36:39], s72 offen offset:8 {OPOL}
    """)
    g.label("L_nost1")
    if stamps:
        I("s_mov_b64 exec, -1\ns_memtime s[62:63]")
        stamp("end")
        I(f"""
        s_sub_u32 s62, s62, s64
        v_writelane_b32 v{V_ST}, s62, 14
        s_getreg_b32 s96, hwreg(HW_REG_XCC_ID)
        s_nop 0
        v_writelane_b32 v{V_ST}, s96, 15
        s_lshl_b32 s88, s2, 9
        s_lshl_b32 s89, s3, 6
        s_add_u32 s88, s88, s89
        s_add_u32 s88, s88, {STAMP_OFF}
        s_mov_b64 exec, 0xffff
        buffer_store_dword v{V_ST}, v{V_T2}, s[28:31], s88 offen
        """)
    if ZE:
        I("s_endpgm")
        g.label("L_zero")
        I(f"""
        s_mov_b32 s30, {WS_BYTES}
        s_mov_b32 s31, 0x20000
        s_and_b32 s88, s2, 7
        s_lshl_b32 s88, s88, 12
        s_add_u32 s88, s88, {ACC_OFF}
        v_mov_b32 v{ZERO}, 0
        v_mov_b32 v{ZERO+1}, 0
        v_lshlrev_b32 v{V_T1}, 3, v0
        buffer_store_dwordx2 {r2(ZERO)}, v{V_T1}, s[28:31], s88 offen {ZPOL}
        s_branch L_zret
        """)
    fix_cfg(g)
    body = g.text()
    head = f"""; gated mix of sliding-window decode attention and SwiGLU FFN, one workgroup per (batch, head)
; @launch grid=(256,1,1) block=(512,1,1) lds={LDS_BYTES}
.amdgcn_target "amdgcn-amd-amdhsa--gfx950"
.text
.globl {KNAME}
.p2align 8
.type {KNAME},@function
{KNAME}:
"""
    foot = f"""L_end:
    s_endpgm
.section .rodata,"a"
.p2align 6
.amdhsa_kernel {KNAME}
  .amdhsa_next_free_vgpr 256
  .amdhsa_next_free_sgpr 102
  .amdhsa_accum_offset 256
  .amdhsa_group_segment_fixed_size 0
  .amdhsa_kernarg_size 104
  .amdhsa_user_sgpr_count 2
  .amdhsa_user_sgpr_kernarg_segment_ptr 1
  .amdhsa_system_sgpr_workgroup_id_x 1
  .amdhsa_float_denorm_mode_32 3
.end_amdhsa_kernel
"""
    return head + body + foot

if __name__ == "__main__":
    out = sys.argv[1]
    kw = {}
    for a in sys.argv[2:]:
        k, v = a.split("=")
        kw[k] = eval(v)
    open(out, "w").write(gen(**kw))
```

```python
import sys, struct
from asmlib import Gen, fix_cfg, cfg_problems

KNAME = "gated_mix__sliding_block_cached__glu_gated_swiglu__decode_kernel"
def f2u(x): return struct.unpack("<I", struct.pack("<f", x))[0]

L_O, L_Q, L_H, L_G, L_ML, L_F = 0, 2304, 2560, 2816, 2848, 2912
L_X = 3072
L_P = L_X + 4096
LDS_BYTES = L_P + 16384
ACC_OFF = 1024 * 1024
STAMP_OFF = 4 * 1024 * 1024
WS_BYTES = 8 * 1024 * 1024

V_L16, V_WO, V_W2, V_KV, V_T0, V_T1, V_T2 = 1, 2, 3, 4, 5, 6, 7
Q = 8; MASK = 12; S = 16; A4 = 24; TT = 28; F = 30; ACC0 = 32; ACC1 = 36; AOP = 40
T = 48
V_S1 = 52; V_FAC = 52; V_MC = 53; V_XL = 54; V_I16 = 55
STG = 56
W2R = 72
X = 104
ZERO = 116
V_G = 120
V_C4 = 122; V_LH = 124; V_ST = 125; XU = 126
SLOT = 128
def slot(n): return SLOT + 4 * n
def r4(b): return f"v[{b}:{b+3}]"
def r2(b): return f"v[{b}:{b+1}]"
DPPF = "row_mask:0xf bank_mask:0xf"

def gen(D=5, PAT=(3,), PATV=None, FAST=0, PT=9, S1C=4, POLL=18, PW=4, SYNC=24, W2POS=(9, 11, 13, 15, 17, 19), WOK=(21, 23, 26, 29),
        WOPOS=(0, 2, 5, 7, 9, 11, 14, 16, 18, 21, 23, 26), B2AT=20, ZF=16, SL=2, BU=8, BW=3, B0=None, S1POS=None, PRE=0, WIDE=0, PEND=(57, 5), NB=None, XW=(), MLF=0, SYF=0, GW=0, ZW=1, PRIO=None, BQ=6, APOL='', OPOL='', ZPOL='sc1', SPEC=0, BS=64, ZE=0, wopol='nt', SPF=None, SPFW=1, SPFX='', VPF=None, VPF2=None, EPF=1, XPF=1, XL='sc1', XWB=0, XWP='sc1', PP='', INV=None, INVP='sc0', TP=None, EWO=1, DZ=None, KST=(),
        stamps=False, kill=""):
    g = Gen(); g.roles = ['A']; g.done = {'A': 0}
    I = g.I
    if B0 is None: B0 = S1C + 2
    names = []
    def stamp(name):
        if stamps and (not KST or name in ("end", "lastv") or name.startswith("t")):
            if name not in names: names.append(name)
            k = names.index(name)
            assert k < 14
            I(f"s_memrealtime s[96:97]\ns_waitcnt lgkmcnt(0)\nv_writelane_b32 v{V_ST}, s96, {k}")
    def kvoff(n):
        return sum(((n >> k) & 1) << b for k, b in enumerate(NB))
    def kload(n):
        if NB:
            I(f"s_xor_b32 s74, s57, {kvoff(n)}")
            g.vm(f"buffer_load_dwordx4 {r4(slot(n))}, v{V_KV}, s[4:7], s74 offen nt", f"k{n}"); return
        if n % 4 == 0 and n > 0: I("s_add_u32 s74, s74, s75")
        g.vm(f"buffer_load_dwordx4 {r4(slot(n))}, v{V_KV}, s[4:7], s74 offen offset:{(n%4)*1024} nt", f"k{n}")
    def vload(n):
        if NB:
            I(f"s_xor_b32 s74, s57, {kvoff(n)}")
            g.vm(f"buffer_load_dwordx4 {r4(slot(n%8))}, v{V_KV}, s[8:11], s74 offen nt", f"v{n}"); return
        if n == 0: I("s_mov_b32 s74, s57")
        if n % 4 == 0 and n > 0: I("s_add_u32 s74, s74, s75")
        g.vm(f"buffer_load_dwordx4 {r4(slot(n%8))}, v{V_KV}, s[8:11], s74 offen offset:{(n%4)*1024} nt", f"v{n}")
    def w2load(j):
        so = ["0", "s84", "s75"][j // 2]
        g.vm(f"buffer_load_dwordx4 {r4(W2R+4*j)}, v{V_W2}, s[16:19], {so} offen offset:{(j%2)*1024} {wopol}", f"w2_{j}")
    NE = 6
    def stage(n):
        if n < 4: return STG + 4 * n
        if n < NE: return W2R + 24 + 4 * (n - 4)
        return slot(24 + (n - NE) % 8)
    def woload(n):
        if n == 0: I("s_mov_b32 s83, 0")
        elif n % 2 == 0: I("s_add_u32 s83, s83, s84")
        if "n" in kill and n % 2 == 0: I(f"s_cmp_eq_u32 s44, {n // 2}\ns_cselect_b32 s14, 0x400000, 0")
        g.vm(f"buffer_load_dwordx4 {r4(stage(n))}, v{V_WO}, s[12:15], s83 offen offset:{(n%2)*2048} {TP[1] if (TP and n >= TP[0]) else wopol}", f"wo{n}")
    def s1load(j):
        g.vm(f"buffer_load_dwordx4 {r4(STG+4*j)}, v{V_S1}, s[20:23], s68 offen nt", f"s1_{j}")
        if j < 3: I(f"s_add_u32 s68, s68, {'s67' if j == 1 else 's76'}")

    if stamps: I("s_memrealtime s[60:61]")
    I(f"""
    s_load_dwordx2 s[4:5], s[0:1], 8
    s_load_dwordx2 s[28:29], s[0:1], 96
    {"s_load_dwordx2 s[12:13], s[0:1], 32" if EWO else ""}
    s_lshr_b32 s3, s2, 8
    s_cbranch_scc1 L_end
    v_and_b32 v{V_L16}, 63, v0
    v_lshrrev_b32 v{V_T0}, 6, v0
    v_lshlrev_b32 v{V_L16}, 4, v{V_L16}
    """)
    if PT:
        I("; pull the kernel's own code towards L2 while the kernarg load is in flight\ns_getpc_b64 s[52:53]")
        g.label("L_pc")
        I(f"""
        v_mul_u32_u24 v{V_T2}, {PT*128}, v{V_T0}
        v_lshl_add_u32 v{V_T2}, v{V_L16}, 3, v{V_T2}
        v_min_u32 v{V_T2}, L_end-L_pc, v{V_T2}
        s_mov_b64 exec, {(1 << PT) - 1}
        global_load_dword v{S}, v{V_T2}, s[52:53] {PP}
        s_mov_b64 exec, -1
        """)
    I(f"""
    s_lshl_b32 s74, s2, 20
    v_lshl_add_u32 v{V_KV}, v{V_T0}, 12, v{V_L16}
    s_add_u32 s74, s74, 0xc0000
    s_brev_b32 s6, 8
    s_mov_b32 s7, 0x20000
    """)
    if NB:
        for (src, dst) in XW:
            I(f"s_bfe_u32 s57, s2, {(1<<16)|src:#x}\ns_lshl_b32 s57, s57, {dst}\ns_xor_b32 s74, s74, s57")
        I("s_mov_b32 s57, s74")
    if EWO:
        I(f"""
        s_lshr_b32 s44, s2, 5
        s_and_b32 s45, s2, 31
        s_lshl_b32 s56, s45, 3
        s_add_u32 s56, s56, s44
        s_lshl_b32 s56, s56, 14
        v_lshlrev_b32 v123, 3, v{V_L16}
        v_lshl_add_u32 v{V_T1}, v{V_T0}, 11, v123
        s_mov_b32 s14, 0x400000
        s_mov_b32 s15, s7
        s_mov_b64 exec, 0xffff
        s_waitcnt lgkmcnt(0)
        """)
        g.vm(f"buffer_load_dword v{S+1}, v{V_T1}, s[12:15], s56 offen {PP}", "pfo")
        I("s_mov_b64 exec, -1")
        for n in range(FAST): kload(n)
    elif FAST:
        I("s_waitcnt lgkmcnt(0)")
        for n in range(FAST): kload(n)
    if ZE:
        assert FAST and BS == 64
        I("s_lshr_b32 s88, s2, 3\ns_cmp_eq_u32 s88, 1\ns_cbranch_scc1 L_zero")
        g.label("L_zret")
    if stamps:
        names += ["start", "k0", "k1"]
        I("s_memrealtime s[58:59]")
    I(f"""
    v_readfirstlane_b32 s3, v{V_T0}
    s_bfe_u32 s70, s2, 0x20005
    s_load_dwordx2 s[24:25], s[0:1], 0
    s_lshl_b32 s86, s70, 3
    s_add_u32 s86, s86, 32
    s_cmp_lt_u32 s70, 2
    s_cselect_b32 s86, 24, s86
    s_load_dwordx2 s[20:21], s[0:1], s86
    {"s_load_dwordx2 s[12:13], s[0:1], 32" if (EPF and not EWO) else ""}
    {"s_load_dwordx2 s[16:17], s[0:1], 64" if EPF else ""}
    {"" if EWO else "s_lshr_b32 s44, s2, 5"}
    {"" if EWO else "s_and_b32 s45, s2, 31"}
    ; ffn slice s = (h&7)*4 + (h>>3); chunks [floor((16s+2)/3), next), last one ends at 172
    s_and_b32 s87, s45, 7
    s_lshl_b32 s87, s87, 2
    s_lshr_b32 s88, s45, 3
    s_add_u32 s87, s87, s88
    s_mul_i32 s87, s87, {16*43691}
    s_add_u32 s87, s87, {2*43691}
    s_lshr_b32 s78, s87, 17
    s_add_u32 s87, s87, {16*43691}
    s_lshr_b32 s79, s87, 17
    s_cmp_eq_u32 s79, 171
    s_addc_u32 s79, s79, 0
    s_sub_u32 s89, s79, s78
    s_movk_i32 s26, 8192
    s_lshl_b32 s87, s45, 8
    s_lshl_b32 s88, s70, 7
    s_add_u32 s87, s87, s88
    s_lshl_b32 s88, s78, 4
    s_cmp_lt_u32 s70, 2
    s_cselect_b32 s76, s26, 2752
    s_cselect_b32 s87, s87, s88
    s_cselect_b32 s89, 8, s89
    s_lshl_b32 s22, s76, 9
    s_mov_b32 s23, 0x20000
    s_mov_b32 s27, 0x20000
    s_lshr_b32 s88, s44, 2
    s_lshl_b32 s88, s88, 3
    s_add_u32 s88, s88, s3
    s_lshl_b32 s69, s88, 6
    s_lshl_b32 s88, s88, 5
    s_mul_i32 s88, s88, s76
    s_add_u32 s68, s87, s88
    s_mul_i32 s67, s76, 15
    v_bfe_u32 v{T}, v0, 3, 3
    v_and_b32 v{V_T2}, 7, v0
    v_lshlrev_b32 v{T+1}, 1, v{T}
    v_lshlrev_b32 v{V_I16}, 4, v{V_T2}
    v_cmp_gt_u32 vcc, s89, v{V_T2}
    v_mad_u32_u24 v{V_S1}, v{T+1}, s76, v{V_I16}
    v_bfrev_b32 v{T+2}, 1
    v_cndmask_b32 v{V_S1}, v{T+2}, v{V_S1}, vcc
    v_lshlrev_b32 v{V_T2}, 3, v{V_T2}
    v_lshl_add_u32 v{T+3}, v{T}, 10, v{V_T2}
    {'' if NB else 's_mov_b32 s57, s74'}
    s_mov_b32 s75, 0x8000
    """)
    if "s" in kill: I("s_mov_b32 s22, 0")
    I("s_waitcnt lgkmcnt(0)")
    if stamps: I("s_memrealtime s[54:55]\ns_memtime s[64:65]")
    XOP = X + 8; Y = X
    s1n = [0]
    def s1_at(n):
        while s1n[0] < 4 and (S1POS is None or S1POS[s1n[0]] <= n):
            s1load(s1n[0]); s1n[0] += 1
    g.vm(f"buffer_load_dwordx2 {r2(XOP)}, v{T+3}, s[24:27], s69 offen", "xop")
    def epf():
        if EWO:
            I(f"""
            s_lshl_b32 s18, s79, 13
            s_mov_b32 s19, 0x20000
            s_lshl_b32 s56, s44, 3
            s_add_u32 s56, s56, s3
            s_mul_i32 s55, s56, 768
            s_lshl_b32 s87, s78, 13
            s_add_u32 s55, s55, s87
            """)
        else:
            I(f"""
            s_mov_b32 s14, 0x400000
            s_mov_b32 s15, 0x20000
            s_lshl_b32 s18, s79, 13
            s_mov_b32 s19, 0x20000
            s_lshl_b32 s56, s44, 3
            s_add_u32 s56, s56, s3
            s_mul_i32 s55, s56, 768
            s_lshl_b32 s56, s56, 11
            s_lshl_b32 s87, s45, 17
            s_add_u32 s56, s56, s87
            s_lshl_b32 s87, s78, 13
            s_add_u32 s55, s55, s87
            v_lshlrev_b32 v123, 3, v{V_L16}
            s_mov_b64 exec, 0xffff
            """)
            g.vm(f"buffer_load_dword v{S+1}, v123, s[12:15], s56 offen {PP}", "pfo")
        I("s_mov_b64 exec, 63")
        g.vm(f"buffer_load_dword v{S+2}, v123, s[16:19], s55 offen {PP}", "pf2")
        if XPF:
            I(f"""
            s_mov_b32 s30, {WS_BYTES}
            s_mov_b32 s31, 0x20000
            s_lshl_b32 s55, s44, 3
            s_add_u32 s55, s55, s3
            s_lshl_b32 s55, s55, 8
            s_lshl_b32 s87, s45, 15
            s_add_u32 s55, s55, s87
            s_mov_b64 exec, 3
            """)
            g.vm(f"buffer_load_dword v{S+3}, v123, s[28:31], s55 offen {PP}", "pfx")
        I("s_mov_b64 exec, -1")
    if EPF == 2: epf()
    s1_at(FAST - 1)
    if EPF == 1: epf()
    D0 = max(PAT[0] if PAT else D, FAST) if DZ is None else DZ
    for n in range(FAST, D0):
        kload(n); s1_at(n)
    if EPF == 3: epf()
    I(f"""
    s_load_dwordx2 s[8:9], s[0:1], 16
    {"" if EPF else "s_load_dwordx2 s[12:13], s[0:1], 32"}
    {"" if EPF else "s_load_dwordx2 s[16:17], s[0:1], 64"}
    s_load_dwordx2 s[32:33], s[0:1], 88
    s_load_dwordx2 s[36:37], s[0:1], 80
    s_load_dwordx2 s[40:41], s[0:1], 72
    s_lshl_b32 s81, s45, 15
    s_lshl_b32 s87, s3, 7                 ; 128 w
    s_add_u32 s99, s81, 0x4000
    s_lshl_b32 s88, s44, 7
    s_add_u32 s100, s99, s88
    s_add_u32 s99, s99, s87
    s_waitcnt lgkmcnt(0)
    s_load_dword s98, s[28:29], s100
    s_load_dword s85, s[28:29], s99
    {"" if (EPF and XPF) else f"s_mov_b32 s30, {WS_BYTES}"}
    {"" if (EPF and XPF) else "s_mov_b32 s31, 0x20000"}
    s_brev_b32 s10, 8
    s_mov_b32 s11, 0x20000
    {"" if EPF else "s_mov_b32 s14, 0x400000"}
    {"" if EPF else "s_mov_b32 s15, 0x20000"}
    {"" if EPF else "s_lshl_b32 s18, s79, 13"}
    {"" if EPF else "s_mov_b32 s19, 0x20000"}
    s_movk_i32 s34, 256
    s_mov_b32 s35, 0x20000
    s_movk_i32 s38, 8192
    s_mov_b32 s39, 0x20000
    s_movk_i32 s42, 1024
    s_mov_b32 s43, 0x20000
    s_cmp_lg_u32 s3, {GW}
    s_cbranch_scc1 L_nogl
    s_lshl_b32 s88, s44, 10
    buffer_load_dwordx4 {r4(AOP)}, v{V_L16}, s[24:27], s88 offen
    buffer_load_dwordx4 {r4(AOP+4)}, v{V_L16}, s[40:43], 0 offen
    """)
    g.label("L_nogl")
    g.q.append(("gmark", None))
    g.q.pop()
    gate_after = len(g.q)
    I(f"""
    s_mov_b32 s46, 0x05040100
    s_mov_b32 s47, 0x07060302
    s_movk_i32 s84, 16384
    s_mov_b32 s93, {f2u(1.4426950408889634):#x}
    s_mov_b32 s94, {f2u(128 ** -0.5):#x}
    s_mov_b32 s95, 0xffff0000
    s_lshl_b32 s89, s78, 13
    s_add_u32 s89, s89, s87
    v_lshl_add_u32 v{V_W2}, v{T+1}, 10, v{V_I16}
    v_add_u32 v{V_W2}, s89, v{V_W2}
    s_lshl_b32 s89, s45, 17
    s_add_u32 s89, s89, s87
    v_add_u32 v{V_WO}, s89, v{V_I16}
    v_bfe_u32 v{V_T0}, v0, 4, 2
    v_lshl_add_u32 v{V_WO}, v{V_T0}, 12, v{V_WO}
    v_bfe_u32 v{V_T1}, v0, 3, 1
    v_lshl_add_u32 v{V_WO}, v{V_T1}, 10, v{V_WO}
    v_lshl_add_u32 v{V_XL}, v{T}, 11, v{V_I16}
    v_and_b32 v{V_T1}, 1, v0
    v_lshl_add_u32 v{V_T1}, v{V_T0}, 1, v{V_T1}
    v_lshlrev_b32 v{V_LH}, 2, v{V_T1}                ; (2g + kh)*4
    s_lshl_b32 s89, s44, 11
    s_add_u32 s80, s81, s89
    s_lshl_b32 s89, s3, 8
    s_add_u32 s80, s80, s89
    s_lshl_b32 s89, s44, 8
    s_add_u32 s81, s81, s89
    s_and_b32 s89, s87, 128
    s_add_u32 s81, s81, s89
    {"" if BS else "s_lshl_b32 s82, s44, 12"}
    {"" if BS else f"s_add_u32 s82, s82, {ACC_OFF}"}
    s_lshr_b32 s101, s2, 3
    s_lshl_b32 s101, s101, 3
    s_add_u32 s101, s101, s3
    ; masks
    v_and_b32 v{V_T1}, 1, v0
    v_lshlrev_b32 v{V_T1}, 4, v{V_T1}
    v_mov_b32 v{V_T2}, 0xffff
    v_lshlrev_b32 v{V_T1}, v{V_T1}, v{V_T2}
    v_bfe_u32 v{V_T2}, v0, 1, 2
    """)
    fill = [f"v_mov_b32 v{ZERO}, 0\nv_mov_b32 v{ZERO+1}, 0", f"v_mov_b32 v{ZERO+2}, 0\nv_mov_b32 v{ZERO+3}, 0",
            f"v_mov_b32 v{F}, 1.0\nv_mov_b32 v{F+1}, 1.0", f"v_mov_b32 v{XU}, 0\nv_mov_b32 v{XU+1}, 0"]
    for r in range(4):
        I(f"v_cmp_eq_u32 vcc, {r}, v{V_T2}\n{fill[r]}\nv_cndmask_b32 v{MASK+r}, 0, v{V_T1}, vcc")
    if SL:
        I(f"""
        s_lshr_b32 s87, s70, 1
        s_xor_b32 s87, s87, 1
        s_mul_i32 s71, s87, {BU}
        s_sub_u32 s87, s78, s79
        s_add_u32 s87, s87, 6
        s_mul_i32 s87, s87, {BW}
        s_add_u32 s71, s71, s87
        """)
        if BQ:
            I(f"s_and_b32 s87, s2, 0x63\ns_cmp_eq_u32 s87, 0x21\ns_cselect_b32 s87, {BQ}, 0\ns_sub_u32 s71, s71, s87")
    if WIDE == 1:
        I(f"""
        v_and_b32 v{V_T1}, 0xf0, v{V_L16}
        v_bfe_u32 v{V_T2}, v0, 7, 2
        v_lshl_add_u32 v{V_T1}, v{V_T2}, 8, v{V_T1}
        v_bfe_u32 v{V_T2}, v0, 4, 2
        v_lshl_add_u32 v{V_T1}, v{V_T2}, 12, v{V_T1}
        v_bfe_u32 v{V_T2}, v0, 6, 1
        s_lshl_b32 s89, s45, 17
        v_lshl_add_u32 v{V_WO}, v{V_T2}, 10, v{V_T1}
        v_add_u32 v{V_WO}, s89, v{V_WO}
        s_lshl_b32 s89, s78, 13
        v_lshl_add_u32 v{V_W2}, v{V_T2}, 11, v{V_T1}
        v_add_u32 v{V_W2}, s89, v{V_W2}
        """)
    if WIDE == 2:
        I(f"""
        v_bfe_u32 v{V_T2}, v0, 7, 2
        v_lshl_add_u32 v{V_T1}, v{V_T2}, 12, v{V_L16}
        v_bfe_u32 v{V_T2}, v0, 6, 1
        s_lshl_b32 s89, s45, 17
        v_lshl_add_u32 v{V_WO}, v{V_T2}, 10, v{V_T1}
        v_add_u32 v{V_WO}, s89, v{V_WO}
        s_lshl_b32 s89, s78, 13
        v_lshl_add_u32 v{V_W2}, v{V_T2}, 11, v{V_T1}
        v_add_u32 v{V_W2}, s89, v{V_W2}
        """)
    if "o" in kill: I("s_mov_b32 s14, 0")
    if "2" in kill: I("s_mov_b32 s18, 0")
    if "x" in kill: I(f"s_mov_b32 s80, {WS_BYTES}\ns_mov_b32 s81, {WS_BYTES}")
    if BS:
        import math
        lb = int(math.log2(BS))
        I(f"""
        v_bfe_u32 v{V_C4}, v0, 4, 2
        v_and_b32 v{V_T1}, 15, v0
        v_lshlrev_b32 v{V_C4}, {lb}, v{V_C4}
        v_lshl_add_u32 v{V_C4}, v{V_T1}, 2, v{V_C4}
        s_lshr_b32 s88, s2, 3
        s_cmp_lg_u32 s88, {99 if ("z" in kill or ZE) else 1}
        s_cbranch_scc1 L_nozero
        s_and_b32 s88, s2, 7
        s_lshl_b32 s88, s88, 3
        s_add_u32 s88, s88, s3
        s_lshl_b32 s88, s88, {lb+3}
        s_add_u32 s88, s88, {ACC_OFF}
        buffer_store_dword v{ZERO}, v{V_C4}, s[28:31], s88 offen {ZPOL}
        buffer_store_dword v{ZERO}, v{V_C4}, s[28:31], s88 offen offset:{4*BS} {ZPOL}
        """)
        ZF = SYNC + 1
    else:
        I(f"""
        s_cmp_lg_u32 s101, {8+ZW}
        s_cbranch_scc1 L_nozero
        s_and_b32 s88, s2, 7
        s_lshl_b32 s88, s88, 12
        s_add_u32 s88, s88, {ACC_OFF}
        buffer_store_dwordx4 {r4(ZERO)}, v{V_L16}, s[28:31], s88 offen {ZPOL}
        buffer_store_dwordx4 {r4(ZERO)}, v{V_L16}, s[28:31], s88 offen offset:1024 {ZPOL}
        buffer_store_dwordx4 {r4(ZERO)}, v{V_L16}, s[28:31], s88 offen offset:2048 {ZPOL}
        buffer_store_dwordx4 {r4(ZERO)}, v{V_L16}, s[28:31], s88 offen offset:3072 {ZPOL}
        """)
    g.label("L_nozero")
    if stamps:
        I(f"s_waitcnt lgkmcnt(0)\nv_mov_b32 v{V_ST}, 0\nv_writelane_b32 v{V_ST}, s60, 0\nv_writelane_b32 v{V_ST}, s58, 1\nv_writelane_b32 v{V_ST}, s54, 2")
    stamp("b0")

    W1FR = slot(20); W1ACC = slot(24)
    def stage1a():
        I(f"""
        s_lshl_b32 s87, s3, 9
        s_add_u32 s87, s87, {L_X}
        v_lshrrev_b32 v{A4}, 1, v{V_L16}
        v_add_u32 v{A4}, s87, v{A4}
        v_bfe_u32 v{A4+1}, v0, 1, 3
        v_lshl_add_u32 v{A4+1}, v{A4+1}, 6, v{V_LH}
        v_add_u32 v{A4+1}, s87, v{A4+1}
        """)
        if MLF or SYF:
            I(f"v_lshrrev_b32 v{A4+2}, 2, v{V_L16}\nv_and_b32 v{A4+2}, 0x7c, v{A4+2}\nds_write_b32 v{A4+2}, v{ZERO} offset:{L_ML}")
        g.wait("xop")
        I(f"""
        ds_write_b64 v{A4}, {r2(XOP)}
        ds_read2_b32 {r2(XOP)}, v{A4+1} offset0:0 offset1:8
        s_lshl_b32 s87, s3, 11
        v_lshl_add_u32 v{A4+2}, v{V_L16}, 1, s87
        """)
        for jj in range(2):
            g.wait(f"s1_{2*jj+1}")
            for q in range(4):
                for e in range(2):
                    I(f"v_perm_b32 v{W1FR+2*(2*q+e)+jj}, v{STG+4*(2*jj+1)+q}, v{STG+4*(2*jj)+q}, s{46+e}")
        I("s_waitcnt lgkmcnt(0)")
        for c in range(8):
            I(f"v_mfma_f32_16x16x16_bf16 {r4(W1ACC+4*c)}, {r2(XOP)}, {r2(W1FR+2*c)}, 0")
        for c in range(8):
            a = W1ACC + 4 * c
            I(f"v_add_f32_dpp v{Y+c}, v{a+1}, v{a} row_ror:8 row_mask:0xf bank_mask:0x3")
        for c in range(8):
            a = W1ACC + 4 * c
            I(f"v_add_f32_dpp v{Y+c}, v{a+2}, v{a+3} row_ror:8 row_mask:0xf bank_mask:0xc")
        I(f"""
        ds_write_b128 v{A4+2}, {r4(Y)} offset:{L_P}
        ds_write_b128 v{A4+2}, {r4(Y+4)} offset:{L_P+16}
        s_getreg_b32 s92, hwreg(HW_REG_XCC_ID, 0, 3)
        s_add_u32 s98, s98, 0x08010101
        s_add_u32 s85, s85, 0x08010101
        s_lshl_b32 s92, s92, 24
        s_and_b32 s73, s98, 0xf8ffffff
        s_or_b32 s73, s73, s92
        s_and_b32 s85, s85, 0xf8ffffff
        s_or_b32 s85, s85, s92
        v_and_b32 v{A4}, 0xf0, v{V_L16}
        v_bfe_u32 v{A4+1}, v0, 4, 2
        s_lshl_b32 s87, s3, 8
        v_lshl_add_u32 v{A4+1}, v{A4+1}, 11, v{A4}
        v_add_u32 v{A4+1}, s87, v{A4+1}
        v_bfe_u32 v{A4+2}, v0, 4, 1
        v_bfe_u32 v{A4+3}, v0, 5, 1
        v_lshl_add_u32 v{A4+2}, v{A4+2}, 1, v{A4+3} ; c4 = 2(g&1) + (g>>1)
        v_lshl_add_u32 v{A4}, v{A4+2}, 2, v{A4}
        v_lshlrev_b32 v{A4+2}, 3, v{A4+2}
        v_lshrrev_b32 v{A4+2}, v{A4+2}, s85
        s_movk_i32 s88, 0xff
        """)
    def stage1b():
        I(f"""
        s_waitcnt lgkmcnt(0)
        s_barrier
        ds_read_b128 {r4(Y)}, v{A4+1} offset:{L_P}
        ds_read_b128 {r4(Y+4)}, v{A4+1} offset:{L_P+8192}
        s_waitcnt lgkmcnt(0)
        v_pk_add_f32 {r2(Y)}, {r2(Y)}, {r2(Y+4)}
        v_pk_add_f32 {r2(Y+2)}, {r2(Y+2)}, {r2(Y+6)}
        v_permlane32_swap_b32 v{Y}, v{Y+1}
        v_permlane32_swap_b32 v{Y+2}, v{Y+3}
        v_add_f32 v{Y}, v{Y}, v{Y+1}
        v_add_f32 v{Y+2}, v{Y+2}, v{Y+3}
        v_permlane16_swap_b32 v{Y}, v{Y+2}
        v_add_f32 v{Y}, v{Y}, v{Y+2}
        v_bfi_b32 v{Y}, s88, v{A4+2}, v{Y}
        """)
        g.vm(f"buffer_store_dword v{Y}, v{A4}, s[28:31], s80 offen", "ex0")
        if XWB: I(f"v_mov_b32 v123, v{Y}\nv_mov_b32 v{V_S1+1}, v{A4}\ns_mov_b32 s66, s98")
        stamp("s1done")

    def allred(v, t, op):
        I(f"""
        {op}_dpp v{v}, v{v}, v{v} row_ror:4 {DPPF}
        {op}_dpp v{v}, v{v}, v{v} row_ror:8 {DPPF}
        v_mov_b32 v{t}, v{v}
        v_permlane16_swap_b32 v{v}, v{t}
        {op} v{v}, v{v}, v{t}
        v_mov_b32 v{t}, v{v}
        v_permlane32_swap_b32 v{v}, v{t}
        {op} v{v}, v{v}, v{t}
        """)

    def gate():
        a, b, c, d = ACC0, ACC0 + 1, ACC0 + 2, ACC0 + 3
        I(f"s_cmp_lg_u32 s3, {GW}\ns_cbranch_scc1 L_nogate")
        for q in range(4):
            I(f"""
            v_lshlrev_b32 v{a}, 16, v{AOP+q}
            v_and_b32 v{b}, s95, v{AOP+q}
            v_lshlrev_b32 v{c}, 16, v{AOP+4+q}
            v_and_b32 v{d}, s95, v{AOP+4+q}
            v_mul_f32 v{a}, v{a}, v{c}
            v_mul_f32 v{b}, v{b}, v{d}
            v_cvt_pk_bf16_f32 v{AOP+q}, v{a}, v{b}
            """)
        I(f"""
        v_mov_b32 v{a}, 0
        v_mov_b32 v{b}, 0x3f803f80
        v_dot2c_f32_bf16 v{a}, v{AOP}, v{b}
        v_dot2c_f32_bf16 v{a}, v{AOP+1}, v{b}
        v_dot2c_f32_bf16 v{a}, v{AOP+2}, v{b}
        v_dot2c_f32_bf16 v{a}, v{AOP+3}, v{b}
        v_add_f32_dpp v{a}, v{a}, v{a} quad_perm:[1,0,3,2] {DPPF}
        v_add_f32_dpp v{a}, v{a}, v{a} quad_perm:[2,3,0,1] {DPPF}
        """)
        allred(a, b, "v_add_f32")
        I(f"""
        v_cvt_pk_bf16_f32 v{a}, v{a}, v{a}
        v_and_b32 v{a}, s95, v{a}
        v_mul_f32 v{a}, s93, v{a}
        v_exp_f32 v{a}, -v{a}
        v_add_f32 v{a}, 1.0, v{a}
        v_rcp_f32 v{a}, v{a}
        v_cvt_pk_bf16_f32 v{a}, v{a}, v{a}
        v_and_b32 v{a}, s95, v{a}
        v_sub_f32 v{b}, 1.0, v{a}
        v_cvt_pk_bf16_f32 v{b}, v{b}, v{b}
        v_and_b32 v{b}, s95, v{b}
        ds_write_b64 v{ZERO}, {r2(a)} offset:{L_G}
        """)
        g.label("L_nogate")

    PX = X + 4
    def consumer():
        I(f"""
        v_bfe_u32 v{X}, v0, 3, 2
        v_lshrrev_b32 v{X+1}, 1, v{V_I16}
        v_lshl_add_u32 v{X}, v{X}, 7, v{X+1}
        v_bfe_u32 v{X+1}, v0, 5, 1
        v_lshl_add_u32 v{X}, v{X+1}, 2, v{X}
        v_and_b32 v{X+1}, 64, v0
        v_add_u32 v{X}, v{X+1}, v{X}
        s_mov_b32 s92, {0 if "x" in kill else 200000}
        s_mov_b32 s88, 0x0c0c0400
        s_mov_b32 s89, 0x04000c0c
        s_mov_b32 s90, -1
        s_movk_i32 s91, 0xff00
        """)
        g.wait("px")
        g.label("L_poll")
        I(f"""
        v_perm_b32 v{X+2}, v{PX+1}, v{PX}, s88
        v_perm_b32 v{X+3}, v{PX+3}, v{PX+2}, s89
        v_or_b32 v{X+2}, v{X+2}, v{X+3}
        v_xor_b32 v{X+2}, s73, v{X+2}
        v_and_b32 v{X+2}, s90, v{X+2}
        v_cmp_ne_u32 vcc, 0, v{X+2}
        s_cbranch_vccz L_polled
        s_sub_u32 s92, s92, 1
        s_cbranch_scc1 L_polled
        s_cmp_gt_u32 s92, {200000 - 5}
        s_cbranch_scc1 L_reload
        s_cmp_eq_u32 s90, -1
        s_cbranch_scc0 L_flushed
        s_mov_b32 s90, 0xf8ffffff
        s_waitcnt vmcnt(0)
        buffer_wbl2 sc1
        s_waitcnt vmcnt(0)""")
        g.label("L_flushed")
        I("buffer_inv sc1")
        g.label("L_reload")
        I(f"""
        buffer_load_dwordx4 {r4(PX)}, v{V_XL}, s[28:31], s81 offen sc1
        s_waitcnt vmcnt(0)
        s_branch L_poll""")
        g.label("L_polled")
        stamp("x2")
        if stamps: I(f"s_sub_u32 s96, 200000, s92\nv_writelane_b32 v{V_ST}, s96, 1")
        a, b, e0, e1 = X + 8, X + 9, X + 10, X + 11
        I(f"""
        v_and_b32 v{PX}, s91, v{PX}
        v_and_b32 v{PX+2}, s91, v{PX+2}
        v_and_b32 v{PX+1}, s91, v{PX+1}
        v_and_b32 v{PX+3}, s91, v{PX+3}
        v_permlane32_swap_b32 v{PX}, v{PX+2}
        v_permlane32_swap_b32 v{PX+1}, v{PX+3}
        v_add_f32 v{PX}, v{PX}, v{PX+2}
        v_add_f32 v{PX+1}, v{PX+1}, v{PX+3}
        v_cvt_pk_bf16_f32 v{PX}, v{PX}, v{PX+1}
        v_lshlrev_b32 v{a}, 16, v{PX}
        v_and_b32 v{b}, s95, v{PX}
        v_mul_f32 v{e0}, s93, v{a}
        v_mul_f32 v{e1}, s93, v{b}
        v_exp_f32 v{e0}, -v{e0}
        v_exp_f32 v{e1}, -v{e1}
        v_add_f32 v{e0}, 1.0, v{e0}
        v_add_f32 v{e1}, 1.0, v{e1}
        v_rcp_f32 v{e0}, v{e0}
        v_rcp_f32 v{e1}, v{e1}
        v_mul_f32 v{e0}, v{e0}, v{a}
        v_mul_f32 v{e1}, v{e1}, v{b}
        v_cvt_pk_bf16_f32 v{e1}, v{e0}, v{e1}
        v_lshlrev_b32 v{e0}, 16, v{e1}
        v_and_b32 v{e1}, s95, v{e1}
        v_mul_f32_dpp v{e0}, v{a}, v{e0} row_ror:8 {DPPF}
        v_mul_f32_dpp v{e1}, v{b}, v{e1} row_ror:8 {DPPF}
        v_cvt_pk_bf16_f32 v{e0}, v{e0}, v{e1}
        v_mov_b32_dpp v{PX}, v{e0} quad_perm:[0,1,2,3] row_mask:0xa bank_mask:0xf
        ds_write_b32 v{X}, v{PX} offset:{L_Q}
        """)
        if XWB: I(f"v_mov_b32 v{V_XL}, v{V_S1+1}")
        if SYF:
            assert gate_done
            I(f"s_lshl_b32 s88, s3, 2\nv_mov_b32 v{X+1}, s88\nv_mov_b32 v{X+2}, 1\nds_write_b32 v{X+1}, v{X+2} offset:{L_F}")

    kgroups_done = [0]
    def consume_group(k):
        s0 = 4 * k
        for i in range(4):
            I(f"v_dot2_f32_bf16 v{A4+i}, v{slot(s0+i)}, v{Q}, 0")
        for q in range(1, 4):
            for i in (range(4) if q < 3 else (0, 2, 1, 3)):
                I(f"v_dot2c_f32_bf16 v{A4+i}, v{slot(s0+i)+q}, v{Q+q}")
        I(f"""
        v_add_f32_dpp v{TT}, v{A4}, v{A4} row_ror:8 row_mask:0xf bank_mask:0x3
        v_add_f32_dpp v{TT+1}, v{A4+2}, v{A4+2} row_ror:8 row_mask:0xf bank_mask:0x3
        v_add_f32_dpp v{TT}, v{A4+1}, v{A4+1} row_ror:8 row_mask:0xf bank_mask:0xc
        v_add_f32_dpp v{TT+1}, v{A4+3}, v{A4+3} row_ror:8 row_mask:0xf bank_mask:0xc
        v_add_f32_dpp v{S+k}, v{TT}, v{TT} row_half_mirror row_mask:0xf bank_mask:0x5
        v_add_f32_dpp v{S+k}, v{TT+1}, v{TT+1} row_half_mirror row_mask:0xf bank_mask:0xa
        v_add_f32_dpp v{S+k}, v{S+k}, v{S+k} quad_perm:[1,0,3,2] {DPPF}
        v_add_f32_dpp v{S+k}, v{S+k}, v{S+k} quad_perm:[2,3,0,1] {DPPF}
        """)
        if k % 2 == 1:
            a, b = S + k - 1, S + k
            I(f"""
            v_cvt_pk_bf16_f32 v{TT}, v{a}, v{b}
            v_lshlrev_b32 v{a}, 16, v{TT}
            v_and_b32 v{b}, s95, v{TT}
            v_mul_f32 v{a}, s94, v{a}
            v_mul_f32 v{b}, s94, v{b}
            v_cvt_pk_bf16_f32 v{TT}, v{a}, v{b}
            v_lshlrev_b32 v{a}, 16, v{TT}
            v_and_b32 v{b}, s95, v{TT}
            """)
        kgroups_done[0] = k + 1

    def softmax1():
        m = TT
        I(f"""
        v_max3_f32 v{m}, v{S}, v{S+1}, v{S+2}
        v_max3_f32 v{m}, v{m}, v{S+3}, v{S+4}
        v_max3_f32 v{m}, v{m}, v{S+5}, v{S+6}
        v_max_f32 v{m}, v{m}, v{S+7}
        """)
        allred(m, A4, "v_max_f32")
        I(f"v_mul_f32 v{m}, s93, v{m}")
        for k in range(8):
            I(f"v_fma_f32 v{S+k}, v{S+k}, s93, -v{m}")
    def softmax2():
        for k in range(8):
            I(f"v_exp_f32 v{S+k}, v{S+k}")
        l = TT + 1
        I(f"v_add_f32 v{l}, v{S}, v{S+1}")
        for k in range(2, 8):
            I(f"v_add_f32 v{l}, v{l}, v{S+k}")
        for k in range(8):
            I(f"v_cvt_pk_bf16_f32 v{S+k}, v{S+k}, v{S+k}")
    def softmax3():
        allred(TT + 1, A4, "v_add_f32")
        I(f"""
        s_lshl_b32 s88, s3, 3
        v_mov_b32 v{A4}, s88
        v_mov_b32 v{V_MC}, v{TT}
        ds_write_b64 v{A4}, {r2(TT)} offset:{L_ML}
        s_lshl_b32 s99, s44, 5
        s_load_dword s98, s[32:33], s99
        """)

    def ffn_mm(q):
        if q == 0: I(f"v_mov_b32 v{X+3}, 0\nv_mov_b32 v{X+7}, 0")
        for e in range(2):
            for jj in range(3):
                I(f"v_perm_b32 v{X+4*e+jj}, v{W2R+4*(2*jj+1)+q}, v{W2R+4*(2*jj)+q}, s{46+e}")
        for e in range(2):
            I(f"v_mfma_f32_16x16x32_bf16 {r4(X+8+4*e)}, {r4(T)}, {r4(X+4*e)}, 0")
    def ffn_fold(q):
        for e in range(2):
            c = 2 * q + e
            a = X + 8 + 4 * e
            I(f"v_add_f32_dpp v{F+c//4}, v{a+1}, v{a} row_ror:8 row_mask:{1 << (c%4):#x} bank_mask:0x3")
        if q == 3:
            for u in range(2):
                I(f"v_mul_f32_dpp v{F+u}, v{F+u}, v{V_G+1} quad_perm:[0,1,2,3] row_mask:0xf bank_mask:0x3")

    def build_a(t):
        k, half = t // 2, t % 2
        for r in range(4):
            mir = (r >= 2) != (half == 1)
            d = AOP + 4 * (t % 2) + r
            if mir: I(f"v_and_b32_dpp v{d}, v{S+k}, v{MASK+r} row_half_mirror {DPPF}")
            else: I(f"v_and_b32 v{d}, v{S+k}, v{MASK+r}")

    vdone = [0]
    def pv(n):
        t = n // 2
        acc = ACC0 if n % 2 == 0 else ACC1
        c = "0" if n < 2 else r4(acc)
        I(f"v_mfma_f32_16x16x32_bf16 {r4(acc)}, {r4(AOP+4*(t%2))}, {r4(slot(n%8))}, {c}")
        vdone[0] = n + 1
        if n % 2 == 1 and t + 2 < 16: build_a(t + 2)

    wopairs = [0]
    def wo_perm(p):
        grp, jj = p // 4, p % 4
        a, b = stage(2 * p), stage(2 * p + 1)
        for q in range(4):
            for e in range(2):
                I(f"v_perm_b32 v{slot(8)+32*grp+4*(2*q+e)+jj}, v{b+q}, v{a+q}, s{46+e}")
        wopairs[0] = p + 1

    def ml_issue():
        I(f"""
        v_and_b32 v{A4+3}, 7, v0
        v_lshlrev_b32 v{A4+3}, 3, v{A4+3}
        s_waitcnt lgkmcnt(0)
        {"" if MLF else "s_barrier"}
        ds_read_b64 {r2(A4)}, v{A4+3} offset:{L_ML}
        s_cmp_eq_u32 s98, 1
        s_cbranch_scc1 L_zok
        s_mov_b32 s92, 200000
        v_mov_b32 v{TT}, 0
        s_mov_b64 exec, 1""")
        g.label("L_zpoll")
        I(f"""
        buffer_load_dword v{TT+1}, v{TT}, s[32:35], s99 offen sc1
        s_waitcnt vmcnt(0)
        v_cmp_eq_u32 vcc, 1, v{TT+1}
        s_cbranch_vccnz L_zdone
        s_sub_u32 s92, s92, 1
        s_cbranch_scc0 L_zpoll""")
        g.label("L_zdone")
        I("s_mov_b64 exec, -1")
        g.label("L_zok")
    def ml_combine():
        if MLF:
            g.label("L_ml")
            I(f"""
            s_waitcnt lgkmcnt(0)
            v_cmp_eq_u32 vcc, 0, v{A4+1}
            s_cbranch_vccz L_mlok
            ds_read_b64 {r2(A4)}, v{A4+3} offset:{L_ML}
            s_branch L_ml""")
            g.label("L_mlok")
        I(f"""
        s_waitcnt lgkmcnt(0)
        v_max_f32_dpp v{A4+2}, v{A4}, v{A4} quad_perm:[1,0,3,2] {DPPF}
        v_lshrrev_b32 v{V_T2}, 2, v{V_L16}
        s_mul_i32 s88, s3, 288
        v_max_f32_dpp v{A4+2}, v{A4+2}, v{A4+2} quad_perm:[2,3,0,1] {DPPF}
        v_and_b32 v{V_T0}, 32, v0
        v_bfe_u32 v{V_T1}, v0, 1, 3
        v_max_f32_dpp v{A4+2}, v{A4+2}, v{A4+2} row_half_mirror {DPPF}
        v_sub_f32 v{A4}, v{A4}, v{A4+2}
        v_sub_f32 v{V_MC}, v{V_MC}, v{A4+2}
        v_exp_f32 v{A4}, v{A4}
        v_exp_f32 v{V_MC}, v{V_MC}
        v_mul_f32 v{A4}, v{A4}, v{A4+1}
        v_mul_f32 v{V_MC}, v{V_MC}, v{V_G}
        v_mul_u32_u24 v{V_T1}, 288, v{V_T1}
        v_add_f32_dpp v{A4}, v{A4}, v{A4} quad_perm:[1,0,3,2] {DPPF}
        v_and_b32 v{A4+1}, 1, v0
        v_lshl_add_u32 v{V_T1}, v{A4+1}, 7, v{V_T1}
        v_add_f32_dpp v{A4}, v{A4}, v{A4} quad_perm:[2,3,0,1] {DPPF}
        v_lshl_add_u32 v{V_T0}, v{A4+1}, 3, v{V_T0}
        v_and_b32 v{A4+1}, 48, v0
        v_add_f32_dpp v{A4}, v{A4}, v{A4} row_half_mirror {DPPF}
        v_add_u32 v{V_T1}, v{A4+1}, v{V_T1}
        v_rcp_f32 v{A4}, v{A4}
        v_and_b32 v{V_W2}, 0xf0, v{V_L16}
        v_mul_f32 v{V_FAC}, v{V_MC}, v{A4}
        v_bfe_u32 v{A4+1}, v0, 4, 2
        v_lshl_add_u32 v{V_W2}, v{A4+1}, 1, v{V_W2}
        v_bfe_u32 v{A4+2}, v0, 3, 1
        v_lshl_add_u32 v{V_T0}, v{A4+2}, 4, v{V_T0}
        v_bfe_u32 v{A4+2}, v0, 4, 1
        v_lshl_add_u32 v{V_T0}, v{A4+2}, 2, v{V_T0}
        v_bfe_u32 v{A4+2}, v0, 1, 2
        v_add_u32 v{V_T0}, v{A4+2}, v{V_T0}
        v_lshl_add_u32 v{V_T0}, v{V_T0}, 2, s88
        {"" if BS else "s_lshl_b32 s88, s3, 9"}
        {"" if BS else "s_add_u32 s82, s82, s88"}
        s_lshl_b32 s72, s44, 10
        s_lshl_b32 s88, s3, 7
        s_add_u32 s72, s72, s88
        """)
        if BS:
            I(f"s_lshl_b32 s82, s44, 3\ns_add_u32 s82, s82, s3\ns_lshl_b32 s82, s82, {lb+3}\ns_add_u32 s82, s82, {ACC_OFF}")
        if "a" in kill: I(f"s_mov_b32 s82, {WS_BYTES}")

    def kvtag(i): return f"k{i}" if i < 32 else f"v{i-32}"
    nth = [0]
    def throttle(i, isw=False):
        p = PAT if (i < 32 or PATV is None) else PATV
        if p is None or p == "D":
            g.waitn(D - 1)
        elif not isw:
            d = p[i % len(p)]
            for last in (S1C + 1, SYNC - 1, 32 + B2AT - 1):
                if last - PRE < i <= last: d += PRE - (last - i)
            if PEND and i >= PEND[0]: d = PEND[1]
            if i - d >= 0: g.wait(kvtag(i - d))
        if SL and not isw and B0 <= i < B0 + BU + BW:
            saved = dict(g.done)
            nth[0] += 1
            I(f"s_cmp_le_u32 s71, {i - B0}\ns_cbranch_scc1 L_th{nth[0]}")
            g.wait(kvtag(i - SL))
            g.label(f"L_th{nth[0]}")
            g.done = saved
    vpn = [0]
    def vpf_at(i):
        if VPF2 is not None and i == VPF2:
            I(f"""
            s_lshl_b32 s56, s44, 3
            s_add_u32 s56, s56, s3
            s_mul_i32 s56, s56, 768
            s_lshl_b32 s55, s78, 13
            s_add_u32 s56, s56, s55
            v_lshlrev_b32 v123, 3, v{V_L16}
            s_mov_b64 exec, 63
            buffer_load_dword v{S+1}, v123, s[16:19], s56 offen
            s_mov_b64 exec, -1
            """)
        while VPF and vpn[0] < len(VPF) and i == VPF[vpn[0]]:
            per = 16 // len(VPF)
            I(f"""
            s_lshl_b32 s56, s44, 3
            s_add_u32 s56, s56, s3
            s_mul_i32 s56, s56, {per*128}
            s_lshl_b32 s51, s45, 17
            s_add_u32 s56, s56, s51
            s_add_u32 s56, s56, {vpn[0] * (131072 // len(VPF))}
            v_lshlrev_b32 v123, 3, v{V_L16}
            s_mov_b64 exec, {(1 << per) - 1}
            buffer_load_dword v123, v123, s[48:51], s56 offen
            s_mov_b64 exec, -1
            """.replace("s51", "s55").replace("s[48:55]", "s[48:51]"))
            vpn[0] += 1
    if VPF:
        I("s_mov_b32 s48, s12\ns_mov_b32 s49, s13\ns_mov_b32 s50, 0x400000\ns_mov_b32 s51, 0x20000")
    vpf_at(-1)
    spn = [0]
    def spf_at(i):
        if SPF and spn[0] < 8 and i == SPF[spn[0]]:
            while spn[0] < 8 and i == SPF[spn[0]]:
                p = spn[0]
                if p == 0:
                    I("s_lshl_b32 s56, s44, 3\ns_add_u32 s56, s56, s3\ns_lshl_b32 s56, s56, 8\ns_lshl_b32 s51, s45, 17\ns_add_u32 s56, s56, s51")
                else:
                    I("s_add_u32 s56, s56, s84")
                step = 128 // SPFW
                for k in range(2 * SPFW):
                    if k == 0: I(f"s_load_dword s48, s[12:13], s56 {SPFX}")
                    else: I(f"s_add_u32 s51, s56, {k*step}\ns_load_dword s48, s[12:13], s51 {SPFX}")
                spn[0] += 1
    def sync_reads():
        if SYF: I(f"ds_read_b32 v{X+2}, v{X+1} offset:{L_F}")
        I(f"""
        ds_read_b128 {r4(Q)}, v{V_T0} offset:{L_Q}
        ds_read2_b32 {r2(T)}, v{V_LH} offset0:0 offset1:8
        ds_read2_b32 {r2(T+2)}, v{V_LH} offset0:16 offset1:24
        ds_read_b64 {r2(V_G)}, v{ZERO} offset:{L_G}
        """)
    w2n = 0; won = 0
    synced = False; gate_done = False
    for n in range(D0, 32):
        if n == ZF:
            I(f"""
            s_cmp_lg_u32 s101, {8+ZW}
            s_cbranch_scc1 L_noflag
            v_mov_b32 v{X+1}, 1
            s_and_b32 s86, s2, 7
            s_lshl_b32 s86, s86, 5
            s_mov_b64 exec, 1
            buffer_store_dword v{X+1}, v{ZERO}, s[32:35], s86 offen sc1
            s_mov_b64 exec, -1
            """)
            g.label("L_noflag")
        if n == SYNC:
            stamp("sync")
            I(f"""
            v_and_b32 v{V_T0}, 0xf0, v{V_L16}
            v_add_u32 v{V_LH}, {L_H}, v{V_LH}
            """)
            if SYF: I(f"v_lshrrev_b32 v{X+1}, 2, v{V_I16}")
            else: I("s_waitcnt lgkmcnt(0)\ns_barrier")
            sync_reads()
        throttle(n)
        if n in KST: stamp(f"t{n}")
        kload(n)
        spf_at(n); vpf_at(n)
        if INV == n:
            I(f"s_cmp_lg_u32 s3, 7\ns_cbranch_scc1 L_noinv\nbuffer_inv {INVP}")
            g.label("L_noinv")
        s1_at(n)
        if n == S1C:
            assert n < 19
            stage1a()
        if n == S1C + 1: stage1b()
        if n == POLL:
            g.vm(f"buffer_load_dwordx4 {r4(PX)}, v{V_XL}, s[28:31], s81 offen {XL}", "px")
        if n == POLL + PW:
            assert n < SYNC
            consumer()
        if n == SYNC:
            if SYF:
                g.label("L_sy")
                I(f"s_waitcnt lgkmcnt(0)\nv_cmp_eq_u32 vcc, 0, v{X+2}\ns_cbranch_vccz L_syok")
                sync_reads()
                I("s_branch L_sy")
                g.label("L_syok")
            I(f"""
            s_cmp_lg_u32 s3, {9 if ("p" in kill or XWB) else 0}
            s_cbranch_scc1 L_nobump
            v_mov_b32 v{X}, s98
            s_mov_b64 exec, 1
            buffer_store_dword v{X}, v{ZERO}, s[28:31], s100 offen
            s_mov_b64 exec, -1
            """)
            g.label("L_nobump")
            I("s_waitcnt lgkmcnt(0)")
            g.label("L_synced")
            stamp("synced")
            synced = True
        if not gate_done and g.done['A'] > gate_after and n > S1C + 1:
            assert n < SYNC
            gate(); gate_done = True
        if synced:
            k = kgroups_done[0]
            if k < 8 and 4 * k + 3 <= n and g.is_done(f"k{4*k+3}"):
                consume_group(k)
        while w2n < 6 and n == W2POS[w2n]:
            throttle(n, True)
            w2load(w2n); w2n += 1
        while won < len(WOK) and n == WOK[won]:
            assert won < NE and n > S1C
            throttle(n, True)
            woload(won); won += 1
    assert w2n == 6 and gate_done and won == len(WOK) and len(WOK) + len(WOPOS) == 16
    sm = 0; ffn_q = 0
    def after_step(n):
        nonlocal sm, ffn_q
        k = kgroups_done[0]
        if k < 8:
            if g.is_done(f"k{4*k+3}"): consume_group(k)
            return
        if sm == 0:
            softmax1(); sm = 1; return
        if sm == 1:
            softmax2(); build_a(0); build_a(1); sm = 2; stamp("smax")
        elif sm == 2:
            softmax3(); sm = 3
        while vdone[0] <= n and vdone[0] < 32 and g.is_done(f"v{vdone[0]}"):
            pv(vdone[0])
        p = wopairs[0]
        if p < 8 and 2 * p + 1 < won and g.is_done(f"wo{2*p+1}"):
            wo_perm(p)
        elif sm == 3 and ffn_q < 8 and g.is_done("w2_5"):
            if ffn_q % 2 == 0: ffn_mm(ffn_q // 2)
            else: ffn_fold(ffn_q // 2)
            ffn_q += 1
    for n in range(32):
        if PRIO is not None and n == PRIO:
            I("s_cmp_lt_u32 s3, 4\ns_cbranch_scc1 L_prio\ns_setprio 1")
            g.label("L_prio")
        if n == B2AT:
            assert sm == 3
            ml_issue()
        throttle(32 + n)
        if 32 + n in KST: stamp(f"t{32+n}")
        if n < 8: assert kgroups_done[0] > n // 4
        else: assert vdone[0] > n - 8, (n, vdone[0])
        vload(n)
        spf_at(32 + n); vpf_at(32 + n)
        if n == B2AT: ml_combine()
        after_step(n)
        while won < 16 and n == WOPOS[won - len(WOK)]:
            throttle(32 + n, True)
            assert won < NE or kgroups_done[0] >= (7 if won < NE + 4 else 8), (won, kgroups_done[0])
            assert won < NE + 8 or wopairs[0] > (won - 8) // 2, (won, wopairs[0])
            woload(won); won += 1
            after_step(n)
    assert won == 16 and ffn_q == 8
    def xwb():
        I(f"""
        buffer_store_dword v123, v{V_XL}, s[28:31], s80 offen {XWP}
        s_cmp_lg_u32 s3, 0
        s_cbranch_scc1 L_nobump2
        v_mov_b32 v{TT}, s66
        v_mov_b32 v{TT+1}, 0
        s_mov_b64 exec, 1
        buffer_store_dword v{TT}, v{TT+1}, s[28:31], s100 offen {XWP}
        s_mov_b64 exec, -1
        """)
        g.label("L_nobump2")
    stamp("issued")
    while vdone[0] < 32:
        g.wait(f"v{vdone[0]}")
        after_step(31)
    stamp("lastv")
    if XWB == 1: xwb()
    RS = A4
    def spec_issue():
        I("s_mov_b32 s86, 0x01ff01ff\ns_mov_b32 s87, 0x01ff01ff\ns_mov_b64 exec, s[86:87]")
        g.vm(f"buffer_load_dword v{RS}, v{V_T2}, s[28:31], s82 offen sc1", "sp0")
        g.vm(f"buffer_load_dword v{RS+1}, v{V_T2}, s[28:31], s82 offen offset:256 sc1", "sp1")
        I("s_mov_b64 exec, -1")
    if SPEC == 1: spec_issue()
    I(f"""
    v_permlane32_swap_b32 v{ACC0}, v{ACC0+1}
    v_permlane32_swap_b32 v{ACC0+2}, v{ACC0+3}
    v_permlane32_swap_b32 v{ACC1}, v{ACC1+1}
    v_permlane32_swap_b32 v{ACC1+2}, v{ACC1+3}
    v_add_f32 v{T}, v{ACC0}, v{ACC1+1}
    v_add_f32 v{T+1}, v{ACC0+2}, v{ACC1+3}
    v_mul_f32 v{T}, v{T}, v{V_FAC}
    v_mul_f32 v{T+1}, v{T+1}, v{V_FAC}
    v_cvt_pk_bf16_f32 v{T}, v{T}, v{T+1}
    ds_write_b32 v{V_T0}, v{T} offset:{L_O}
    s_waitcnt lgkmcnt(0)
    s_barrier
    """)
    stamp("b3")
    I(f"ds_read_b128 {r4(AOP)}, v{V_T1} offset:{L_O}")
    I(f"ds_read_b128 {r4(AOP+4)}, v{V_T1} offset:{L_O+64}")
    if SPEC == 2: spec_issue()
    if XWB == 2: xwb()
    while wopairs[0] < 8:
        g.wait(f"wo{2*wopairs[0]+1}")
        wo_perm(wopairs[0])
    TACC = slot(0); E = STG
    I(f"""
    s_mov_b32 s88, {f2u(31.0):#x}
    s_mov_b32 s90, 0x00ff00ff
    s_mov_b32 s91, 0x00ff00ff
    s_mov_b32 s86, 0x01ff01ff
    s_mov_b32 s87, 0x01ff01ff
    s_waitcnt lgkmcnt(0)
    """)
    def ea(c): I(f"v_add_f32_dpp v{E+c}, v{TACC+4*c}, v{TACC+4*c+2} quad_perm:[0,1,2,3] row_mask:0xf bank_mask:0x3")
    def eb(c): I(f"v_add_f32_dpp v{E+c}, v{TACC+4*c+1}, v{TACC+4*c+3} quad_perm:[0,1,2,3] row_mask:0xf bank_mask:0xc")
    def s32(c): I(f"v_permlane32_swap_b32 v{E+c}, v{E+c+2}\nv_add_f32 v{E+c}, v{E+c}, v{E+c+2}")
    def s16(u): I(f"v_permlane16_swap_b32 v{E+4*u}, v{E+4*u+1}\nv_add_f32 v{E+4*u}, v{E+4*u}, v{E+4*u+1}")
    def fin(u): I(f"v_add_f32_dpp v{XU+u}, v{E+4*u}, v{E+4*u} row_ror:8 row_mask:0xf bank_mask:0x3")
    def mm(c):
        for grp in range(2):
            cc = "0" if grp == 0 else r4(TACC + 4 * c)
            I(f"v_mfma_f32_16x16x32_bf16 {r4(TACC+4*c)}, {r4(AOP+4*grp)}, {r4(slot(8)+32*grp+4*c)}, {cc}")
    mm(0); mm(2); mm(1); mm(3); mm(4)
    ea(0); mm(6); eb(0); ea(2); ea(1); mm(5); eb(2); eb(1); ea(3); ea(4); mm(7)
    eb(3); eb(4); s32(0); ea(6); ea(5); s32(1); eb(6); eb(5); ea(7); s16(0); eb(7); s32(4); fin(0)
    s32(5)
    I(f"v_add_f32 v{T}, v{XU}, v{F}\nv_add_f32 v{XU}, v{XU}, v{F}")
    s16(1); fin(1)
    stamp("preat")
    if SPEC:
        I(f"v_add_f32 v{T+1}, v{XU+1}, v{F+1}\nv_add_f32 v{XU+1}, v{XU+1}, v{F+1}\ns_mov_b64 exec, s[86:87]")
        g.wait("sp1")
        I(f"""
        v_mov_b32_dpp v{RS+2}, v{RS} row_newbcast:8 {DPPF}
        v_mov_b32_dpp v{RS+3}, v{RS+1} row_newbcast:8 {DPPF}
        v_cmp_neq_f32 vcc, s88, v{RS+2}
        v_cmp_neq_f32 s[84:85], s88, v{RS+3}
        s_or_b64 s[76:77], vcc, s[84:85]
        v_cndmask_b32 v{T}, v{RS}, v{T}, vcc
        v_cndmask_b32 v{T+1}, v{RS+1}, v{T+1}, s[84:85]
        s_cbranch_scc0 L_noat
        s_mov_b64 exec, s[84:85]
        buffer_atomic_add_f32 v{T+1}, v{V_T2}, s[28:31], s82 offen offset:256 sc0
        s_mov_b64 exec, vcc
        buffer_atomic_add_f32 v{T}, v{V_T2}, s[28:31], s82 offen sc0
        s_mov_b64 exec, s[86:87]
        s_waitcnt vmcnt(0)
        """)
        g.label("L_noat")
    else:
        I(f"""
        v_add_f32 v{T+1}, v{XU+1}, v{F+1}
        s_mov_b64 exec, s[86:87]
        """)
        g.vm(f"buffer_atomic_add_f32 v{T+1}, v{V_C4 if BS else V_T2}, s[28:31], s82 offen offset:{4*BS if BS else 256} sc0 {APOL}", "at1")
        g.vm(f"buffer_atomic_add_f32 v{T}, v{V_C4 if BS else V_T2}, s[28:31], s82 offen sc0 {APOL}", "at0")
        I(f"v_add_f32 v{XU+1}, v{XU+1}, v{F+1}")
        g.wait("at0")
    I(f"""
    v_mov_b32_dpp v{T+2}, v{T} row_newbcast:8 {DPPF}
    v_mov_b32_dpp v{T+3}, v{T+1} row_newbcast:8 {DPPF}
    v_add_f32 v{T}, v{T}, v{XU}
    v_add_f32 v{T+1}, v{T+1}, v{XU+1}
    v_cmp_eq_f32 vcc, s88, v{T+2}
    v_cmp_eq_f32 s[86:87], s88, v{T+3}
    v_cvt_pk_bf16_f32 v{T}, v{T}, v{T+1}
    s_and_b64 exec, vcc, s[90:91]
    s_cbranch_execz L_nost0
    buffer_store_short v{T}, v{V_W2}, s[36:39], s72 offen {OPOL}
    """)
    g.label("L_nost0")
    I(f"""
    s_and_b64 exec, s[86:87], s[90:91]
    s_cbranch_execz L_nost1
    buffer_store_short_d16_hi v{T}, v{V_W2}, s[36:39], s72 offen offset:8 {OPOL}
    """)
    g.label("L_nost1")
    if stamps:
        I("s_mov_b64 exec, -1\ns_memtime s[62:63]")
        stamp("end")
        I(f"""
        s_sub_u32 s62, s62, s64
        v_writelane_b32 v{V_ST}, s62, 14
        s_getreg_b32 s96, hwreg(HW_REG_XCC_ID)
        s_nop 0
        v_writelane_b32 v{V_ST}, s96, 15
        s_lshl_b32 s88, s2, 9
        s_lshl_b32 s89, s3, 6
        s_add_u32 s88, s88, s89
        s_add_u32 s88, s88, {STAMP_OFF}
        s_mov_b64 exec, 0xffff
        buffer_store_dword v{V_ST}, v{V_T2}, s[28:31], s88 offen
        """)
    if ZE:
        I("s_endpgm")
        g.label("L_zero")
        I(f"""
        s_mov_b32 s30, {WS_BYTES}
        s_mov_b32 s31, 0x20000
        s_and_b32 s88, s2, 7
        s_lshl_b32 s88, s88, 12
        s_add_u32 s88, s88, {ACC_OFF}
        v_mov_b32 v{ZERO}, 0
        v_mov_b32 v{ZERO+1}, 0
        v_lshlrev_b32 v{V_T1}, 3, v0
        buffer_store_dwordx2 {r2(ZERO)}, v{V_T1}, s[28:31], s88 offen {ZPOL}
        s_branch L_zret
        """)
    fix_cfg(g)
    body = g.text()
    head = f"""; out = g * attention(x) + (1 - g) * swiglu(x); one workgroup (8 waves) per (batch b, head h), id = 32 b + h.
; @launch grid=(256,1,1) block=(512,1,1) lds={LDS_BYTES}
.amdgcn_target "amdgcn-amd-amdhsa--gfx950"
.text
.globl {KNAME}
.p2align 8
.type {KNAME},@function
{KNAME}:
"""
    foot = f"""L_end:
    s_endpgm
.section .rodata,"a"
.p2align 6
.amdhsa_kernel {KNAME}
  .amdhsa_next_free_vgpr 256
  .amdhsa_next_free_sgpr 102
  .amdhsa_accum_offset 256
  .amdhsa_group_segment_fixed_size 0
  .amdhsa_kernarg_size 104
  .amdhsa_user_sgpr_count 2
  .amdhsa_user_sgpr_kernarg_segment_ptr 1
  .amdhsa_system_sgpr_workgroup_id_x 1
  .amdhsa_float_denorm_mode_32 3
.end_amdhsa_kernel
"""
    return head + body + foot

if __name__ == "__main__":
    out = sys.argv[1]
    kw = {}
    for a in sys.argv[2:]:
        k, v = a.split("=")
        kw[k] = eval(v)
    open(out, "w").write(gen(**kw))
```

```python
import sys, struct
from asmlib import Gen, fix_cfg, cfg_problems

KNAME = "gated_mix__sliding_block_cached__glu_gated_swiglu__decode_kernel"
def f2u(x): return struct.unpack("<I", struct.pack("<f", x))[0]

L_O, L_Q, L_H, L_G, L_ML, L_F = 0, 2304, 2560, 2816, 2848, 2912
L_X = 3072
L_P = L_X + 4096
LDS_BYTES = L_P + 16384
ACC_OFF = 1024 * 1024
STAMP_OFF = 4 * 1024 * 1024
WS_BYTES = 8 * 1024 * 1024

V_L16, V_WO, V_W2, V_KV, V_T0, V_T1, V_T2 = 1, 2, 3, 4, 5, 6, 7
Q = 8; MASK = 12; S = 16; A4 = 24; TT = 28; F = 30; ACC0 = 32; ACC1 = 36; AOP = 40
T = 48
V_S1 = 52; V_FAC = 52; V_MC = 53; V_XL = 54; V_I16 = 55
STG = 56
W2R = 72
X = 104
ZERO = 116
V_G = 120
V_C4 = 122; V_LH = 124; V_ST = 125; XU = 126
SLOT = 128
def slot(n): return SLOT + 4 * n
def r4(b): return f"v[{b}:{b+3}]"
def r2(b): return f"v[{b}:{b+1}]"
DPPF = "row_mask:0xf bank_mask:0xf"

def gen(D=5, PAT=(3,), PATV=None, FAST=0, PT=9, S1C=4, POLL=18, PW=4, SYNC=24, W2POS=(9, 11, 13, 15, 17, 19), WOK=(21, 23, 26, 29),
        WOPOS=(0, 2, 5, 7, 9, 11, 14, 16, 18, 21, 23, 26), B2AT=20, ZF=16, SL=0, BU=8, BW=3, B0=None, S1POS=None, PRE=0, WIDE=0, PEND=(57, 5), NB=None, XW=(), MLF=0, SYF=0, GW=0, ZW=1, PRIO=None, BQ=6, APOL='', OPOL='', ZPOL='sc1', SPEC=0, BS=64, ZE=0, wopol='nt', SPF=None, SPFW=1, SPFX='', VPF=None, VPF2=None, EPF=1, XPF=1, XL='sc1', XWB=0, XWP='sc1', PP='', INV=None, INVP='sc0', TP=None, EWO=1, DZ=None, KST=(), RK=(8, 23, 37), RR0=32, RG=2, RM=8, BP=None, RWG=0,
        stamps=False, kill=""):
    g = Gen(); g.roles = ['A']; g.done = {'A': 0}
    I = g.I
    if B0 is None: B0 = S1C + 2
    names = []
    def stamp(name):
        if stamps and (not KST or name in ("end", "lastv") or name.startswith("t")):
            if name not in names: names.append(name)
            k = names.index(name)
            assert k < 14
            I(f"s_memrealtime s[96:97]\ns_waitcnt lgkmcnt(0)\nv_writelane_b32 v{V_ST}, s96, {k}")
    def kvoff(n):
        return sum(((n >> k) & 1) << b for k, b in enumerate(NB))
    def kload(n):
        if NB:
            I(f"s_xor_b32 s74, s57, {kvoff(n)}")
            g.vm(f"buffer_load_dwordx4 {r4(slot(n))}, v{V_KV}, s[4:7], s74 offen nt", f"k{n}"); return
        if n % 4 == 0 and n > 0: I("s_add_u32 s74, s74, s75")
        g.vm(f"buffer_load_dwordx4 {r4(slot(n))}, v{V_KV}, s[4:7], s74 offen offset:{(n%4)*1024} nt", f"k{n}")
    def vload(n):
        if NB:
            I(f"s_xor_b32 s74, s57, {kvoff(n)}")
            g.vm(f"buffer_load_dwordx4 {r4(slot(n%8))}, v{V_KV}, s[8:11], s74 offen nt", f"v{n}"); return
        if n == 0: I("s_mov_b32 s74, s57")
        if n % 4 == 0 and n > 0: I("s_add_u32 s74, s74, s75")
        g.vm(f"buffer_load_dwordx4 {r4(slot(n%8))}, v{V_KV}, s[8:11], s74 offen offset:{(n%4)*1024} nt", f"v{n}")
    def w2load(j):
        so = ["0", "s84", "s75"][j // 2]
        g.vm(f"buffer_load_dwordx4 {r4(W2R+4*j)}, v{V_W2}, s[16:19], {so} offen offset:{(j%2)*1024} {BP if BP is not None else wopol}", f"w2_{j}")
    NE = 6
    def stage(n):
        if n < 4: return STG + 4 * n
        if n < NE: return W2R + 24 + 4 * (n - 4)
        return slot(24 + (n - NE) % 8)
    def woload(n):
        if n == 0: I("s_mov_b32 s83, 0")
        elif n % 2 == 0: I("s_add_u32 s83, s83, s84")
        if "n" in kill and n % 2 == 0: I(f"s_cmp_eq_u32 s44, {n // 2}\ns_cselect_b32 s14, 0x400000, 0")
        g.vm(f"buffer_load_dwordx4 {r4(stage(n))}, v{V_WO}, s[12:15], s83 offen offset:{(n%2)*2048} {BP if (BP is not None and n < len(WOK)) else TP[1] if (TP and n >= TP[0]) else wopol}", f"wo{n}")
    def s1load(j):
        g.vm(f"buffer_load_dwordx4 {r4(STG+4*j)}, v{V_S1}, s[20:23], s68 offen nt", f"s1_{j}")
        if j < 3: I(f"s_add_u32 s68, s68, {'s67' if j == 1 else 's76'}")

    if stamps: I("s_memrealtime s[60:61]")
    I(f"""
    s_load_dwordx2 s[4:5], s[0:1], 8
    s_load_dwordx2 s[28:29], s[0:1], 96
    {"s_load_dwordx2 s[12:13], s[0:1], 32" if EWO else ""}
    s_lshr_b32 s3, s2, 8
    s_cbranch_scc1 L_end
    v_and_b32 v{V_L16}, 63, v0
    v_lshrrev_b32 v{V_T0}, 6, v0
    v_lshlrev_b32 v{V_L16}, 4, v{V_L16}
    """)
    if PT:
        I("; pull the kernel's own code towards L2 while the kernarg load is in flight\ns_getpc_b64 s[52:53]")
        g.label("L_pc")
        I(f"""
        v_mul_u32_u24 v{V_T2}, {PT*128}, v{V_T0}
        v_lshl_add_u32 v{V_T2}, v{V_L16}, 3, v{V_T2}
        v_min_u32 v{V_T2}, L_end-L_pc, v{V_T2}
        s_mov_b64 exec, {(1 << PT) - 1}
        global_load_dword v{S}, v{V_T2}, s[52:53] {PP}
        s_mov_b64 exec, -1
        """)
    I(f"""
    s_lshl_b32 s74, s2, 20
    v_lshl_add_u32 v{V_KV}, v{V_T0}, 12, v{V_L16}
    s_add_u32 s74, s74, 0xc0000
    s_brev_b32 s6, 8
    s_mov_b32 s7, 0x20000
    """)
    if NB:
        for (src, dst) in XW:
            I(f"s_bfe_u32 s57, s2, {(1<<16)|src:#x}\ns_lshl_b32 s57, s57, {dst}\ns_xor_b32 s74, s74, s57")
        I("s_mov_b32 s57, s74")
    if EWO:
        I(f"""
        s_lshr_b32 s44, s2, 5
        s_and_b32 s45, s2, 31
        s_lshl_b32 s56, s45, 3
        s_add_u32 s56, s56, s44
        s_lshl_b32 s56, s56, 14
        v_lshlrev_b32 v123, 3, v{V_L16}
        v_lshl_add_u32 v{V_T1}, v{V_T0}, 11, v123
        s_mov_b32 s14, 0x400000
        s_mov_b32 s15, s7
        s_mov_b64 exec, 0xffff
        s_waitcnt lgkmcnt(0)
        """)
        g.vm(f"buffer_load_dword v{S+1}, v{V_T1}, s[12:15], s56 offen {PP}", "pfo")
        I("s_mov_b64 exec, -1")
        for n in range(FAST): kload(n)
    elif FAST:
        I("s_waitcnt lgkmcnt(0)")
        for n in range(FAST): kload(n)
    if ZE:
        assert FAST and BS == 64
        I("s_lshr_b32 s88, s2, 3\ns_cmp_eq_u32 s88, 1\ns_cbranch_scc1 L_zero")
        g.label("L_zret")
    if stamps:
        names += ["start", "k0", "k1"]
        I("s_memrealtime s[58:59]")
    I(f"""
    v_readfirstlane_b32 s3, v{V_T0}
    s_bfe_u32 s70, s2, 0x20005
    s_load_dwordx2 s[24:25], s[0:1], 0
    s_lshl_b32 s86, s70, 3
    s_add_u32 s86, s86, 32
    s_cmp_lt_u32 s70, 2
    s_cselect_b32 s86, 24, s86
    s_load_dwordx2 s[20:21], s[0:1], s86
    {"s_load_dwordx2 s[12:13], s[0:1], 32" if (EPF and not EWO) else ""}
    {"s_load_dwordx2 s[16:17], s[0:1], 64" if EPF else ""}
    {"" if EWO else "s_lshr_b32 s44, s2, 5"}
    {"" if EWO else "s_and_b32 s45, s2, 31"}
    ; ffn slice s = (h&7)*4 + (h>>3); chunks [floor((16s+2)/3), next), last one ends at 172
    s_and_b32 s87, s45, 7
    s_lshl_b32 s87, s87, 2
    s_lshr_b32 s88, s45, 3
    s_add_u32 s87, s87, s88
    s_mul_i32 s87, s87, {16*43691}
    s_add_u32 s87, s87, {2*43691}
    s_lshr_b32 s78, s87, 17
    s_add_u32 s87, s87, {16*43691}
    s_lshr_b32 s79, s87, 17
    s_cmp_eq_u32 s79, 171
    s_addc_u32 s79, s79, 0
    s_sub_u32 s89, s79, s78
    s_movk_i32 s26, 8192
    s_lshl_b32 s87, s45, 8
    s_lshl_b32 s88, s70, 7
    s_add_u32 s87, s87, s88
    s_lshl_b32 s88, s78, 4
    s_cmp_lt_u32 s70, 2
    s_cselect_b32 s76, s26, 2752
    s_cselect_b32 s87, s87, s88
    s_cselect_b32 s89, 8, s89
    s_lshl_b32 s22, s76, 9
    s_mov_b32 s23, 0x20000
    s_mov_b32 s27, 0x20000
    s_lshr_b32 s88, s44, 2
    s_lshl_b32 s88, s88, 3
    s_add_u32 s88, s88, s3
    s_lshl_b32 s69, s88, 6
    s_lshl_b32 s88, s88, 5
    s_mul_i32 s88, s88, s76
    s_add_u32 s68, s87, s88
    s_mul_i32 s67, s76, 15
    v_bfe_u32 v{T}, v0, 3, 3
    v_and_b32 v{V_T2}, 7, v0
    v_lshlrev_b32 v{T+1}, 1, v{T}
    v_lshlrev_b32 v{V_I16}, 4, v{V_T2}
    v_cmp_gt_u32 vcc, s89, v{V_T2}
    v_mad_u32_u24 v{V_S1}, v{T+1}, s76, v{V_I16}
    v_bfrev_b32 v{T+2}, 1
    v_cndmask_b32 v{V_S1}, v{T+2}, v{V_S1}, vcc
    v_lshlrev_b32 v{V_T2}, 3, v{V_T2}
    v_lshl_add_u32 v{T+3}, v{T}, 10, v{V_T2}
    {'' if NB else 's_mov_b32 s57, s74'}
    s_mov_b32 s75, 0x8000
    """)
    if "s" in kill: I("s_mov_b32 s22, 0")
    I("s_waitcnt lgkmcnt(0)")
    if stamps: I("s_memrealtime s[54:55]\ns_memtime s[64:65]")
    XOP = X + 8; Y = X
    s1n = [0]
    def s1_at(n):
        while s1n[0] < 4 and (S1POS is None or S1POS[s1n[0]] <= n):
            s1load(s1n[0]); s1n[0] += 1
    g.vm(f"buffer_load_dwordx2 {r2(XOP)}, v{T+3}, s[24:27], s69 offen", "xop")
    def epf():
        if EWO:
            I(f"""
            s_lshl_b32 s18, s79, 13
            s_mov_b32 s19, 0x20000
            s_lshl_b32 s56, s44, 3
            s_add_u32 s56, s56, s3
            s_mul_i32 s55, s56, 768
            s_lshl_b32 s87, s78, 13
            s_add_u32 s55, s55, s87
            """)
        else:
            I(f"""
            s_mov_b32 s14, 0x400000
            s_mov_b32 s15, 0x20000
            s_lshl_b32 s18, s79, 13
            s_mov_b32 s19, 0x20000
            s_lshl_b32 s56, s44, 3
            s_add_u32 s56, s56, s3
            s_mul_i32 s55, s56, 768
            s_lshl_b32 s56, s56, 11
            s_lshl_b32 s87, s45, 17
            s_add_u32 s56, s56, s87
            s_lshl_b32 s87, s78, 13
            s_add_u32 s55, s55, s87
            v_lshlrev_b32 v123, 3, v{V_L16}
            s_mov_b64 exec, 0xffff
            """)
            g.vm(f"buffer_load_dword v{S+1}, v123, s[12:15], s56 offen {PP}", "pfo")
        I("s_mov_b64 exec, 63")
        g.vm(f"buffer_load_dword v{S+2}, v123, s[16:19], s55 offen {PP}", "pf2")
        if XPF:
            I(f"""
            s_mov_b32 s30, {WS_BYTES}
            s_mov_b32 s31, 0x20000
            s_lshl_b32 s55, s44, 3
            s_add_u32 s55, s55, s3
            s_lshl_b32 s55, s55, 8
            s_lshl_b32 s87, s45, 15
            s_add_u32 s55, s55, s87
            s_mov_b64 exec, 3
            """)
            g.vm(f"buffer_load_dword v{S+3}, v123, s[28:31], s55 offen {PP}", "pfx")
        I("s_mov_b64 exec, -1")
    if EPF == 2: epf()
    s1_at(FAST - 1)
    if EPF == 1: epf()
    D0 = max(PAT[0] if PAT else D, FAST) if DZ is None else DZ
    for n in range(FAST, D0):
        kload(n); s1_at(n)
    if EPF == 3: epf()
    I(f"""
    s_load_dwordx2 s[8:9], s[0:1], 16
    {"" if EPF else "s_load_dwordx2 s[12:13], s[0:1], 32"}
    {"" if EPF else "s_load_dwordx2 s[16:17], s[0:1], 64"}
    s_load_dwordx2 s[32:33], s[0:1], 88
    s_load_dwordx2 s[36:37], s[0:1], 80
    s_load_dwordx2 s[40:41], s[0:1], 72
    s_lshl_b32 s81, s45, 15
    s_lshl_b32 s87, s3, 7                 ; 128 w
    s_add_u32 s99, s81, 0x4000
    s_lshl_b32 s88, s44, 7
    s_add_u32 s100, s99, s88
    s_add_u32 s99, s99, s87
    s_waitcnt lgkmcnt(0)
    s_load_dword s98, s[28:29], s100
    s_load_dword s85, s[28:29], s99
    {"" if (EPF and XPF) else f"s_mov_b32 s30, {WS_BYTES}"}
    {"" if (EPF and XPF) else "s_mov_b32 s31, 0x20000"}
    s_brev_b32 s10, 8
    s_mov_b32 s11, 0x20000
    {"" if EPF else "s_mov_b32 s14, 0x400000"}
    {"" if EPF else "s_mov_b32 s15, 0x20000"}
    {"" if EPF else "s_lshl_b32 s18, s79, 13"}
    {"" if EPF else "s_mov_b32 s19, 0x20000"}
    s_movk_i32 s34, 256
    s_mov_b32 s35, 0x20000
    s_movk_i32 s38, 8192
    s_mov_b32 s39, 0x20000
    s_movk_i32 s42, 1024
    s_mov_b32 s43, 0x20000
    s_cmp_lg_u32 s3, {GW}
    s_cbranch_scc1 L_nogl
    s_lshl_b32 s88, s44, 10
    buffer_load_dwordx4 {r4(AOP)}, v{V_L16}, s[24:27], s88 offen
    buffer_load_dwordx4 {r4(AOP+4)}, v{V_L16}, s[40:43], 0 offen
    """)
    g.label("L_nogl")
    g.q.append(("gmark", None))
    g.q.pop()
    gate_after = len(g.q)
    I(f"""
    s_mov_b32 s46, 0x05040100
    s_mov_b32 s47, 0x07060302
    s_movk_i32 s84, 16384
    s_mov_b32 s93, {f2u(1.4426950408889634):#x}
    s_mov_b32 s94, {f2u(128 ** -0.5):#x}
    s_mov_b32 s95, 0xffff0000
    s_lshl_b32 s89, s78, 13
    s_add_u32 s89, s89, s87
    v_lshl_add_u32 v{V_W2}, v{T+1}, 10, v{V_I16}
    v_add_u32 v{V_W2}, s89, v{V_W2}
    s_lshl_b32 s89, s45, 17
    s_add_u32 s89, s89, s87
    v_add_u32 v{V_WO}, s89, v{V_I16}
    v_bfe_u32 v{V_T0}, v0, 4, 2
    v_lshl_add_u32 v{V_WO}, v{V_T0}, 12, v{V_WO}
    v_bfe_u32 v{V_T1}, v0, 3, 1
    v_lshl_add_u32 v{V_WO}, v{V_T1}, 10, v{V_WO}
    v_lshl_add_u32 v{V_XL}, v{T}, 11, v{V_I16}
    v_and_b32 v{V_T1}, 1, v0
    v_lshl_add_u32 v{V_T1}, v{V_T0}, 1, v{V_T1}
    v_lshlrev_b32 v{V_LH}, 2, v{V_T1}                ; (2g + kh)*4
    s_lshl_b32 s89, s44, 11
    s_add_u32 s80, s81, s89
    s_lshl_b32 s89, s3, 8
    s_add_u32 s80, s80, s89
    s_lshl_b32 s89, s44, 8
    s_add_u32 s81, s81, s89
    s_and_b32 s89, s87, 128
    s_add_u32 s81, s81, s89
    {"" if BS else "s_lshl_b32 s82, s44, 12"}
    {"" if BS else f"s_add_u32 s82, s82, {ACC_OFF}"}
    s_lshr_b32 s101, s2, 3
    s_lshl_b32 s101, s101, 3
    s_add_u32 s101, s101, s3
    ; masks
    v_and_b32 v{V_T1}, 1, v0
    v_lshlrev_b32 v{V_T1}, 4, v{V_T1}
    v_mov_b32 v{V_T2}, 0xffff
    v_lshlrev_b32 v{V_T1}, v{V_T1}, v{V_T2}
    v_bfe_u32 v{V_T2}, v0, 1, 2
    """)
    fill = [f"v_mov_b32 v{ZERO}, 0\nv_mov_b32 v{ZERO+1}, 0", f"v_mov_b32 v{ZERO+2}, 0\nv_mov_b32 v{ZERO+3}, 0",
            f"v_mov_b32 v{F}, 1.0\nv_mov_b32 v{F+1}, 1.0", f"v_mov_b32 v{XU}, 0\nv_mov_b32 v{XU+1}, 0"]
    for r in range(4):
        I(f"v_cmp_eq_u32 vcc, {r}, v{V_T2}\n{fill[r]}\nv_cndmask_b32 v{MASK+r}, 0, v{V_T1}, vcc")
    if SL:
        I(f"""
        s_lshr_b32 s87, s70, 1
        s_xor_b32 s87, s87, 1
        s_mul_i32 s71, s87, {BU}
        s_sub_u32 s87, s78, s79
        s_add_u32 s87, s87, 6
        s_mul_i32 s87, s87, {BW}
        s_add_u32 s71, s71, s87
        """)
        if BQ:
            I(f"s_and_b32 s87, s2, 0x63\ns_cmp_eq_u32 s87, 0x21\ns_cselect_b32 s87, {BQ}, 0\ns_sub_u32 s71, s71, s87")
    if WIDE == 1:
        I(f"""
        v_and_b32 v{V_T1}, 0xf0, v{V_L16}
        v_bfe_u32 v{V_T2}, v0, 7, 2
        v_lshl_add_u32 v{V_T1}, v{V_T2}, 8, v{V_T1}
        v_bfe_u32 v{V_T2}, v0, 4, 2
        v_lshl_add_u32 v{V_T1}, v{V_T2}, 12, v{V_T1}
        v_bfe_u32 v{V_T2}, v0, 6, 1
        s_lshl_b32 s89, s45, 17
        v_lshl_add_u32 v{V_WO}, v{V_T2}, 10, v{V_T1}
        v_add_u32 v{V_WO}, s89, v{V_WO}
        s_lshl_b32 s89, s78, 13
        v_lshl_add_u32 v{V_W2}, v{V_T2}, 11, v{V_T1}
        v_add_u32 v{V_W2}, s89, v{V_W2}
        """)
    if WIDE == 2:
        I(f"""
        v_bfe_u32 v{V_T2}, v0, 7, 2
        v_lshl_add_u32 v{V_T1}, v{V_T2}, 12, v{V_L16}
        v_bfe_u32 v{V_T2}, v0, 6, 1
        s_lshl_b32 s89, s45, 17
        v_lshl_add_u32 v{V_WO}, v{V_T2}, 10, v{V_T1}
        v_add_u32 v{V_WO}, s89, v{V_WO}
        s_lshl_b32 s89, s78, 13
        v_lshl_add_u32 v{V_W2}, v{V_T2}, 11, v{V_T1}
        v_add_u32 v{V_W2}, s89, v{V_W2}
        """)
    if "o" in kill: I("s_mov_b32 s14, 0")
    if "2" in kill: I("s_mov_b32 s18, 0")
    if "x" in kill: I(f"s_mov_b32 s80, {WS_BYTES}\ns_mov_b32 s81, {WS_BYTES}")
    if BS:
        import math
        lb = int(math.log2(BS))
        I(f"""
        v_bfe_u32 v{V_C4}, v0, 4, 2
        v_and_b32 v{V_T1}, 15, v0
        v_lshlrev_b32 v{V_C4}, {lb}, v{V_C4}
        v_lshl_add_u32 v{V_C4}, v{V_T1}, 2, v{V_C4}
        s_lshr_b32 s88, s2, 3
        s_cmp_lg_u32 s88, {99 if ("z" in kill or ZE) else 1}
        s_cbranch_scc1 L_nozero
        s_and_b32 s88, s2, 7
        s_lshl_b32 s88, s88, 3
        s_add_u32 s88, s88, s3
        s_lshl_b32 s88, s88, {lb+3}
        s_add_u32 s88, s88, {ACC_OFF}
        buffer_store_dword v{ZERO}, v{V_C4}, s[28:31], s88 offen {ZPOL}
        buffer_store_dword v{ZERO}, v{V_C4}, s[28:31], s88 offen offset:{4*BS} {ZPOL}
        """)
        ZF = SYNC + 1
    else:
        I(f"""
        s_cmp_lg_u32 s101, {8+ZW}
        s_cbranch_scc1 L_nozero
        s_and_b32 s88, s2, 7
        s_lshl_b32 s88, s88, 12
        s_add_u32 s88, s88, {ACC_OFF}
        buffer_store_dwordx4 {r4(ZERO)}, v{V_L16}, s[28:31], s88 offen {ZPOL}
        buffer_store_dwordx4 {r4(ZERO)}, v{V_L16}, s[28:31], s88 offen offset:1024 {ZPOL}
        buffer_store_dwordx4 {r4(ZERO)}, v{V_L16}, s[28:31], s88 offen offset:2048 {ZPOL}
        buffer_store_dwordx4 {r4(ZERO)}, v{V_L16}, s[28:31], s88 offen offset:3072 {ZPOL}
        """)
    g.label("L_nozero")
    RSN = [123, 125]
    if RK:
        assert BS == 64
        if stamps: RSN[1] = 121 if False else 103
        I(f"""
        s_and_b32 s50, s2, 7
        s_lshl_b32 s50, s50, 3
        {"" if RWG else "s_add_u32 s50, s50, s3"}
        s_lshl_b32 s50, s50, 9
        s_add_u32 s50, s50, {2*1024*1024}
        s_lshr_b32 s49, s2, 3
        s_lshl_b32 s49, 1, s49
        """)
        if RWG: I(f"s_cmp_eq_u32 s3, 0\ns_cselect_b32 s50, s50, {WS_BYTES}")
        for k in range((len(RK) + 1) // 2):
            g.vm(f"buffer_load_dword v{RSN[k]}, v{V_C4}, s[28:31], s50 offen offset:{256*k}", f"rs{k}")
    if stamps:
        I(f"s_waitcnt lgkmcnt(0)\nv_mov_b32 v{V_ST}, 0\nv_writelane_b32 v{V_ST}, s60, 0\nv_writelane_b32 v{V_ST}, s58, 1\nv_writelane_b32 v{V_ST}, s54, 2")
    stamp("b0")

    W1FR = slot(20); W1ACC = slot(24)
    def stage1a():
        I(f"""
        s_lshl_b32 s87, s3, 9
        s_add_u32 s87, s87, {L_X}
        v_lshrrev_b32 v{A4}, 1, v{V_L16}
        v_add_u32 v{A4}, s87, v{A4}
        v_bfe_u32 v{A4+1}, v0, 1, 3
        v_lshl_add_u32 v{A4+1}, v{A4+1}, 6, v{V_LH}
        v_add_u32 v{A4+1}, s87, v{A4+1}
        """)
        if MLF or SYF or RWG:
            I(f"v_lshrrev_b32 v{A4+2}, 2, v{V_L16}\nv_and_b32 v{A4+2}, 0x7c, v{A4+2}\nds_write_b32 v{A4+2}, v{ZERO} offset:{L_ML}")
        g.wait("xop")
        I(f"""
        ds_write_b64 v{A4}, {r2(XOP)}
        ds_read2_b32 {r2(XOP)}, v{A4+1} offset0:0 offset1:8
        s_lshl_b32 s87, s3, 11
        v_lshl_add_u32 v{A4+2}, v{V_L16}, 1, s87
        """)
        for jj in range(2):
            g.wait(f"s1_{2*jj+1}")
            for q in range(4):
                for e in range(2):
                    I(f"v_perm_b32 v{W1FR+2*(2*q+e)+jj}, v{STG+4*(2*jj+1)+q}, v{STG+4*(2*jj)+q}, s{46+e}")
        I("s_waitcnt lgkmcnt(0)")
        for c in range(8):
            I(f"v_mfma_f32_16x16x16_bf16 {r4(W1ACC+4*c)}, {r2(XOP)}, {r2(W1FR+2*c)}, 0")
        for c in range(8):
            a = W1ACC + 4 * c
            I(f"v_add_f32_dpp v{Y+c}, v{a+1}, v{a} row_ror:8 row_mask:0xf bank_mask:0x3")
        for c in range(8):
            a = W1ACC + 4 * c
            I(f"v_add_f32_dpp v{Y+c}, v{a+2}, v{a+3} row_ror:8 row_mask:0xf bank_mask:0xc")
        I(f"""
        ds_write_b128 v{A4+2}, {r4(Y)} offset:{L_P}
        ds_write_b128 v{A4+2}, {r4(Y+4)} offset:{L_P+16}
        s_getreg_b32 s92, hwreg(HW_REG_XCC_ID, 0, 3)
        s_add_u32 s98, s98, 0x08010101
        s_add_u32 s85, s85, 0x08010101
        s_lshl_b32 s92, s92, 24
        s_and_b32 s73, s98, 0xf8ffffff
        s_or_b32 s73, s73, s92
        s_and_b32 s85, s85, 0xf8ffffff
        s_or_b32 s85, s85, s92
        v_and_b32 v{A4}, 0xf0, v{V_L16}
        v_bfe_u32 v{A4+1}, v0, 4, 2
        s_lshl_b32 s87, s3, 8
        v_lshl_add_u32 v{A4+1}, v{A4+1}, 11, v{A4}
        v_add_u32 v{A4+1}, s87, v{A4+1}
        v_bfe_u32 v{A4+2}, v0, 4, 1
        v_bfe_u32 v{A4+3}, v0, 5, 1
        v_lshl_add_u32 v{A4+2}, v{A4+2}, 1, v{A4+3} ; c4 = 2(g&1) + (g>>1)
        v_lshl_add_u32 v{A4}, v{A4+2}, 2, v{A4}
        v_lshlrev_b32 v{A4+2}, 3, v{A4+2}
        v_lshrrev_b32 v{A4+2}, v{A4+2}, s85
        s_movk_i32 s88, 0xff
        """)
    def stage1b():
        I(f"""
        s_waitcnt lgkmcnt(0)
        s_barrier
        ds_read_b128 {r4(Y)}, v{A4+1} offset:{L_P}
        ds_read_b128 {r4(Y+4)}, v{A4+1} offset:{L_P+8192}
        s_waitcnt lgkmcnt(0)
        v_pk_add_f32 {r2(Y)}, {r2(Y)}, {r2(Y+4)}
        v_pk_add_f32 {r2(Y+2)}, {r2(Y+2)}, {r2(Y+6)}
        v_permlane32_swap_b32 v{Y}, v{Y+1}
        v_permlane32_swap_b32 v{Y+2}, v{Y+3}
        v_add_f32 v{Y}, v{Y}, v{Y+1}
        v_add_f32 v{Y+2}, v{Y+2}, v{Y+3}
        v_permlane16_swap_b32 v{Y}, v{Y+2}
        v_add_f32 v{Y}, v{Y}, v{Y+2}
        v_bfi_b32 v{Y}, s88, v{A4+2}, v{Y}
        """)
        g.vm(f"buffer_store_dword v{Y}, v{A4}, s[28:31], s80 offen", "ex0")
        if XWB: I(f"v_mov_b32 v123, v{Y}\nv_mov_b32 v{V_S1+1}, v{A4}\ns_mov_b32 s66, s98")
        stamp("s1done")

    def allred(v, t, op):
        I(f"""
        {op}_dpp v{v}, v{v}, v{v} row_ror:4 {DPPF}
        {op}_dpp v{v}, v{v}, v{v} row_ror:8 {DPPF}
        v_mov_b32 v{t}, v{v}
        v_permlane16_swap_b32 v{v}, v{t}
        {op} v{v}, v{v}, v{t}
        v_mov_b32 v{t}, v{v}
        v_permlane32_swap_b32 v{v}, v{t}
        {op} v{v}, v{v}, v{t}
        """)

    def gate():
        a, b, c, d = ACC0, ACC0 + 1, ACC0 + 2, ACC0 + 3
        I(f"s_cmp_lg_u32 s3, {GW}\ns_cbranch_scc1 L_nogate")
        for q in range(4):
            I(f"""
            v_lshlrev_b32 v{a}, 16, v{AOP+q}
            v_and_b32 v{b}, s95, v{AOP+q}
            v_lshlrev_b32 v{c}, 16, v{AOP+4+q}
            v_and_b32 v{d}, s95, v{AOP+4+q}
            v_mul_f32 v{a}, v{a}, v{c}
            v_mul_f32 v{b}, v{b}, v{d}
            v_cvt_pk_bf16_f32 v{AOP+q}, v{a}, v{b}
            """)
        I(f"""
        v_mov_b32 v{a}, 0
        v_mov_b32 v{b}, 0x3f803f80
        v_dot2c_f32_bf16 v{a}, v{AOP}, v{b}
        v_dot2c_f32_bf16 v{a}, v{AOP+1}, v{b}
        v_dot2c_f32_bf16 v{a}, v{AOP+2}, v{b}
        v_dot2c_f32_bf16 v{a}, v{AOP+3}, v{b}
        v_add_f32_dpp v{a}, v{a}, v{a} quad_perm:[1,0,3,2] {DPPF}
        v_add_f32_dpp v{a}, v{a}, v{a} quad_perm:[2,3,0,1] {DPPF}
        """)
        allred(a, b, "v_add_f32")
        I(f"""
        v_cvt_pk_bf16_f32 v{a}, v{a}, v{a}
        v_and_b32 v{a}, s95, v{a}
        v_mul_f32 v{a}, s93, v{a}
        v_exp_f32 v{a}, -v{a}
        v_add_f32 v{a}, 1.0, v{a}
        v_rcp_f32 v{a}, v{a}
        v_cvt_pk_bf16_f32 v{a}, v{a}, v{a}
        v_and_b32 v{a}, s95, v{a}
        v_sub_f32 v{b}, 1.0, v{a}
        v_cvt_pk_bf16_f32 v{b}, v{b}, v{b}
        v_and_b32 v{b}, s95, v{b}
        ds_write_b64 v{ZERO}, {r2(a)} offset:{L_G}
        """)
        g.label("L_nogate")

    PX = X + 4
    def consumer():
        I(f"""
        v_bfe_u32 v{X}, v0, 3, 2
        v_lshrrev_b32 v{X+1}, 1, v{V_I16}
        v_lshl_add_u32 v{X}, v{X}, 7, v{X+1}
        v_bfe_u32 v{X+1}, v0, 5, 1
        v_lshl_add_u32 v{X}, v{X+1}, 2, v{X}
        v_and_b32 v{X+1}, 64, v0
        v_add_u32 v{X}, v{X+1}, v{X}
        s_mov_b32 s92, {0 if "x" in kill else 200000}
        s_mov_b32 s88, 0x0c0c0400
        s_mov_b32 s89, 0x04000c0c
        s_mov_b32 s90, -1
        s_movk_i32 s91, 0xff00
        """)
        g.wait("px")
        g.label("L_poll")
        I(f"""
        v_perm_b32 v{X+2}, v{PX+1}, v{PX}, s88
        v_perm_b32 v{X+3}, v{PX+3}, v{PX+2}, s89
        v_or_b32 v{X+2}, v{X+2}, v{X+3}
        v_xor_b32 v{X+2}, s73, v{X+2}
        v_and_b32 v{X+2}, s90, v{X+2}
        v_cmp_ne_u32 vcc, 0, v{X+2}
        s_cbranch_vccz L_polled
        s_sub_u32 s92, s92, 1
        s_cbranch_scc1 L_polled
        s_cmp_gt_u32 s92, {200000 - 5}
        s_cbranch_scc1 L_reload
        s_cmp_eq_u32 s90, -1
        s_cbranch_scc0 L_flushed
        s_mov_b32 s90, 0xf8ffffff
        s_waitcnt vmcnt(0)
        buffer_wbl2 sc1
        s_waitcnt vmcnt(0)""")
        g.label("L_flushed")
        I("buffer_inv sc1")
        g.label("L_reload")
        I(f"""
        buffer_load_dwordx4 {r4(PX)}, v{V_XL}, s[28:31], s81 offen sc1
        s_waitcnt vmcnt(0)
        s_branch L_poll""")
        g.label("L_polled")
        stamp("x2")
        if stamps: I(f"s_sub_u32 s96, 200000, s92\nv_writelane_b32 v{V_ST}, s96, 1")
        a, b, e0, e1 = X + 8, X + 9, X + 10, X + 11
        I(f"""
        v_and_b32 v{PX}, s91, v{PX}
        v_and_b32 v{PX+2}, s91, v{PX+2}
        v_and_b32 v{PX+1}, s91, v{PX+1}
        v_and_b32 v{PX+3}, s91, v{PX+3}
        v_permlane32_swap_b32 v{PX}, v{PX+2}
        v_permlane32_swap_b32 v{PX+1}, v{PX+3}
        v_add_f32 v{PX}, v{PX}, v{PX+2}
        v_add_f32 v{PX+1}, v{PX+1}, v{PX+3}
        v_cvt_pk_bf16_f32 v{PX}, v{PX}, v{PX+1}
        v_lshlrev_b32 v{a}, 16, v{PX}
        v_and_b32 v{b}, s95, v{PX}
        v_mul_f32 v{e0}, s93, v{a}
        v_mul_f32 v{e1}, s93, v{b}
        v_exp_f32 v{e0}, -v{e0}
        v_exp_f32 v{e1}, -v{e1}
        v_add_f32 v{e0}, 1.0, v{e0}
        v_add_f32 v{e1}, 1.0, v{e1}
        v_rcp_f32 v{e0}, v{e0}
        v_rcp_f32 v{e1}, v{e1}
        v_mul_f32 v{e0}, v{e0}, v{a}
        v_mul_f32 v{e1}, v{e1}, v{b}
        v_cvt_pk_bf16_f32 v{e1}, v{e0}, v{e1}
        v_lshlrev_b32 v{e0}, 16, v{e1}
        v_and_b32 v{e1}, s95, v{e1}
        v_mul_f32_dpp v{e0}, v{a}, v{e0} row_ror:8 {DPPF}
        v_mul_f32_dpp v{e1}, v{b}, v{e1} row_ror:8 {DPPF}
        v_cvt_pk_bf16_f32 v{e0}, v{e0}, v{e1}
        v_mov_b32_dpp v{PX}, v{e0} quad_perm:[0,1,2,3] row_mask:0xa bank_mask:0xf
        ds_write_b32 v{X}, v{PX} offset:{L_Q}
        """)
        if XWB: I(f"v_mov_b32 v{V_XL}, v{V_S1+1}")
        if SYF:
            assert gate_done
            I(f"s_lshl_b32 s88, s3, 2\nv_mov_b32 v{X+1}, s88\nv_mov_b32 v{X+2}, 1\nds_write_b32 v{X+1}, v{X+2} offset:{L_F}")

    kgroups_done = [0]
    def consume_group(k):
        s0 = 4 * k
        for i in range(4):
            I(f"v_dot2_f32_bf16 v{A4+i}, v{slot(s0+i)}, v{Q}, 0")
        for q in range(1, 4):
            for i in (range(4) if q < 3 else (0, 2, 1, 3)):
                I(f"v_dot2c_f32_bf16 v{A4+i}, v{slot(s0+i)+q}, v{Q+q}")
        I(f"""
        v_add_f32_dpp v{TT}, v{A4}, v{A4} row_ror:8 row_mask:0xf bank_mask:0x3
        v_add_f32_dpp v{TT+1}, v{A4+2}, v{A4+2} row_ror:8 row_mask:0xf bank_mask:0x3
        v_add_f32_dpp v{TT}, v{A4+1}, v{A4+1} row_ror:8 row_mask:0xf bank_mask:0xc
        v_add_f32_dpp v{TT+1}, v{A4+3}, v{A4+3} row_ror:8 row_mask:0xf bank_mask:0xc
        v_add_f32_dpp v{S+k}, v{TT}, v{TT} row_half_mirror row_mask:0xf bank_mask:0x5
        v_add_f32_dpp v{S+k}, v{TT+1}, v{TT+1} row_half_mirror row_mask:0xf bank_mask:0xa
        v_add_f32_dpp v{S+k}, v{S+k}, v{S+k} quad_perm:[1,0,3,2] {DPPF}
        v_add_f32_dpp v{S+k}, v{S+k}, v{S+k} quad_perm:[2,3,0,1] {DPPF}
        """)
        if k % 2 == 1:
            a, b = S + k - 1, S + k
            I(f"""
            v_cvt_pk_bf16_f32 v{TT}, v{a}, v{b}
            v_lshlrev_b32 v{a}, 16, v{TT}
            v_and_b32 v{b}, s95, v{TT}
            v_mul_f32 v{a}, s94, v{a}
            v_mul_f32 v{b}, s94, v{b}
            v_cvt_pk_bf16_f32 v{TT}, v{a}, v{b}
            v_lshlrev_b32 v{a}, 16, v{TT}
            v_and_b32 v{b}, s95, v{TT}
            """)
        kgroups_done[0] = k + 1

    def softmax1():
        m = TT
        I(f"""
        v_max3_f32 v{m}, v{S}, v{S+1}, v{S+2}
        v_max3_f32 v{m}, v{m}, v{S+3}, v{S+4}
        v_max3_f32 v{m}, v{m}, v{S+5}, v{S+6}
        v_max_f32 v{m}, v{m}, v{S+7}
        """)
        allred(m, A4, "v_max_f32")
        I(f"v_mul_f32 v{m}, s93, v{m}")
        for k in range(8):
            I(f"v_fma_f32 v{S+k}, v{S+k}, s93, -v{m}")
    def softmax2():
        for k in range(8):
            I(f"v_exp_f32 v{S+k}, v{S+k}")
        l = TT + 1
        I(f"v_add_f32 v{l}, v{S}, v{S+1}")
        for k in range(2, 8):
            I(f"v_add_f32 v{l}, v{l}, v{S+k}")
        for k in range(8):
            I(f"v_cvt_pk_bf16_f32 v{S+k}, v{S+k}, v{S+k}")
    def softmax3():
        allred(TT + 1, A4, "v_add_f32")
        I(f"""
        s_lshl_b32 s88, s3, 3
        v_mov_b32 v{A4}, s88
        v_mov_b32 v{V_MC}, v{TT}
        ds_write_b64 v{A4}, {r2(TT)} offset:{L_ML}
        s_lshl_b32 s99, s44, 5
        s_load_dword s98, s[32:33], s99
        """)

    def ffn_mm(q):
        if q == 0: I(f"v_mov_b32 v{X+3}, 0\nv_mov_b32 v{X+7}, 0")
        for e in range(2):
            for jj in range(3):
                I(f"v_perm_b32 v{X+4*e+jj}, v{W2R+4*(2*jj+1)+q}, v{W2R+4*(2*jj)+q}, s{46+e}")
        for e in range(2):
            I(f"v_mfma_f32_16x16x32_bf16 {r4(X+8+4*e)}, {r4(T)}, {r4(X+4*e)}, 0")
    def ffn_fold(q):
        for e in range(2):
            c = 2 * q + e
            a = X + 8 + 4 * e
            I(f"v_add_f32_dpp v{F+c//4}, v{a+1}, v{a} row_ror:8 row_mask:{1 << (c%4):#x} bank_mask:0x3")
        if q == 3:
            for u in range(2):
                I(f"v_mul_f32_dpp v{F+u}, v{F+u}, v{V_G+1} quad_perm:[0,1,2,3] row_mask:0xf bank_mask:0x3")

    def build_a(t):
        k, half = t // 2, t % 2
        for r in range(4):
            mir = (r >= 2) != (half == 1)
            d = AOP + 4 * (t % 2) + r
            if mir: I(f"v_and_b32_dpp v{d}, v{S+k}, v{MASK+r} row_half_mirror {DPPF}")
            else: I(f"v_and_b32 v{d}, v{S+k}, v{MASK+r}")

    vdone = [0]
    def pv(n):
        t = n // 2
        acc = ACC0 if n % 2 == 0 else ACC1
        c = "0" if n < 2 else r4(acc)
        I(f"v_mfma_f32_16x16x32_bf16 {r4(acc)}, {r4(AOP+4*(t%2))}, {r4(slot(n%8))}, {c}")
        vdone[0] = n + 1
        if n % 2 == 1 and t + 2 < 16: build_a(t + 2)

    wopairs = [0]
    def wo_perm(p):
        grp, jj = p // 4, p % 4
        a, b = stage(2 * p), stage(2 * p + 1)
        for q in range(4):
            for e in range(2):
                I(f"v_perm_b32 v{slot(8)+32*grp+4*(2*q+e)+jj}, v{b+q}, v{a+q}, s{46+e}")
        wopairs[0] = p + 1

    def ml_issue():
        I(f"""
        v_and_b32 v{A4+3}, 7, v0
        v_lshlrev_b32 v{A4+3}, 3, v{A4+3}
        s_waitcnt lgkmcnt(0)
        {"" if MLF else "s_barrier"}
        ds_read_b64 {r2(A4)}, v{A4+3} offset:{L_ML}
        s_cmp_eq_u32 s98, 1
        s_cbranch_scc1 L_zok
        s_mov_b32 s92, 200000
        v_mov_b32 v{TT}, 0
        s_mov_b64 exec, 1""")
        g.label("L_zpoll")
        I(f"""
        buffer_load_dword v{TT+1}, v{TT}, s[32:35], s99 offen sc1
        s_waitcnt vmcnt(0)
        v_cmp_eq_u32 vcc, 1, v{TT+1}
        s_cbranch_vccnz L_zdone
        s_sub_u32 s92, s92, 1
        s_cbranch_scc0 L_zpoll""")
        g.label("L_zdone")
        I("s_mov_b64 exec, -1")
        g.label("L_zok")
    def ml_combine():
        if MLF:
            g.label("L_ml")
            I(f"""
            s_waitcnt lgkmcnt(0)
            v_cmp_eq_u32 vcc, 0, v{A4+1}
            s_cbranch_vccz L_mlok
            ds_read_b64 {r2(A4)}, v{A4+3} offset:{L_ML}
            s_branch L_ml""")
            g.label("L_mlok")
        I(f"""
        s_waitcnt lgkmcnt(0)
        v_max_f32_dpp v{A4+2}, v{A4}, v{A4} quad_perm:[1,0,3,2] {DPPF}
        v_lshrrev_b32 v{V_T2}, 2, v{V_L16}
        s_mul_i32 s88, s3, 288
        v_max_f32_dpp v{A4+2}, v{A4+2}, v{A4+2} quad_perm:[2,3,0,1] {DPPF}
        v_and_b32 v{V_T0}, 32, v0
        v_bfe_u32 v{V_T1}, v0, 1, 3
        v_max_f32_dpp v{A4+2}, v{A4+2}, v{A4+2} row_half_mirror {DPPF}
        v_sub_f32 v{A4}, v{A4}, v{A4+2}
        v_sub_f32 v{V_MC}, v{V_MC}, v{A4+2}
        v_exp_f32 v{A4}, v{A4}
        v_exp_f32 v{V_MC}, v{V_MC}
        v_mul_f32 v{A4}, v{A4}, v{A4+1}
        v_mul_f32 v{V_MC}, v{V_MC}, v{V_G}
        v_mul_u32_u24 v{V_T1}, 288, v{V_T1}
        v_add_f32_dpp v{A4}, v{A4}, v{A4} quad_perm:[1,0,3,2] {DPPF}
        v_and_b32 v{A4+1}, 1, v0
        v_lshl_add_u32 v{V_T1}, v{A4+1}, 7, v{V_T1}
        v_add_f32_dpp v{A4}, v{A4}, v{A4} quad_perm:[2,3,0,1] {DPPF}
        v_lshl_add_u32 v{V_T0}, v{A4+1}, 3, v{V_T0}
        v_and_b32 v{A4+1}, 48, v0
        v_add_f32_dpp v{A4}, v{A4}, v{A4} row_half_mirror {DPPF}
        v_add_u32 v{V_T1}, v{A4+1}, v{V_T1}
        v_rcp_f32 v{A4}, v{A4}
        v_and_b32 v{V_W2}, 0xf0, v{V_L16}
        v_mul_f32 v{V_FAC}, v{V_MC}, v{A4}
        v_bfe_u32 v{A4+1}, v0, 4, 2
        v_lshl_add_u32 v{V_W2}, v{A4+1}, 1, v{V_W2}
        v_bfe_u32 v{A4+2}, v0, 3, 1
        v_lshl_add_u32 v{V_T0}, v{A4+2}, 4, v{V_T0}
        v_bfe_u32 v{A4+2}, v0, 4, 1
        v_lshl_add_u32 v{V_T0}, v{A4+2}, 2, v{V_T0}
        v_bfe_u32 v{A4+2}, v0, 1, 2
        v_add_u32 v{V_T0}, v{A4+2}, v{V_T0}
        v_lshl_add_u32 v{V_T0}, v{V_T0}, 2, s88
        {"" if BS else "s_lshl_b32 s88, s3, 9"}
        {"" if BS else "s_add_u32 s82, s82, s88"}
        s_lshl_b32 s72, s44, 10
        s_lshl_b32 s88, s3, 7
        s_add_u32 s72, s72, s88
        """)
        if BS:
            I(f"s_lshl_b32 s82, s44, 3\ns_add_u32 s82, s82, s3\ns_lshl_b32 s82, s82, {lb+3}\ns_add_u32 s82, s82, {ACC_OFF}")
        if "a" in kill: I(f"s_mov_b32 s82, {WS_BYTES}")

    def kvtag(i): return f"k{i}" if i < 32 else f"v{i-32}"
    L_RK = L_F + 32
    rkmark = {}
    def rk_at(i):
        for c, p in enumerate(RK):
            t0, t1 = (ACC1, ACC1 + 1) if p + 6 < 32 else (V_XL, V_I16)
            assert p + 6 < 32 or p > POLL + PW
            if i == p:
                assert g.is_done(f"rs{c//2}")
                if RWG: I(f"s_cmp_lg_u32 s3, 0\ns_cbranch_scc1 L_rka{c}")
                I(f"v_add_u32 v{t0}, 1, v{RSN[c//2]}")
                I("s_mov_b32 exec_lo, s49\ns_mov_b32 exec_hi, 0" if c % 2 == 0 else "s_mov_b32 exec_lo, 0\ns_mov_b32 exec_hi, s49")
                st = f"buffer_store_dword v{t0}, v{V_C4}, s[28:31], s50 offen offset:{256*(c//2)}"
                ld = f"buffer_load_dword v{t1}, v{V_C4}, s[28:31], s50 offen offset:{256*(c//2)} sc1"
                if RWG: I(st)
                else: g.vm(st, f"rw{c}")
                I("s_mov_b32 exec_lo, -1\ns_mov_b32 exec_hi, 0" if c % 2 == 0 else "s_mov_b32 exec_lo, 0\ns_mov_b32 exec_hi, -1")
                if RWG: I(ld)
                else: g.vm(ld, f"rl{c}")
                I("s_mov_b64 exec, -1")
                if RWG:
                    g.label(f"L_rka{c}")
                    rkmark[c] = len(g.q)
            if i == p + 4:
                if RWG:
                    assert g.done['A'] > rkmark[c]
                    I(f"s_cmp_lg_u32 s3, 0\ns_cbranch_scc1 L_rkb{c}")
                else:
                    g.wait(f"rl{c}")
                I(f"""
                v_cmp_ne_u32 vcc, v{t1}, v{RSN[c//2]}
                s_bcnt1_i32_b32 s48, {"vcc_lo" if c % 2 == 0 else "vcc_hi"}
                s_sub_i32 s48, {RR0}, s48
                s_max_i32 s48, s48, 0
                s_mul_i32 s48, s48, {RG}
                s_lshr_b32 s48, s48, 3
                """)
                if RWG:
                    I(f"v_mov_b32 v{t0}, s48\nv_mov_b32 v{t1}, 0\nds_write_b32 v{t1}, v{t0} offset:{L_RK+4*c}")
                    g.label(f"L_rkb{c}")
            if RWG and i == p + 5:
                I(f"v_mov_b32 v{t1}, 0\nds_read_b32 v{t0}, v{t1} offset:{L_RK+4*c}")
            if RWG and i == p + 6:
                I(f"s_waitcnt lgkmcnt(0)\nv_readfirstlane_b32 s48, v{t0}")
    nth = [0]
    def throttle(i, isw=False):
        throttle1(i, isw)
        if isw: return
        for p in RK:
            RL = 7 if RWG else 5
            if p + RL <= i < p + RL + RM:
                saved = dict(g.done)
                nth[0] += 1
                I(f"s_cmp_le_u32 s48, {i - p - RL}\ns_cbranch_scc1 L_th{nth[0]}")
                g.wait(kvtag(i - 2))
                g.label(f"L_th{nth[0]}")
                g.done = saved
    def throttle1(i, isw=False):
        p = PAT if (i < 32 or PATV is None) else PATV
        if p is None or p == "D":
            g.waitn(D - 1)
        elif not isw:
            d = p[i % len(p)]
            for last in (S1C + 1, SYNC - 1, 32 + B2AT - 1):
                if last - PRE < i <= last: d += PRE - (last - i)
            if PEND and i >= PEND[0]: d = PEND[1]
            if i - d >= 0: g.wait(kvtag(i - d))
        if SL and not isw and B0 <= i < B0 + BU + BW:
            saved = dict(g.done)
            nth[0] += 1
            I(f"s_cmp_le_u32 s71, {i - B0}\ns_cbranch_scc1 L_th{nth[0]}")
            g.wait(kvtag(i - SL))
            g.label(f"L_th{nth[0]}")
            g.done = saved
    vpn = [0]
    def vpf_at(i):
        if VPF2 is not None and i == VPF2:
            I(f"""
            s_lshl_b32 s56, s44, 3
            s_add_u32 s56, s56, s3
            s_mul_i32 s56, s56, 768
            s_lshl_b32 s55, s78, 13
            s_add_u32 s56, s56, s55
            v_lshlrev_b32 v123, 3, v{V_L16}
            s_mov_b64 exec, 63
            buffer_load_dword v{S+1}, v123, s[16:19], s56 offen
            s_mov_b64 exec, -1
            """)
        while VPF and vpn[0] < len(VPF) and i == VPF[vpn[0]]:
            per = 16 // len(VPF)
            I(f"""
            s_lshl_b32 s56, s44, 3
            s_add_u32 s56, s56, s3
            s_mul_i32 s56, s56, {per*128}
            s_lshl_b32 s51, s45, 17
            s_add_u32 s56, s56, s51
            s_add_u32 s56, s56, {vpn[0] * (131072 // len(VPF))}
            v_lshlrev_b32 v123, 3, v{V_L16}
            s_mov_b64 exec, {(1 << per) - 1}
            buffer_load_dword v123, v123, s[48:51], s56 offen
            s_mov_b64 exec, -1
            """.replace("s51", "s55").replace("s[48:55]", "s[48:51]"))
            vpn[0] += 1
    if VPF:
        I("s_mov_b32 s48, s12\ns_mov_b32 s49, s13\ns_mov_b32 s50, 0x400000\ns_mov_b32 s51, 0x20000")
    vpf_at(-1)
    spn = [0]
    def spf_at(i):
        if SPF and spn[0] < 8 and i == SPF[spn[0]]:
            while spn[0] < 8 and i == SPF[spn[0]]:
                p = spn[0]
                if p == 0:
                    I("s_lshl_b32 s56, s44, 3\ns_add_u32 s56, s56, s3\ns_lshl_b32 s56, s56, 8\ns_lshl_b32 s51, s45, 17\ns_add_u32 s56, s56, s51")
                else:
                    I("s_add_u32 s56, s56, s84")
                step = 128 // SPFW
                for k in range(2 * SPFW):
                    if k == 0: I(f"s_load_dword s48, s[12:13], s56 {SPFX}")
                    else: I(f"s_add_u32 s51, s56, {k*step}\ns_load_dword s48, s[12:13], s51 {SPFX}")
                spn[0] += 1
    def sync_reads():
        if SYF: I(f"ds_read_b32 v{X+2}, v{X+1} offset:{L_F}")
        I(f"""
        ds_read_b128 {r4(Q)}, v{V_T0} offset:{L_Q}
        ds_read2_b32 {r2(T)}, v{V_LH} offset0:0 offset1:8
        ds_read2_b32 {r2(T+2)}, v{V_LH} offset0:16 offset1:24
        ds_read_b64 {r2(V_G)}, v{ZERO} offset:{L_G}
        """)
    w2n = 0; won = 0
    synced = False; gate_done = False
    for n in range(D0, 32):
        if n == ZF:
            I(f"""
            s_cmp_lg_u32 s101, {8+ZW}
            s_cbranch_scc1 L_noflag
            v_mov_b32 v{X+1}, 1
            s_and_b32 s86, s2, 7
            s_lshl_b32 s86, s86, 5
            s_mov_b64 exec, 1
            buffer_store_dword v{X+1}, v{ZERO}, s[32:35], s86 offen sc1
            s_mov_b64 exec, -1
            """)
            g.label("L_noflag")
        if n == SYNC:
            stamp("sync")
            I(f"""
            v_and_b32 v{V_T0}, 0xf0, v{V_L16}
            v_add_u32 v{V_LH}, {L_H}, v{V_LH}
            """)
            if SYF: I(f"v_lshrrev_b32 v{X+1}, 2, v{V_I16}")
            else: I("s_waitcnt lgkmcnt(0)\ns_barrier")
            sync_reads()
        throttle(n)
        if n in KST: stamp(f"t{n}")
        kload(n)
        spf_at(n); vpf_at(n); rk_at(n)
        if INV == n:
            I(f"s_cmp_lg_u32 s3, 7\ns_cbranch_scc1 L_noinv\nbuffer_inv {INVP}")
            g.label("L_noinv")
        s1_at(n)
        if n == S1C:
            assert n < 19
            stage1a()
        if n == S1C + 1: stage1b()
        if n == POLL:
            g.vm(f"buffer_load_dwordx4 {r4(PX)}, v{V_XL}, s[28:31], s81 offen {XL}", "px")
        if n == POLL + PW:
            assert n < SYNC
            consumer()
        if n == SYNC:
            if SYF:
                g.label("L_sy")
                I(f"s_waitcnt lgkmcnt(0)\nv_cmp_eq_u32 vcc, 0, v{X+2}\ns_cbranch_vccz L_syok")
                sync_reads()
                I("s_branch L_sy")
                g.label("L_syok")
            I(f"""
            s_cmp_lg_u32 s3, {9 if ("p" in kill or XWB) else 0}
            s_cbranch_scc1 L_nobump
            v_mov_b32 v{X}, s98
            s_mov_b64 exec, 1
            buffer_store_dword v{X}, v{ZERO}, s[28:31], s100 offen
            s_mov_b64 exec, -1
            """)
            g.label("L_nobump")
            I("s_waitcnt lgkmcnt(0)")
            g.label("L_synced")
            stamp("synced")
            synced = True
        if not gate_done and g.done['A'] > gate_after and n > S1C + 1:
            assert n < SYNC
            gate(); gate_done = True
        if synced:
            k = kgroups_done[0]
            if k < 8 and 4 * k + 3 <= n and g.is_done(f"k{4*k+3}"):
                consume_group(k)
        while w2n < 6 and n == W2POS[w2n]:
            throttle(n, True)
            w2load(w2n); w2n += 1
        while won < len(WOK) and n == WOK[won]:
            assert won < NE and n > S1C
            throttle(n, True)
            woload(won); won += 1
    assert w2n == 6 and gate_done and won == len(WOK) and len(WOK) + len(WOPOS) == 16
    sm = 0; ffn_q = 0
    def after_step(n):
        nonlocal sm, ffn_q
        k = kgroups_done[0]
        if k < 8:
            if g.is_done(f"k{4*k+3}"): consume_group(k)
            return
        if sm == 0:
            softmax1(); sm = 1; return
        if sm == 1:
            softmax2(); build_a(0); build_a(1); sm = 2; stamp("smax")
        elif sm == 2:
            softmax3(); sm = 3
        while vdone[0] <= n and vdone[0] < 32 and g.is_done(f"v{vdone[0]}"):
            pv(vdone[0])
        p = wopairs[0]
        if p < 8 and 2 * p + 1 < won and g.is_done(f"wo{2*p+1}"):
            wo_perm(p)
        elif sm == 3 and ffn_q < 8 and g.is_done("w2_5"):
            if ffn_q % 2 == 0: ffn_mm(ffn_q // 2)
            else: ffn_fold(ffn_q // 2)
            ffn_q += 1
    for n in range(32):
        if PRIO is not None and n == PRIO:
            I("s_cmp_lt_u32 s3, 4\ns_cbranch_scc1 L_prio\ns_setprio 1")
            g.label("L_prio")
        if n == B2AT:
            assert sm == 3
            ml_issue()
        throttle(32 + n)
        if 32 + n in KST: stamp(f"t{32+n}")
        if n < 8: assert kgroups_done[0] > n // 4
        else: assert vdone[0] > n - 8, (n, vdone[0])
        vload(n)
        spf_at(32 + n); vpf_at(32 + n); rk_at(32 + n)
        if n == B2AT: ml_combine()
        after_step(n)
        while won < 16 and n == WOPOS[won - len(WOK)]:
            throttle(32 + n, True)
            assert won < NE or kgroups_done[0] >= (7 if won < NE + 4 else 8), (won, kgroups_done[0])
            assert won < NE + 8 or wopairs[0] > (won - 8) // 2, (won, wopairs[0])
            woload(won); won += 1
            after_step(n)
    assert won == 16 and ffn_q == 8
    def xwb():
        I(f"""
        buffer_store_dword v123, v{V_XL}, s[28:31], s80 offen {XWP}
        s_cmp_lg_u32 s3, 0
        s_cbranch_scc1 L_nobump2
        v_mov_b32 v{TT}, s66
        v_mov_b32 v{TT+1}, 0
        s_mov_b64 exec, 1
        buffer_store_dword v{TT}, v{TT+1}, s[28:31], s100 offen {XWP}
        s_mov_b64 exec, -1
        """)
        g.label("L_nobump2")
    stamp("issued")
    while vdone[0] < 32:
        g.wait(f"v{vdone[0]}")
        after_step(31)
    stamp("lastv")
    if XWB == 1: xwb()
    RS = A4
    def spec_issue():
        I("s_mov_b32 s86, 0x01ff01ff\ns_mov_b32 s87, 0x01ff01ff\ns_mov_b64 exec, s[86:87]")
        g.vm(f"buffer_load_dword v{RS}, v{V_T2}, s[28:31], s82 offen sc1", "sp0")
        g.vm(f"buffer_load_dword v{RS+1}, v{V_T2}, s[28:31], s82 offen offset:256 sc1", "sp1")
        I("s_mov_b64 exec, -1")
    if SPEC == 1: spec_issue()
    I(f"""
    v_permlane32_swap_b32 v{ACC0}, v{ACC0+1}
    v_permlane32_swap_b32 v{ACC0+2}, v{ACC0+3}
    v_permlane32_swap_b32 v{ACC1}, v{ACC1+1}
    v_permlane32_swap_b32 v{ACC1+2}, v{ACC1+3}
    v_add_f32 v{T}, v{ACC0}, v{ACC1+1}
    v_add_f32 v{T+1}, v{ACC0+2}, v{ACC1+3}
    v_mul_f32 v{T}, v{T}, v{V_FAC}
    v_mul_f32 v{T+1}, v{T+1}, v{V_FAC}
    v_cvt_pk_bf16_f32 v{T}, v{T}, v{T+1}
    ds_write_b32 v{V_T0}, v{T} offset:{L_O}
    s_waitcnt lgkmcnt(0)
    s_barrier
    """)
    stamp("b3")
    I(f"ds_read_b128 {r4(AOP)}, v{V_T1} offset:{L_O}")
    I(f"ds_read_b128 {r4(AOP+4)}, v{V_T1} offset:{L_O+64}")
    if SPEC == 2: spec_issue()
    if XWB == 2: xwb()
    while wopairs[0] < 8:
        g.wait(f"wo{2*wopairs[0]+1}")
        wo_perm(wopairs[0])
    TACC = slot(0); E = STG
    I(f"""
    s_mov_b32 s88, {f2u(31.0):#x}
    s_mov_b32 s90, 0x00ff00ff
    s_mov_b32 s91, 0x00ff00ff
    s_mov_b32 s86, 0x01ff01ff
    s_mov_b32 s87, 0x01ff01ff
    s_waitcnt lgkmcnt(0)
    """)
    def ea(c): I(f"v_add_f32_dpp v{E+c}, v{TACC+4*c}, v{TACC+4*c+2} quad_perm:[0,1,2,3] row_mask:0xf bank_mask:0x3")
    def eb(c): I(f"v_add_f32_dpp v{E+c}, v{TACC+4*c+1}, v{TACC+4*c+3} quad_perm:[0,1,2,3] row_mask:0xf bank_mask:0xc")
    def s32(c): I(f"v_permlane32_swap_b32 v{E+c}, v{E+c+2}\nv_add_f32 v{E+c}, v{E+c}, v{E+c+2}")
    def s16(u): I(f"v_permlane16_swap_b32 v{E+4*u}, v{E+4*u+1}\nv_add_f32 v{E+4*u}, v{E+4*u}, v{E+4*u+1}")
    def fin(u): I(f"v_add_f32_dpp v{XU+u}, v{E+4*u}, v{E+4*u} row_ror:8 row_mask:0xf bank_mask:0x3")
    def mm(c):
        for grp in range(2):
            cc = "0" if grp == 0 else r4(TACC + 4 * c)
            I(f"v_mfma_f32_16x16x32_bf16 {r4(TACC+4*c)}, {r4(AOP+4*grp)}, {r4(slot(8)+32*grp+4*c)}, {cc}")
    mm(0); mm(2); mm(1); mm(3); mm(4)
    ea(0); mm(6); eb(0); ea(2); ea(1); mm(5); eb(2); eb(1); ea(3); ea(4); mm(7)
    eb(3); eb(4); s32(0); ea(6); ea(5); s32(1); eb(6); eb(5); ea(7); s16(0); eb(7); s32(4); fin(0)
    s32(5)
    I(f"v_add_f32 v{T}, v{XU}, v{F}\nv_add_f32 v{XU}, v{XU}, v{F}")
    s16(1); fin(1)
    stamp("preat")
    if SPEC:
        I(f"v_add_f32 v{T+1}, v{XU+1}, v{F+1}\nv_add_f32 v{XU+1}, v{XU+1}, v{F+1}\ns_mov_b64 exec, s[86:87]")
        g.wait("sp1")
        I(f"""
        v_mov_b32_dpp v{RS+2}, v{RS} row_newbcast:8 {DPPF}
        v_mov_b32_dpp v{RS+3}, v{RS+1} row_newbcast:8 {DPPF}
        v_cmp_neq_f32 vcc, s88, v{RS+2}
        v_cmp_neq_f32 s[84:85], s88, v{RS+3}
        s_or_b64 s[76:77], vcc, s[84:85]
        v_cndmask_b32 v{T}, v{RS}, v{T}, vcc
        v_cndmask_b32 v{T+1}, v{RS+1}, v{T+1}, s[84:85]
        s_cbranch_scc0 L_noat
        s_mov_b64 exec, s[84:85]
        buffer_atomic_add_f32 v{T+1}, v{V_T2}, s[28:31], s82 offen offset:256 sc0
        s_mov_b64 exec, vcc
        buffer_atomic_add_f32 v{T}, v{V_T2}, s[28:31], s82 offen sc0
        s_mov_b64 exec, s[86:87]
        s_waitcnt vmcnt(0)
        """)
        g.label("L_noat")
    else:
        I(f"""
        v_add_f32 v{T+1}, v{XU+1}, v{F+1}
        s_mov_b64 exec, s[86:87]
        """)
        g.vm(f"buffer_atomic_add_f32 v{T+1}, v{V_C4 if BS else V_T2}, s[28:31], s82 offen offset:{4*BS if BS else 256} sc0 {APOL}", "at1")
        g.vm(f"buffer_atomic_add_f32 v{T}, v{V_C4 if BS else V_T2}, s[28:31], s82 offen sc0 {APOL}", "at0")
        I(f"v_add_f32 v{XU+1}, v{XU+1}, v{F+1}")
        g.wait("at0")
    I(f"""
    v_mov_b32_dpp v{T+2}, v{T} row_newbcast:8 {DPPF}
    v_mov_b32_dpp v{T+3}, v{T+1} row_newbcast:8 {DPPF}
    v_add_f32 v{T}, v{T}, v{XU}
    v_add_f32 v{T+1}, v{T+1}, v{XU+1}
    v_cmp_eq_f32 vcc, s88, v{T+2}
    v_cmp_eq_f32 s[86:87], s88, v{T+3}
    v_cvt_pk_bf16_f32 v{T}, v{T}, v{T+1}
    s_and_b64 exec, vcc, s[90:91]
    s_cbranch_execz L_nost0
    buffer_store_short v{T}, v{V_W2}, s[36:39], s72 offen {OPOL}
    """)
    g.label("L_nost0")
    I(f"""
    s_and_b64 exec, s[86:87], s[90:91]
    s_cbranch_execz L_nost1
    buffer_store_short_d16_hi v{T}, v{V_W2}, s[36:39], s72 offen offset:8 {OPOL}
    """)
    g.label("L_nost1")
    if stamps:
        I("s_mov_b64 exec, -1\ns_memtime s[62:63]")
        stamp("end")
        I(f"""
        s_sub_u32 s62, s62, s64
        v_writelane_b32 v{V_ST}, s62, 14
        s_getreg_b32 s96, hwreg(HW_REG_XCC_ID)
        s_nop 0
        v_writelane_b32 v{V_ST}, s96, 15
        s_lshl_b32 s88, s2, 9
        s_lshl_b32 s89, s3, 6
        s_add_u32 s88, s88, s89
        s_add_u32 s88, s88, {STAMP_OFF}
        s_mov_b64 exec, 0xffff
        buffer_store_dword v{V_ST}, v{V_T2}, s[28:31], s88 offen
        """)
    if ZE:
        I("s_endpgm")
        g.label("L_zero")
        I(f"""
        s_mov_b32 s30, {WS_BYTES}
        s_mov_b32 s31, 0x20000
        s_and_b32 s88, s2, 7
        s_lshl_b32 s88, s88, 12
        s_add_u32 s88, s88, {ACC_OFF}
        v_mov_b32 v{ZERO}, 0
        v_mov_b32 v{ZERO+1}, 0
        v_lshlrev_b32 v{V_T1}, 3, v0
        buffer_store_dwordx2 {r2(ZERO)}, v{V_T1}, s[28:31], s88 offen {ZPOL}
        s_branch L_zret
        """)
    fix_cfg(g)
    body = g.text()
    head = f"""; out = g * attention(x) + (1 - g) * swiglu(x); one workgroup (8 waves) per (batch b, head h), id = 32 b + h.
; @launch grid=(256,1,1) block=(512,1,1) lds={LDS_BYTES}
.amdgcn_target "amdgcn-amd-amdhsa--gfx950"
.text
.globl {KNAME}
.p2align 8
.type {KNAME},@function
{KNAME}:
"""
    foot = f"""L_end:
    s_endpgm
.section .rodata,"a"
.p2align 6
.amdhsa_kernel {KNAME}
  .amdhsa_next_free_vgpr 256
  .amdhsa_next_free_sgpr 102
  .amdhsa_accum_offset 256
  .amdhsa_group_segment_fixed_size 0
  .amdhsa_kernarg_size 104
  .amdhsa_user_sgpr_count 2
  .amdhsa_user_sgpr_kernarg_segment_ptr 1
  .amdhsa_system_sgpr_workgroup_id_x 1
  .amdhsa_float_denorm_mode_32 3
.end_amdhsa_kernel
"""
    return head + body + foot

if __name__ == "__main__":
    out = sys.argv[1]
    kw = {}
    for a in sys.argv[2:]:
        k, v = a.split("=")
        kw[k] = eval(v)
    open(out, "w").write(gen(**kw))
```

```python
import sys, struct
from asmlib import Gen, fix_cfg, cfg_problems

KNAME = "gated_mix__sliding_block_cached__glu_gated_swiglu__decode_kernel"
def f2u(x): return struct.unpack("<I", struct.pack("<f", x))[0]

L_O, L_Q, L_H, L_G, L_ML, L_F = 0, 2304, 2560, 2816, 2848, 2912
L_X = 3072
L_P = L_X + 4096
LDS_BYTES = L_P + 16384
ACC_OFF = 1024 * 1024
STAMP_OFF = 4 * 1024 * 1024
WS_BYTES = 8 * 1024 * 1024

V_L16, V_WO, V_W2, V_KV, V_T0, V_T1, V_T2 = 1, 2, 3, 4, 5, 6, 7
Q = 8; MASK = 12; S = 16; A4 = 24; TT = 28; F = 30; ACC0 = 32; ACC1 = 36; AOP = 40
T = 48
V_S1 = 52; V_FAC = 52; V_MC = 53; V_XL = 54; V_I16 = 55
STG = 56
W2R = 72
X = 104
ZERO = 116
V_G = 120
V_C4 = 122; V_LH = 124; V_ST = 125; XU = 126
SLOT = 128
def slot(n): return SLOT + 4 * n
def r4(b): return f"v[{b}:{b+3}]"
def r2(b): return f"v[{b}:{b+1}]"
DPPF = "row_mask:0xf bank_mask:0xf"

def gen(D=5, PAT=(3,), PATV=None, FAST=0, PT=9, S1C=4, POLL=18, PW=4, SYNC=24, W2POS=(9, 11, 13, 15, 17, 19), WOK=(21, 23, 26, 29),
        WOPOS=(0, 2, 5, 7, 9, 11, 14, 16, 18, 21, 23, 26), B2AT=20, ZF=16, SL=0, BU=8, BW=3, B0=None, S1POS=None, PRE=0, WIDE=0, PEND=(57, 5), NB=None, XW=(), MLF=0, SYF=0, GW=0, ZW=1, PRIO=None, BQ=6, APOL='', OPOL='', ZPOL='sc1', SPEC=0, BS=64, ZE=0, wopol='nt', SPF=None, SPFW=1, SPFX='', VPF=None, VPF2=None, EPF=1, XPF=1, XL='sc1', XWB=0, XWP='sc1', PP='', INV=None, INVP='sc0', TP=None, EWO=1, DZ=None, KST=(), RK=(8, 23, 37), RR0=32, RG=2, RM=8, BP=None, RWG=0, RPERM=None, CP=1,
        stamps=False, kill=""):
    g = Gen(); g.roles = ['A']; g.done = {'A': 0}
    I = g.I
    if B0 is None: B0 = S1C + 2
    names = []
    def stamp(name):
        if stamps and (not KST or name in ("end", "lastv") or name.startswith("t")):
            if name not in names: names.append(name)
            k = names.index(name)
            assert k < 14
            I(f"s_memrealtime s[96:97]\ns_waitcnt lgkmcnt(0)\nv_writelane_b32 v{V_ST}, s96, {k}")
    def kvoff(n):
        return sum(((n >> k) & 1) << b for k, b in enumerate(NB))
    def kload(n):
        if NB:
            I(f"s_xor_b32 s74, s57, {kvoff(n)}")
            g.vm(f"buffer_load_dwordx4 {r4(slot(n))}, v{V_KV}, s[4:7], s74 offen nt", f"k{n}"); return
        if n % 4 == 0 and n > 0: I("s_add_u32 s74, s74, s75")
        g.vm(f"buffer_load_dwordx4 {r4(slot(n))}, v{V_KV}, s[4:7], s74 offen offset:{(n%4)*1024} nt", f"k{n}")
    def vload(n):
        if NB:
            I(f"s_xor_b32 s74, s57, {kvoff(n)}")
            g.vm(f"buffer_load_dwordx4 {r4(slot(n%8))}, v{V_KV}, s[8:11], s74 offen nt", f"v{n}"); return
        if n == 0: I("s_mov_b32 s74, s57")
        if n % 4 == 0 and n > 0: I("s_add_u32 s74, s74, s75")
        g.vm(f"buffer_load_dwordx4 {r4(slot(n%8))}, v{V_KV}, s[8:11], s74 offen offset:{(n%4)*1024} nt", f"v{n}")
    def w2load(j):
        so = ["0", "s84", "s75"][j // 2]
        g.vm(f"buffer_load_dwordx4 {r4(W2R+4*j)}, v{V_W2}, s[16:19], {so} offen offset:{(j%2)*1024} {BP if BP is not None else wopol}", f"w2_{j}")
    NE = 6
    def stage(n):
        if n < 4: return STG + 4 * n
        if n < NE: return W2R + 24 + 4 * (n - 4)
        return slot(24 + (n - NE) % 8)
    def woload(n):
        if n == 0: I("s_mov_b32 s83, 0")
        elif n % 2 == 0: I("s_add_u32 s83, s83, s84")
        if "n" in kill and n % 2 == 0: I(f"s_cmp_eq_u32 s44, {n // 2}\ns_cselect_b32 s14, 0x400000, 0")
        g.vm(f"buffer_load_dwordx4 {r4(stage(n))}, v{V_WO}, s[12:15], s83 offen offset:{(n%2)*2048} {BP if (BP is not None and n < len(WOK)) else TP[1] if (TP and n >= TP[0]) else wopol}", f"wo{n}")
    def s1load(j):
        g.vm(f"buffer_load_dwordx4 {r4(STG+4*j)}, v{V_S1}, s[20:23], s68 offen nt", f"s1_{j}")
        if j < 3: I(f"s_add_u32 s68, s68, {'s67' if j == 1 else 's76'}")

    if stamps: I("s_memrealtime s[60:61]")
    if CP:
        assert EWO and not FAST and not NB
        I(f"""
        s_load_dwordx2 s[12:13], s[0:1], 32
        s_load_dwordx2 s[28:29], s[0:1], 96
        s_lshr_b32 s3, s2, 8
        s_cbranch_scc1 L_end
        v_and_b32 v{V_L16}, 63, v0
        v_lshrrev_b32 v{V_T0}, 6, v0
        v_lshlrev_b32 v123, 7, v{V_L16}
        v_lshl_add_u32 v{V_T1}, v{V_T0}, 11, v123
        """)
        if PT:
            I("; pull the kernel's own code towards L2 while the kernarg load is in flight\ns_getpc_b64 s[52:53]")
            g.label("L_pc")
            I(f"""
            v_min_u32 v{T}, L_end-L_pc, v{V_T1}
            v_mov_b32 v{T+1}, 0
            v_lshl_add_u64 v[{T}:{T+1}], v[{T}:{T+1}], 0, s[52:53]
            s_mov_b64 exec, 0xffff
            global_load_dword v{S}, v[{T}:{T+1}], off
            """)
        else:
            I("s_mov_b64 exec, 0xffff")
        I(f"""
        s_lshr_b32 s44, s2, 5
        s_and_b32 s45, s2, 31
        s_lshl3_add_u32 s56, s45, s44
        s_lshl_b32 s56, s56, 14
        s_lshl_b32 s14, 1, 22
        s_mov_b32 s15, 0x20000
        s_waitcnt lgkmcnt(0)
        """)
        g.vm(f"buffer_load_dword v{S+1}, v{V_T1}, s[12:15], s56 offen {PP}", "pfo")
        if stamps: I("s_memrealtime s[58:59]")
        I(f"""
        s_mov_b64 exec, -1
        s_load_dwordx2 s[4:5], s[0:1], 8
        """)
    else:
        I(f"""
        s_load_dwordx2 s[4:5], s[0:1], 8
        s_load_dwordx2 s[28:29], s[0:1], 96
        {"s_load_dwordx2 s[12:13], s[0:1], 32" if EWO else ""}
        s_lshr_b32 s3, s2, 8
        s_cbranch_scc1 L_end
        v_and_b32 v{V_L16}, 63, v0
        v_lshrrev_b32 v{V_T0}, 6, v0
        v_lshlrev_b32 v{V_L16}, 4, v{V_L16}
        """)
        if PT:
            I("; pull the kernel's own code towards L2 while the kernarg load is in flight\ns_getpc_b64 s[52:53]")
            g.label("L_pc")
            I(f"""
            v_mul_u32_u24 v{V_T2}, {PT*128}, v{V_T0}
            v_lshl_add_u32 v{V_T2}, v{V_L16}, 3, v{V_T2}
            v_min_u32 v{V_T2}, L_end-L_pc, v{V_T2}
            s_mov_b64 exec, {(1 << PT) - 1}
            global_load_dword v{S}, v{V_T2}, s[52:53] {PP}
            s_mov_b64 exec, -1
            """)
        I(f"""
        s_lshl_b32 s74, s2, 20
        v_lshl_add_u32 v{V_KV}, v{V_T0}, 12, v{V_L16}
        s_add_u32 s74, s74, 0xc0000
        s_brev_b32 s6, 8
        s_mov_b32 s7, 0x20000
        """)
        if NB:
            for (src, dst) in XW:
                I(f"s_bfe_u32 s57, s2, {(1<<16)|src:#x}\ns_lshl_b32 s57, s57, {dst}\ns_xor_b32 s74, s74, s57")
            I("s_mov_b32 s57, s74")
        if EWO:
            I(f"""
            s_lshr_b32 s44, s2, 5
            s_and_b32 s45, s2, 31
            s_lshl_b32 s56, s45, 3
            s_add_u32 s56, s56, s44
            s_lshl_b32 s56, s56, 14
            v_lshlrev_b32 v123, 3, v{V_L16}
            v_lshl_add_u32 v{V_T1}, v{V_T0}, 11, v123
            s_mov_b32 s14, 0x400000
            s_mov_b32 s15, s7
            s_mov_b64 exec, 0xffff
            s_waitcnt lgkmcnt(0)
            """)
            g.vm(f"buffer_load_dword v{S+1}, v{V_T1}, s[12:15], s56 offen {PP}", "pfo")
            I("s_mov_b64 exec, -1")
            for n in range(FAST): kload(n)
        elif FAST:
            I("s_waitcnt lgkmcnt(0)")
            for n in range(FAST): kload(n)
    if ZE:
        assert FAST and BS == 64
        I("s_lshr_b32 s88, s2, 3\ns_cmp_eq_u32 s88, 1\ns_cbranch_scc1 L_zero")
        g.label("L_zret")
    if stamps:
        names += ["start", "k0", "k1"]
        if not CP: I("s_memrealtime s[58:59]")
    I(f"""
    v_readfirstlane_b32 s3, v{V_T0}
    s_bfe_u32 s70, s2, 0x20005
    s_load_dwordx2 s[24:25], s[0:1], 0
    s_lshl3_add_u32 s86, s70, 32
    s_cmp_lt_u32 s70, 2
    s_cselect_b32 s86, 24, s86
    s_load_dwordx2 s[20:21], s[0:1], s86
    {"s_load_dwordx2 s[12:13], s[0:1], 32" if (EPF and not EWO) else ""}
    {"s_load_dwordx2 s[16:17], s[0:1], 64" if EPF else ""}
    {"" if EWO else "s_lshr_b32 s44, s2, 5"}
    {"" if EWO else "s_and_b32 s45, s2, 31"}
    ; ffn slice s = (h&7)*4 + (h>>3); chunks [floor((16s+2)/3), next), last one ends at 172
    s_and_b32 s87, s45, 7
    s_lshr_b32 s88, s45, 3
    s_lshl2_add_u32 s87, s87, s88
    s_mul_i32 s87, s87, {16*43691}
    s_add_u32 s87, s87, {2*43691}
    s_lshr_b32 s78, s87, 17
    s_add_u32 s87, s87, {16*43691}
    s_lshr_b32 s79, s87, 17
    s_cmp_eq_u32 s79, 171
    s_addc_u32 s79, s79, 0
    s_sub_u32 s89, s79, s78
    s_movk_i32 s26, 8192
    s_lshl1_add_u32 s87, s45, s70
    s_lshl_b32 s87, s87, 7
    s_lshl_b32 s88, s78, 4
    s_cmp_lt_u32 s70, 2
    s_cselect_b32 s76, s26, 2752
    s_cselect_b32 s87, s87, s88
    s_cselect_b32 s89, 8, s89
    s_lshl_b32 s22, s76, 9
    s_mov_b32 s23, {"s15" if CP else "0x20000"}
    s_mov_b32 s27, {"s15" if CP else "0x20000"}
    s_lshr_b32 s88, s44, 2
    s_lshl3_add_u32 s88, s88, s3
    s_lshl_b32 s69, s88, 6
    s_lshl_b32 s88, s88, 5
    s_mul_i32 s88, s88, s76
    s_add_u32 s68, s87, s88
    s_mul_i32 s67, s76, 15
    v_bfe_u32 v{T}, v0, 3, 3
    v_and_b32 v{V_T2}, 7, v0
    v_lshlrev_b32 v{T+1}, 1, v{T}
    v_lshlrev_b32 v{V_I16}, 4, v{V_T2}
    v_cmp_gt_u32 vcc, s89, v{V_T2}
    v_mad_u32_u24 v{V_S1}, v{T+1}, s76, v{V_I16}
    v_bfrev_b32 v{T+2}, 1
    v_cndmask_b32 v{V_S1}, v{T+2}, v{V_S1}, vcc
    v_lshlrev_b32 v{V_T2}, 3, v{V_T2}
    v_lshl_add_u32 v{T+3}, v{T}, 10, v{V_T2}
    {'' if (NB or CP) else 's_mov_b32 s57, s74'}
    {'' if CP else 's_mov_b32 s75, 0x8000'}
    """)
    if "s" in kill: I("s_mov_b32 s22, 0")
    I("s_waitcnt lgkmcnt(0)")
    if stamps: I("s_memrealtime s[54:55]\ns_memtime s[64:65]")
    XOP = X + 8; Y = X
    s1n = [0]
    def s1_at(n):
        while s1n[0] < 4 and (S1POS is None or S1POS[s1n[0]] <= n):
            s1load(s1n[0]); s1n[0] += 1
    g.vm(f"buffer_load_dwordx2 {r2(XOP)}, v{T+3}, s[24:27], s69 offen", "xop")
    def epf():
        if EWO:
            I(f"""
            s_lshl_b32 s18, s79, 13
            s_mov_b32 s19, s15
            s_lshl3_add_u32 s56, s44, s3
            s_mul_i32 s55, s56, 768
            s_lshl_b32 s87, s78, 13
            s_add_u32 s55, s55, s87
            """)
        else:
            I(f"""
            s_mov_b32 s14, 0x400000
            s_mov_b32 s15, 0x20000
            s_lshl_b32 s18, s79, 13
            s_mov_b32 s19, s15
            s_lshl3_add_u32 s56, s44, s3
            s_mul_i32 s55, s56, 768
            s_lshl_b32 s56, s56, 11
            s_lshl_b32 s87, s45, 17
            s_add_u32 s56, s56, s87
            s_lshl_b32 s87, s78, 13
            s_add_u32 s55, s55, s87
            v_lshlrev_b32 v123, 3, v{V_L16}
            s_mov_b64 exec, 0xffff
            """)
            g.vm(f"buffer_load_dword v{S+1}, v123, s[12:15], s56 offen {PP}", "pfo")
        I("s_mov_b64 exec, 63")
        g.vm(f"buffer_load_dword v{S+2}, v123, s[16:19], s55 offen {PP}", "pf2")
        if XPF:
            I(f"""
            s_mov_b32 s30, {WS_BYTES}
            s_mov_b32 s31, 0x20000
            s_lshl3_add_u32 s55, s44, s3
            s_lshl_b32 s55, s55, 8
            s_lshl_b32 s87, s45, 15
            s_add_u32 s55, s55, s87
            s_mov_b64 exec, 3
            """)
            g.vm(f"buffer_load_dword v{S+3}, v123, s[28:31], s55 offen {PP}", "pfx")
        I("s_mov_b64 exec, -1")
    if EPF == 2: epf()
    s1_at(FAST - 1)
    if EPF == 1: epf()
    if CP:
        I(f"""
        v_lshlrev_b32 v{V_L16}, 4, v{V_L16}
        s_lshl_b32 s74, s2, 20
        v_lshl_add_u32 v{V_KV}, v{V_T0}, 12, v{V_L16}
        s_add_u32 s74, s74, 0xc0000
        s_brev_b32 s6, 8
        s_mov_b32 s7, s15
        s_mov_b32 s57, s74
        s_mov_b32 s75, 0x8000
        """)
    D0 = max(PAT[0] if PAT else D, FAST) if DZ is None else DZ
    for n in range(FAST, D0):
        kload(n); s1_at(n)
    if EPF == 3: epf()
    I(f"""
    s_load_dwordx2 s[8:9], s[0:1], 16
    {"" if EPF else "s_load_dwordx2 s[12:13], s[0:1], 32"}
    {"" if EPF else "s_load_dwordx2 s[16:17], s[0:1], 64"}
    s_load_dwordx2 s[32:33], s[0:1], 88
    s_load_dwordx2 s[36:37], s[0:1], 80
    s_load_dwordx2 s[40:41], s[0:1], 72
    s_lshl_b32 s81, s45, 15
    s_lshl_b32 s87, s3, 7                 ; 128 w
    s_add_u32 s99, s81, 0x4000
    s_lshl_b32 s88, s44, 7
    s_add_u32 s100, s99, s88
    s_add_u32 s99, s99, s87
    s_waitcnt lgkmcnt(0)
    s_load_dword s98, s[28:29], s100
    s_load_dword s85, s[28:29], s99
    {"" if (EPF and XPF) else f"s_mov_b32 s30, {WS_BYTES}"}
    {"" if (EPF and XPF) else "s_mov_b32 s31, 0x20000"}
    s_brev_b32 s10, 8
    s_mov_b32 s11, 0x20000
    {"" if EPF else "s_mov_b32 s14, 0x400000"}
    {"" if EPF else "s_mov_b32 s15, 0x20000"}
    {"" if EPF else "s_lshl_b32 s18, s79, 13"}
    {"" if EPF else "s_mov_b32 s19, 0x20000"}
    s_movk_i32 s34, 256
    s_mov_b32 s35, 0x20000
    s_movk_i32 s38, 8192
    s_mov_b32 s39, 0x20000
    s_movk_i32 s42, 1024
    s_mov_b32 s43, 0x20000
    s_cmp_lg_u32 s3, {GW}
    s_cbranch_scc1 L_nogl
    s_lshl_b32 s88, s44, 10
    buffer_load_dwordx4 {r4(AOP)}, v{V_L16}, s[24:27], s88 offen
    buffer_load_dwordx4 {r4(AOP+4)}, v{V_L16}, s[40:43], 0 offen
    """)
    g.label("L_nogl")
    g.q.append(("gmark", None))
    g.q.pop()
    gate_after = len(g.q)
    I(f"""
    s_mov_b32 s46, 0x05040100
    s_mov_b32 s47, 0x07060302
    s_movk_i32 s84, 16384
    s_mov_b32 s93, {f2u(1.4426950408889634):#x}
    s_mov_b32 s94, {f2u(128 ** -0.5):#x}
    s_mov_b32 s95, 0xffff0000
    s_lshl_b32 s89, s78, 13
    s_add_u32 s89, s89, s87
    v_lshl_add_u32 v{V_W2}, v{T+1}, 10, v{V_I16}
    v_add_u32 v{V_W2}, s89, v{V_W2}
    s_lshl_b32 s89, s45, 17
    s_add_u32 s89, s89, s87
    v_add_u32 v{V_WO}, s89, v{V_I16}
    v_bfe_u32 v{V_T0}, v0, 4, 2
    v_lshl_add_u32 v{V_WO}, v{V_T0}, 12, v{V_WO}
    v_bfe_u32 v{V_T1}, v0, 3, 1
    v_lshl_add_u32 v{V_WO}, v{V_T1}, 10, v{V_WO}
    v_lshl_add_u32 v{V_XL}, v{T}, 11, v{V_I16}
    v_and_b32 v{V_T1}, 1, v0
    v_lshl_add_u32 v{V_T1}, v{V_T0}, 1, v{V_T1}
    v_lshlrev_b32 v{V_LH}, 2, v{V_T1}                ; (2g + kh)*4
    s_lshl_b32 s89, s44, 11
    s_add_u32 s80, s81, s89
    s_lshl_b32 s89, s3, 8
    s_add_u32 s80, s80, s89
    s_lshl_b32 s89, s44, 8
    s_add_u32 s81, s81, s89
    s_and_b32 s89, s87, 128
    s_add_u32 s81, s81, s89
    {"" if BS else "s_lshl_b32 s82, s44, 12"}
    {"" if BS else f"s_add_u32 s82, s82, {ACC_OFF}"}
    s_lshr_b32 s101, s2, 3
    s_lshl_b32 s101, s101, 3
    s_add_u32 s101, s101, s3
    ; masks
    v_and_b32 v{V_T1}, 1, v0
    v_lshlrev_b32 v{V_T1}, 4, v{V_T1}
    v_mov_b32 v{V_T2}, 0xffff
    v_lshlrev_b32 v{V_T1}, v{V_T1}, v{V_T2}
    v_bfe_u32 v{V_T2}, v0, 1, 2
    """)
    fill = [f"v_mov_b32 v{ZERO}, 0\nv_mov_b32 v{ZERO+1}, 0", f"v_mov_b32 v{ZERO+2}, 0\nv_mov_b32 v{ZERO+3}, 0",
            f"v_mov_b32 v{F}, 1.0\nv_mov_b32 v{F+1}, 1.0", f"v_mov_b32 v{XU}, 0\nv_mov_b32 v{XU+1}, 0"]
    for r in range(4):
        I(f"v_cmp_eq_u32 vcc, {r}, v{V_T2}\n{fill[r]}\nv_cndmask_b32 v{MASK+r}, 0, v{V_T1}, vcc")
    if SL:
        I(f"""
        s_lshr_b32 s87, s70, 1
        s_xor_b32 s87, s87, 1
        s_mul_i32 s71, s87, {BU}
        s_sub_u32 s87, s78, s79
        s_add_u32 s87, s87, 6
        s_mul_i32 s87, s87, {BW}
        s_add_u32 s71, s71, s87
        """)
        if BQ:
            I(f"s_and_b32 s87, s2, 0x63\ns_cmp_eq_u32 s87, 0x21\ns_cselect_b32 s87, {BQ}, 0\ns_sub_u32 s71, s71, s87")
    if WIDE == 1:
        I(f"""
        v_and_b32 v{V_T1}, 0xf0, v{V_L16}
        v_bfe_u32 v{V_T2}, v0, 7, 2
        v_lshl_add_u32 v{V_T1}, v{V_T2}, 8, v{V_T1}
        v_bfe_u32 v{V_T2}, v0, 4, 2
        v_lshl_add_u32 v{V_T1}, v{V_T2}, 12, v{V_T1}
        v_bfe_u32 v{V_T2}, v0, 6, 1
        s_lshl_b32 s89, s45, 17
        v_lshl_add_u32 v{V_WO}, v{V_T2}, 10, v{V_T1}
        v_add_u32 v{V_WO}, s89, v{V_WO}
        s_lshl_b32 s89, s78, 13
        v_lshl_add_u32 v{V_W2}, v{V_T2}, 11, v{V_T1}
        v_add_u32 v{V_W2}, s89, v{V_W2}
        """)
    if WIDE == 2:
        I(f"""
        v_bfe_u32 v{V_T2}, v0, 7, 2
        v_lshl_add_u32 v{V_T1}, v{V_T2}, 12, v{V_L16}
        v_bfe_u32 v{V_T2}, v0, 6, 1
        s_lshl_b32 s89, s45, 17
        v_lshl_add_u32 v{V_WO}, v{V_T2}, 10, v{V_T1}
        v_add_u32 v{V_WO}, s89, v{V_WO}
        s_lshl_b32 s89, s78, 13
        v_lshl_add_u32 v{V_W2}, v{V_T2}, 11, v{V_T1}
        v_add_u32 v{V_W2}, s89, v{V_W2}
        """)
    if "o" in kill: I("s_mov_b32 s14, 0")
    if "2" in kill: I("s_mov_b32 s18, 0")
    if "x" in kill: I(f"s_mov_b32 s80, {WS_BYTES}\ns_mov_b32 s81, {WS_BYTES}")
    if BS:
        import math
        lb = int(math.log2(BS))
        I(f"""
        v_bfe_u32 v{V_C4}, v0, 4, 2
        v_and_b32 v{V_T1}, 15, v0
        v_lshlrev_b32 v{V_C4}, {lb}, v{V_C4}
        v_lshl_add_u32 v{V_C4}, v{V_T1}, 2, v{V_C4}
        s_lshr_b32 s88, s2, 3
        s_cmp_lg_u32 s88, {99 if ("z" in kill or ZE) else 1}
        s_cbranch_scc1 L_nozero
        s_and_b32 s88, s2, 7
        s_lshl_b32 s88, s88, 3
        s_add_u32 s88, s88, s3
        s_lshl_b32 s88, s88, {lb+3}
        s_add_u32 s88, s88, {ACC_OFF}
        buffer_store_dword v{ZERO}, v{V_C4}, s[28:31], s88 offen {ZPOL}
        buffer_store_dword v{ZERO}, v{V_C4}, s[28:31], s88 offen offset:{4*BS} {ZPOL}
        """)
        ZF = SYNC + 1
    else:
        I(f"""
        s_cmp_lg_u32 s101, {8+ZW}
        s_cbranch_scc1 L_nozero
        s_and_b32 s88, s2, 7
        s_lshl_b32 s88, s88, 12
        s_add_u32 s88, s88, {ACC_OFF}
        buffer_store_dwordx4 {r4(ZERO)}, v{V_L16}, s[28:31], s88 offen {ZPOL}
        buffer_store_dwordx4 {r4(ZERO)}, v{V_L16}, s[28:31], s88 offen offset:1024 {ZPOL}
        buffer_store_dwordx4 {r4(ZERO)}, v{V_L16}, s[28:31], s88 offen offset:2048 {ZPOL}
        buffer_store_dwordx4 {r4(ZERO)}, v{V_L16}, s[28:31], s88 offen offset:3072 {ZPOL}
        """)
    g.label("L_nozero")
    RSN = [123, 125]
    if RK:
        assert BS == 64
        if stamps: RSN[1] = 121 if False else 103
        I(f"""
        s_and_b32 s50, s2, 7
        s_lshl_b32 s50, s50, 3
        {"" if RWG else "s_add_u32 s50, s50, s3"}
        s_lshl_b32 s50, s50, 9
        s_add_u32 s50, s50, {2*1024*1024}
        s_lshr_b32 s49, s2, 3
        s_lshl_b32 s49, 1, s49
        """)
        if RWG: I(f"s_cmp_eq_u32 s3, 0\ns_cselect_b32 s50, s50, {WS_BYTES}")
        for k in range((len(RK) + 1) // 2):
            g.vm(f"buffer_load_dword v{RSN[k]}, v{V_C4}, s[28:31], s50 offen offset:{256*k}", f"rs{k}")
    if stamps:
        I(f"s_waitcnt lgkmcnt(0)\nv_mov_b32 v{V_ST}, 0\nv_writelane_b32 v{V_ST}, s60, 0\nv_writelane_b32 v{V_ST}, s58, 1\nv_writelane_b32 v{V_ST}, s54, 2")
    stamp("b0")

    W1FR = slot(20); W1ACC = slot(24)
    def stage1a():
        I(f"""
        s_lshl_b32 s87, s3, 9
        s_add_u32 s87, s87, {L_X}
        v_lshrrev_b32 v{A4}, 1, v{V_L16}
        v_add_u32 v{A4}, s87, v{A4}
        v_bfe_u32 v{A4+1}, v0, 1, 3
        v_lshl_add_u32 v{A4+1}, v{A4+1}, 6, v{V_LH}
        v_add_u32 v{A4+1}, s87, v{A4+1}
        """)
        if MLF or SYF or RWG:
            I(f"v_lshrrev_b32 v{A4+2}, 2, v{V_L16}\nv_and_b32 v{A4+2}, 0x7c, v{A4+2}\nds_write_b32 v{A4+2}, v{ZERO} offset:{L_ML}")
        g.wait("xop")
        I(f"""
        ds_write_b64 v{A4}, {r2(XOP)}
        ds_read2_b32 {r2(XOP)}, v{A4+1} offset0:0 offset1:8
        s_lshl_b32 s87, s3, 11
        v_lshl_add_u32 v{A4+2}, v{V_L16}, 1, s87
        """)
        for jj in range(2):
            g.wait(f"s1_{2*jj+1}")
            for q in range(4):
                for e in range(2):
                    I(f"v_perm_b32 v{W1FR+2*(2*q+e)+jj}, v{STG+4*(2*jj+1)+q}, v{STG+4*(2*jj)+q}, s{46+e}")
        I("s_waitcnt lgkmcnt(0)")
        for c in range(8):
            I(f"v_mfma_f32_16x16x16_bf16 {r4(W1ACC+4*c)}, {r2(XOP)}, {r2(W1FR+2*c)}, 0")
        for c in range(8):
            a = W1ACC + 4 * c
            I(f"v_add_f32_dpp v{Y+c}, v{a+1}, v{a} row_ror:8 row_mask:0xf bank_mask:0x3")
        for c in range(8):
            a = W1ACC + 4 * c
            I(f"v_add_f32_dpp v{Y+c}, v{a+2}, v{a+3} row_ror:8 row_mask:0xf bank_mask:0xc")
        I(f"""
        ds_write_b128 v{A4+2}, {r4(Y)} offset:{L_P}
        ds_write_b128 v{A4+2}, {r4(Y+4)} offset:{L_P+16}
        s_getreg_b32 s92, hwreg(HW_REG_XCC_ID, 0, 3)
        s_add_u32 s98, s98, 0x08010101
        s_add_u32 s85, s85, 0x08010101
        s_lshl_b32 s92, s92, 24
        s_and_b32 s73, s98, 0xf8ffffff
        s_or_b32 s73, s73, s92
        s_and_b32 s85, s85, 0xf8ffffff
        s_or_b32 s85, s85, s92
        v_and_b32 v{A4}, 0xf0, v{V_L16}
        v_bfe_u32 v{A4+1}, v0, 4, 2
        s_lshl_b32 s87, s3, 8
        v_lshl_add_u32 v{A4+1}, v{A4+1}, 11, v{A4}
        v_add_u32 v{A4+1}, s87, v{A4+1}
        v_bfe_u32 v{A4+2}, v0, 4, 1
        v_bfe_u32 v{A4+3}, v0, 5, 1
        v_lshl_add_u32 v{A4+2}, v{A4+2}, 1, v{A4+3} ; c4 = 2(g&1) + (g>>1)
        v_lshl_add_u32 v{A4}, v{A4+2}, 2, v{A4}
        v_lshlrev_b32 v{A4+2}, 3, v{A4+2}
        v_lshrrev_b32 v{A4+2}, v{A4+2}, s85
        s_movk_i32 s88, 0xff
        """)
    def stage1b():
        I(f"""
        s_waitcnt lgkmcnt(0)
        s_barrier
        ds_read_b128 {r4(Y)}, v{A4+1} offset:{L_P}
        ds_read_b128 {r4(Y+4)}, v{A4+1} offset:{L_P+8192}
        s_waitcnt lgkmcnt(0)
        v_pk_add_f32 {r2(Y)}, {r2(Y)}, {r2(Y+4)}
        v_pk_add_f32 {r2(Y+2)}, {r2(Y+2)}, {r2(Y+6)}
        v_permlane32_swap_b32 v{Y}, v{Y+1}
        v_permlane32_swap_b32 v{Y+2}, v{Y+3}
        v_add_f32 v{Y}, v{Y}, v{Y+1}
        v_add_f32 v{Y+2}, v{Y+2}, v{Y+3}
        v_permlane16_swap_b32 v{Y}, v{Y+2}
        v_add_f32 v{Y}, v{Y}, v{Y+2}
        v_bfi_b32 v{Y}, s88, v{A4+2}, v{Y}
        """)
        g.vm(f"buffer_store_dword v{Y}, v{A4}, s[28:31], s80 offen", "ex0")
        if XWB: I(f"v_mov_b32 v123, v{Y}\nv_mov_b32 v{V_S1+1}, v{A4}\ns_mov_b32 s66, s98")
        stamp("s1done")

    def allred(v, t, op):
        I(f"""
        {op}_dpp v{v}, v{v}, v{v} row_ror:4 {DPPF}
        {op}_dpp v{v}, v{v}, v{v} row_ror:8 {DPPF}
        v_mov_b32 v{t}, v{v}
        v_permlane16_swap_b32 v{v}, v{t}
        {op} v{v}, v{v}, v{t}
        v_mov_b32 v{t}, v{v}
        v_permlane32_swap_b32 v{v}, v{t}
        {op} v{v}, v{v}, v{t}
        """)

    def gate():
        a, b, c, d = ACC0, ACC0 + 1, ACC0 + 2, ACC0 + 3
        I(f"s_cmp_lg_u32 s3, {GW}\ns_cbranch_scc1 L_nogate")
        for q in range(4):
            I(f"""
            v_lshlrev_b32 v{a}, 16, v{AOP+q}
            v_and_b32 v{b}, s95, v{AOP+q}
            v_lshlrev_b32 v{c}, 16, v{AOP+4+q}
            v_and_b32 v{d}, s95, v{AOP+4+q}
            v_mul_f32 v{a}, v{a}, v{c}
            v_mul_f32 v{b}, v{b}, v{d}
            v_cvt_pk_bf16_f32 v{AOP+q}, v{a}, v{b}
            """)
        I(f"""
        v_mov_b32 v{a}, 0
        v_mov_b32 v{b}, 0x3f803f80
        v_dot2c_f32_bf16 v{a}, v{AOP}, v{b}
        v_dot2c_f32_bf16 v{a}, v{AOP+1}, v{b}
        v_dot2c_f32_bf16 v{a}, v{AOP+2}, v{b}
        v_dot2c_f32_bf16 v{a}, v{AOP+3}, v{b}
        v_add_f32_dpp v{a}, v{a}, v{a} quad_perm:[1,0,3,2] {DPPF}
        v_add_f32_dpp v{a}, v{a}, v{a} quad_perm:[2,3,0,1] {DPPF}
        """)
        allred(a, b, "v_add_f32")
        I(f"""
        v_cvt_pk_bf16_f32 v{a}, v{a}, v{a}
        v_and_b32 v{a}, s95, v{a}
        v_mul_f32 v{a}, s93, v{a}
        v_exp_f32 v{a}, -v{a}
        v_add_f32 v{a}, 1.0, v{a}
        v_rcp_f32 v{a}, v{a}
        v_cvt_pk_bf16_f32 v{a}, v{a}, v{a}
        v_and_b32 v{a}, s95, v{a}
        v_sub_f32 v{b}, 1.0, v{a}
        v_cvt_pk_bf16_f32 v{b}, v{b}, v{b}
        v_and_b32 v{b}, s95, v{b}
        ds_write_b64 v{ZERO}, {r2(a)} offset:{L_G}
        """)
        g.label("L_nogate")

    PX = X + 4
    def consumer():
        I(f"""
        v_bfe_u32 v{X}, v0, 3, 2
        v_lshrrev_b32 v{X+1}, 1, v{V_I16}
        v_lshl_add_u32 v{X}, v{X}, 7, v{X+1}
        v_bfe_u32 v{X+1}, v0, 5, 1
        v_lshl_add_u32 v{X}, v{X+1}, 2, v{X}
        v_and_b32 v{X+1}, 64, v0
        v_add_u32 v{X}, v{X+1}, v{X}
        s_mov_b32 s92, {0 if "x" in kill else 200000}
        s_mov_b32 s88, 0x0c0c0400
        s_mov_b32 s89, 0x04000c0c
        s_mov_b32 s90, -1
        s_movk_i32 s91, 0xff00
        """)
        g.wait("px")
        g.label("L_poll")
        I(f"""
        v_perm_b32 v{X+2}, v{PX+1}, v{PX}, s88
        v_perm_b32 v{X+3}, v{PX+3}, v{PX+2}, s89
        v_or_b32 v{X+2}, v{X+2}, v{X+3}
        v_xor_b32 v{X+2}, s73, v{X+2}
        v_and_b32 v{X+2}, s90, v{X+2}
        v_cmp_ne_u32 vcc, 0, v{X+2}
        s_cbranch_vccz L_polled
        s_sub_u32 s92, s92, 1
        s_cbranch_scc1 L_polled
        s_cmp_gt_u32 s92, {200000 - 5}
        s_cbranch_scc1 L_reload
        s_cmp_eq_u32 s90, -1
        s_cbranch_scc0 L_flushed
        s_mov_b32 s90, 0xf8ffffff
        s_waitcnt vmcnt(0)
        buffer_wbl2 sc1
        s_waitcnt vmcnt(0)""")
        g.label("L_flushed")
        I("buffer_inv sc1")
        g.label("L_reload")
        I(f"""
        buffer_load_dwordx4 {r4(PX)}, v{V_XL}, s[28:31], s81 offen sc1
        s_waitcnt vmcnt(0)
        s_branch L_poll""")
        g.label("L_polled")
        stamp("x2")
        if stamps and not KST: I(f"s_sub_u32 s96, 200000, s92\nv_writelane_b32 v{V_ST}, s96, 1")
        a, b, e0, e1 = X + 8, X + 9, X + 10, X + 11
        I(f"""
        v_and_b32 v{PX}, s91, v{PX}
        v_and_b32 v{PX+2}, s91, v{PX+2}
        v_and_b32 v{PX+1}, s91, v{PX+1}
        v_and_b32 v{PX+3}, s91, v{PX+3}
        v_permlane32_swap_b32 v{PX}, v{PX+2}
        v_permlane32_swap_b32 v{PX+1}, v{PX+3}
        v_add_f32 v{PX}, v{PX}, v{PX+2}
        v_add_f32 v{PX+1}, v{PX+1}, v{PX+3}
        v_cvt_pk_bf16_f32 v{PX}, v{PX}, v{PX+1}
        v_lshlrev_b32 v{a}, 16, v{PX}
        v_and_b32 v{b}, s95, v{PX}
        v_mul_f32 v{e0}, s93, v{a}
        v_mul_f32 v{e1}, s93, v{b}
        v_exp_f32 v{e0}, -v{e0}
        v_exp_f32 v{e1}, -v{e1}
        v_add_f32 v{e0}, 1.0, v{e0}
        v_add_f32 v{e1}, 1.0, v{e1}
        v_rcp_f32 v{e0}, v{e0}
        v_rcp_f32 v{e1}, v{e1}
        v_mul_f32 v{e0}, v{e0}, v{a}
        v_mul_f32 v{e1}, v{e1}, v{b}
        v_cvt_pk_bf16_f32 v{e1}, v{e0}, v{e1}
        v_lshlrev_b32 v{e0}, 16, v{e1}
        v_and_b32 v{e1}, s95, v{e1}
        v_mul_f32_dpp v{e0}, v{a}, v{e0} row_ror:8 {DPPF}
        v_mul_f32_dpp v{e1}, v{b}, v{e1} row_ror:8 {DPPF}
        v_cvt_pk_bf16_f32 v{e0}, v{e0}, v{e1}
        v_mov_b32_dpp v{PX}, v{e0} quad_perm:[0,1,2,3] row_mask:0xa bank_mask:0xf
        ds_write_b32 v{X}, v{PX} offset:{L_Q}
        """)
        if XWB: I(f"v_mov_b32 v{V_XL}, v{V_S1+1}")
        if SYF:
            assert gate_done
            I(f"s_lshl_b32 s88, s3, 2\nv_mov_b32 v{X+1}, s88\nv_mov_b32 v{X+2}, 1\nds_write_b32 v{X+1}, v{X+2} offset:{L_F}")

    kgroups_done = [0]
    def consume_group(k):
        s0 = 4 * k
        for i in range(4):
            I(f"v_dot2_f32_bf16 v{A4+i}, v{slot(s0+i)}, v{Q}, 0")
        for q in range(1, 4):
            for i in (range(4) if q < 3 else (0, 2, 1, 3)):
                I(f"v_dot2c_f32_bf16 v{A4+i}, v{slot(s0+i)+q}, v{Q+q}")
        I(f"""
        v_add_f32_dpp v{TT}, v{A4}, v{A4} row_ror:8 row_mask:0xf bank_mask:0x3
        v_add_f32_dpp v{TT+1}, v{A4+2}, v{A4+2} row_ror:8 row_mask:0xf bank_mask:0x3
        v_add_f32_dpp v{TT}, v{A4+1}, v{A4+1} row_ror:8 row_mask:0xf bank_mask:0xc
        v_add_f32_dpp v{TT+1}, v{A4+3}, v{A4+3} row_ror:8 row_mask:0xf bank_mask:0xc
        v_add_f32_dpp v{S+k}, v{TT}, v{TT} row_half_mirror row_mask:0xf bank_mask:0x5
        v_add_f32_dpp v{S+k}, v{TT+1}, v{TT+1} row_half_mirror row_mask:0xf bank_mask:0xa
        v_add_f32_dpp v{S+k}, v{S+k}, v{S+k} quad_perm:[1,0,3,2] {DPPF}
        v_add_f32_dpp v{S+k}, v{S+k}, v{S+k} quad_perm:[2,3,0,1] {DPPF}
        """)
        if k % 2 == 1:
            a, b = S + k - 1, S + k
            I(f"""
            v_cvt_pk_bf16_f32 v{TT}, v{a}, v{b}
            v_lshlrev_b32 v{a}, 16, v{TT}
            v_and_b32 v{b}, s95, v{TT}
            v_mul_f32 v{a}, s94, v{a}
            v_mul_f32 v{b}, s94, v{b}
            v_cvt_pk_bf16_f32 v{TT}, v{a}, v{b}
            v_lshlrev_b32 v{a}, 16, v{TT}
            v_and_b32 v{b}, s95, v{TT}
            """)
        kgroups_done[0] = k + 1

    def softmax1():
        m = TT
        I(f"""
        v_max3_f32 v{m}, v{S}, v{S+1}, v{S+2}
        v_max3_f32 v{m}, v{m}, v{S+3}, v{S+4}
        v_max3_f32 v{m}, v{m}, v{S+5}, v{S+6}
        v_max_f32 v{m}, v{m}, v{S+7}
        """)
        allred(m, A4, "v_max_f32")
        I(f"v_mul_f32 v{m}, s93, v{m}")
        for k in range(8):
            I(f"v_fma_f32 v{S+k}, v{S+k}, s93, -v{m}")
    def softmax2():
        for k in range(8):
            I(f"v_exp_f32 v{S+k}, v{S+k}")
        l = TT + 1
        I(f"v_add_f32 v{l}, v{S}, v{S+1}")
        for k in range(2, 8):
            I(f"v_add_f32 v{l}, v{l}, v{S+k}")
        for k in range(8):
            I(f"v_cvt_pk_bf16_f32 v{S+k}, v{S+k}, v{S+k}")
    def softmax3():
        allred(TT + 1, A4, "v_add_f32")
        I(f"""
        s_lshl_b32 s88, s3, 3
        v_mov_b32 v{A4}, s88
        v_mov_b32 v{V_MC}, v{TT}
        ds_write_b64 v{A4}, {r2(TT)} offset:{L_ML}
        s_lshl_b32 s99, s44, 5
        s_load_dword s98, s[32:33], s99
        """)

    def ffn_mm(q):
        if q == 0: I(f"v_mov_b32 v{X+3}, 0\nv_mov_b32 v{X+7}, 0")
        for e in range(2):
            for jj in range(3):
                I(f"v_perm_b32 v{X+4*e+jj}, v{W2R+4*(2*jj+1)+q}, v{W2R+4*(2*jj)+q}, s{46+e}")
        for e in range(2):
            I(f"v_mfma_f32_16x16x32_bf16 {r4(X+8+4*e)}, {r4(T)}, {r4(X+4*e)}, 0")
    def ffn_fold(q):
        for e in range(2):
            c = 2 * q + e
            a = X + 8 + 4 * e
            I(f"v_add_f32_dpp v{F+c//4}, v{a+1}, v{a} row_ror:8 row_mask:{1 << (c%4):#x} bank_mask:0x3")
        if q == 3:
            for u in range(2):
                I(f"v_mul_f32_dpp v{F+u}, v{F+u}, v{V_G+1} quad_perm:[0,1,2,3] row_mask:0xf bank_mask:0x3")

    def build_a(t):
        k, half = t // 2, t % 2
        for r in range(4):
            mir = (r >= 2) != (half == 1)
            d = AOP + 4 * (t % 2) + r
            if mir: I(f"v_and_b32_dpp v{d}, v{S+k}, v{MASK+r} row_half_mirror {DPPF}")
            else: I(f"v_and_b32 v{d}, v{S+k}, v{MASK+r}")

    vdone = [0]
    def pv(n):
        t = n // 2
        acc = ACC0 if n % 2 == 0 else ACC1
        c = "0" if n < 2 else r4(acc)
        I(f"v_mfma_f32_16x16x32_bf16 {r4(acc)}, {r4(AOP+4*(t%2))}, {r4(slot(n%8))}, {c}")
        vdone[0] = n + 1
        if n % 2 == 1 and t + 2 < 16: build_a(t + 2)

    wopairs = [0]
    def wo_perm(p):
        grp, jj = p // 4, p % 4
        a, b = stage(2 * p), stage(2 * p + 1)
        for q in range(4):
            for e in range(2):
                I(f"v_perm_b32 v{slot(8)+32*grp+4*(2*q+e)+jj}, v{b+q}, v{a+q}, s{46+e}")
        wopairs[0] = p + 1

    def ml_issue():
        I(f"""
        v_and_b32 v{A4+3}, 7, v0
        v_lshlrev_b32 v{A4+3}, 3, v{A4+3}
        s_waitcnt lgkmcnt(0)
        {"" if MLF else "s_barrier"}
        ds_read_b64 {r2(A4)}, v{A4+3} offset:{L_ML}
        s_cmp_eq_u32 s98, 1
        s_cbranch_scc1 L_zok
        s_mov_b32 s92, 200000
        v_mov_b32 v{TT}, 0
        s_mov_b64 exec, 1""")
        g.label("L_zpoll")
        I(f"""
        buffer_load_dword v{TT+1}, v{TT}, s[32:35], s99 offen sc1
        s_waitcnt vmcnt(0)
        v_cmp_eq_u32 vcc, 1, v{TT+1}
        s_cbranch_vccnz L_zdone
        s_sub_u32 s92, s92, 1
        s_cbranch_scc0 L_zpoll""")
        g.label("L_zdone")
        I("s_mov_b64 exec, -1")
        g.label("L_zok")
    def ml_combine():
        if MLF:
            g.label("L_ml")
            I(f"""
            s_waitcnt lgkmcnt(0)
            v_cmp_eq_u32 vcc, 0, v{A4+1}
            s_cbranch_vccz L_mlok
            ds_read_b64 {r2(A4)}, v{A4+3} offset:{L_ML}
            s_branch L_ml""")
            g.label("L_mlok")
        I(f"""
        s_waitcnt lgkmcnt(0)
        v_max_f32_dpp v{A4+2}, v{A4}, v{A4} quad_perm:[1,0,3,2] {DPPF}
        v_lshrrev_b32 v{V_T2}, 2, v{V_L16}
        s_mul_i32 s88, s3, 288
        v_max_f32_dpp v{A4+2}, v{A4+2}, v{A4+2} quad_perm:[2,3,0,1] {DPPF}
        v_and_b32 v{V_T0}, 32, v0
        v_bfe_u32 v{V_T1}, v0, 1, 3
        v_max_f32_dpp v{A4+2}, v{A4+2}, v{A4+2} row_half_mirror {DPPF}
        v_sub_f32 v{A4}, v{A4}, v{A4+2}
        v_sub_f32 v{V_MC}, v{V_MC}, v{A4+2}
        v_exp_f32 v{A4}, v{A4}
        v_exp_f32 v{V_MC}, v{V_MC}
        v_mul_f32 v{A4}, v{A4}, v{A4+1}
        v_mul_f32 v{V_MC}, v{V_MC}, v{V_G}
        v_mul_u32_u24 v{V_T1}, 288, v{V_T1}
        v_add_f32_dpp v{A4}, v{A4}, v{A4} quad_perm:[1,0,3,2] {DPPF}
        v_and_b32 v{A4+1}, 1, v0
        v_lshl_add_u32 v{V_T1}, v{A4+1}, 7, v{V_T1}
        v_add_f32_dpp v{A4}, v{A4}, v{A4} quad_perm:[2,3,0,1] {DPPF}
        v_lshl_add_u32 v{V_T0}, v{A4+1}, 3, v{V_T0}
        v_and_b32 v{A4+1}, 48, v0
        v_add_f32_dpp v{A4}, v{A4}, v{A4} row_half_mirror {DPPF}
        v_add_u32 v{V_T1}, v{A4+1}, v{V_T1}
        v_rcp_f32 v{A4}, v{A4}
        v_and_b32 v{V_W2}, 0xf0, v{V_L16}
        v_mul_f32 v{V_FAC}, v{V_MC}, v{A4}
        v_bfe_u32 v{A4+1}, v0, 4, 2
        v_lshl_add_u32 v{V_W2}, v{A4+1}, 1, v{V_W2}
        v_bfe_u32 v{A4+2}, v0, 3, 1
        v_lshl_add_u32 v{V_T0}, v{A4+2}, 4, v{V_T0}
        v_bfe_u32 v{A4+2}, v0, 4, 1
        v_lshl_add_u32 v{V_T0}, v{A4+2}, 2, v{V_T0}
        v_bfe_u32 v{A4+2}, v0, 1, 2
        v_add_u32 v{V_T0}, v{A4+2}, v{V_T0}
        v_lshl_add_u32 v{V_T0}, v{V_T0}, 2, s88
        {"" if BS else "s_lshl_b32 s88, s3, 9"}
        {"" if BS else "s_add_u32 s82, s82, s88"}
        s_lshl_b32 s72, s44, 10
        s_lshl_b32 s88, s3, 7
        s_add_u32 s72, s72, s88
        """)
        if BS:
            I(f"s_lshl_b32 s82, s44, 3\ns_add_u32 s82, s82, s3\ns_lshl_b32 s82, s82, {lb+3}\ns_add_u32 s82, s82, {ACC_OFF}")
        if "a" in kill: I(f"s_mov_b32 s82, {WS_BYTES}")

    def kvtag(i): return f"k{i}" if i < 32 else f"v{i-32}"
    L_RK = L_F + 32
    rkmark = {}
    def rk_at(i):
        for c, p in enumerate(RK):
            t0, t1 = (ACC1, ACC1 + 1) if p + 6 < 32 else (V_XL, V_I16)
            assert p + 6 < 32 or p > POLL + PW
            if i == p:
                assert g.is_done(f"rs{c//2}")
                if RWG: I(f"s_cmp_lg_u32 s3, 0\ns_cbranch_scc1 L_rka{c}")
                I(f"v_add_u32 v{t0}, 1, v{RSN[c//2]}")
                I("s_mov_b32 exec_lo, s49\ns_mov_b32 exec_hi, 0" if c % 2 == 0 else "s_mov_b32 exec_lo, 0\ns_mov_b32 exec_hi, s49")
                st = f"buffer_store_dword v{t0}, v{V_C4}, s[28:31], s50 offen offset:{256*(c//2)}"
                ld = f"buffer_load_dword v{t1}, v{V_C4}, s[28:31], s50 offen offset:{256*(c//2)} sc1"
                if RWG: I(st)
                else: g.vm(st, f"rw{c}")
                I("s_mov_b32 exec_lo, -1\ns_mov_b32 exec_hi, 0" if c % 2 == 0 else "s_mov_b32 exec_lo, 0\ns_mov_b32 exec_hi, -1")
                if RWG: I(ld)
                else: g.vm(ld, f"rl{c}")
                I("s_mov_b64 exec, -1")
                if RWG:
                    g.label(f"L_rka{c}")
                    rkmark[c] = len(g.q)
            if i == p + 4:
                if RWG:
                    assert g.done['A'] > rkmark[c]
                    I(f"s_cmp_lg_u32 s3, 0\ns_cbranch_scc1 L_rkb{c}")
                else:
                    g.wait(f"rl{c}")
                I(f"""
                v_cmp_ne_u32 vcc, v{t1}, v{RSN[c//2]}
                s_bcnt1_i32_b32 s48, {"vcc_lo" if c % 2 == 0 else "vcc_hi"}
                s_sub_i32 s48, {RR0}, s48
                s_max_i32 s48, s48, 0
                s_mul_i32 s48, s48, {RG}
                s_lshr_b32 s48, s48, 3
                """)
                if RWG:
                    I(f"v_mov_b32 v{t0}, s48\nv_mov_b32 v{t1}, 0\nds_write_b32 v{t1}, v{t0} offset:{L_RK+4*c}")
                    g.label(f"L_rkb{c}")
            if RWG and i == p + 5:
                I(f"v_mov_b32 v{t1}, 0\nds_read_b32 v{t0}, v{t1} offset:{L_RK+4*c}")
            if RWG and i == p + 6:
                I(f"s_waitcnt lgkmcnt(0)\nv_readfirstlane_b32 s48, v{t0}")
    nth = [0]
    def throttle(i, isw=False):
        throttle1(i, isw)
        if isw: return
        for p in RK:
            RL = 7 if RWG else 5
            if p + RL <= i < p + RL + RM:
                saved = dict(g.done)
                nth[0] += 1
                I(f"s_cmp_le_u32 s48, {RPERM[i - p - RL] if RPERM else i - p - RL}\ns_cbranch_scc1 L_th{nth[0]}")
                g.wait(kvtag(i - 2))
                g.label(f"L_th{nth[0]}")
                g.done = saved
    def throttle1(i, isw=False):
        p = PAT if (i < 32 or PATV is None) else PATV
        if p is None or p == "D":
            g.waitn(D - 1)
        elif not isw:
            d = p[i % len(p)]
            for last in (S1C + 1, SYNC - 1, 32 + B2AT - 1):
                if last - PRE < i <= last: d += PRE - (last - i)
            if PEND and i >= PEND[0]: d = PEND[1]
            if i - d >= 0: g.wait(kvtag(i - d))
        if SL and not isw and B0 <= i < B0 + BU + BW:
            saved = dict(g.done)
            nth[0] += 1
            I(f"s_cmp_le_u32 s71, {i - B0}\ns_cbranch_scc1 L_th{nth[0]}")
            g.wait(kvtag(i - SL))
            g.label(f"L_th{nth[0]}")
            g.done = saved
    vpn = [0]
    def vpf_at(i):
        if VPF2 is not None and i == VPF2:
            I(f"""
            s_lshl_b32 s56, s44, 3
            s_add_u32 s56, s56, s3
            s_mul_i32 s56, s56, 768
            s_lshl_b32 s55, s78, 13
            s_add_u32 s56, s56, s55
            v_lshlrev_b32 v123, 3, v{V_L16}
            s_mov_b64 exec, 63
            buffer_load_dword v{S+1}, v123, s[16:19], s56 offen
            s_mov_b64 exec, -1
            """)
        while VPF and vpn[0] < len(VPF) and i == VPF[vpn[0]]:
            per = 16 // len(VPF)
            I(f"""
            s_lshl_b32 s56, s44, 3
            s_add_u32 s56, s56, s3
            s_mul_i32 s56, s56, {per*128}
            s_lshl_b32 s51, s45, 17
            s_add_u32 s56, s56, s51
            s_add_u32 s56, s56, {vpn[0] * (131072 // len(VPF))}
            v_lshlrev_b32 v123, 3, v{V_L16}
            s_mov_b64 exec, {(1 << per) - 1}
            buffer_load_dword v123, v123, s[48:51], s56 offen
            s_mov_b64 exec, -1
            """.replace("s51", "s55").replace("s[48:55]", "s[48:51]"))
            vpn[0] += 1
    if VPF:
        I("s_mov_b32 s48, s12\ns_mov_b32 s49, s13\ns_mov_b32 s50, 0x400000\ns_mov_b32 s51, 0x20000")
    vpf_at(-1)
    spn = [0]
    def spf_at(i):
        if SPF and spn[0] < 8 and i == SPF[spn[0]]:
            while spn[0] < 8 and i == SPF[spn[0]]:
                p = spn[0]
                if p == 0:
                    I("s_lshl_b32 s56, s44, 3\ns_add_u32 s56, s56, s3\ns_lshl_b32 s56, s56, 8\ns_lshl_b32 s51, s45, 17\ns_add_u32 s56, s56, s51")
                else:
                    I("s_add_u32 s56, s56, s84")
                step = 128 // SPFW
                for k in range(2 * SPFW):
                    if k == 0: I(f"s_load_dword s48, s[12:13], s56 {SPFX}")
                    else: I(f"s_add_u32 s51, s56, {k*step}\ns_load_dword s48, s[12:13], s51 {SPFX}")
                spn[0] += 1
    def sync_reads():
        if SYF: I(f"ds_read_b32 v{X+2}, v{X+1} offset:{L_F}")
        I(f"""
        ds_read_b128 {r4(Q)}, v{V_T0} offset:{L_Q}
        ds_read2_b32 {r2(T)}, v{V_LH} offset0:0 offset1:8
        ds_read2_b32 {r2(T+2)}, v{V_LH} offset0:16 offset1:24
        ds_read_b64 {r2(V_G)}, v{ZERO} offset:{L_G}
        """)
    w2n = 0; won = 0
    synced = False; gate_done = False
    for n in range(D0, 32):
        if n == ZF:
            I(f"""
            s_cmp_lg_u32 s101, {8+ZW}
            s_cbranch_scc1 L_noflag
            v_mov_b32 v{X+1}, 1
            s_and_b32 s86, s2, 7
            s_lshl_b32 s86, s86, 5
            s_mov_b64 exec, 1
            buffer_store_dword v{X+1}, v{ZERO}, s[32:35], s86 offen sc1
            s_mov_b64 exec, -1
            """)
            g.label("L_noflag")
        if n == SYNC:
            stamp("sync")
            I(f"""
            v_and_b32 v{V_T0}, 0xf0, v{V_L16}
            v_add_u32 v{V_LH}, {L_H}, v{V_LH}
            """)
            if SYF: I(f"v_lshrrev_b32 v{X+1}, 2, v{V_I16}")
            else: I("s_waitcnt lgkmcnt(0)\ns_barrier")
            sync_reads()
        throttle(n)
        if n in KST: stamp(f"t{n}")
        kload(n)
        spf_at(n); vpf_at(n); rk_at(n)
        if INV == n:
            I(f"s_cmp_lg_u32 s3, 7\ns_cbranch_scc1 L_noinv\nbuffer_inv {INVP}")
            g.label("L_noinv")
        s1_at(n)
        if n == S1C:
            assert n < 19
            stage1a()
        if n == S1C + 1: stage1b()
        if n == POLL:
            g.vm(f"buffer_load_dwordx4 {r4(PX)}, v{V_XL}, s[28:31], s81 offen {XL}", "px")
        if n == POLL + PW:
            assert n < SYNC
            consumer()
        if n == SYNC:
            if SYF:
                g.label("L_sy")
                I(f"s_waitcnt lgkmcnt(0)\nv_cmp_eq_u32 vcc, 0, v{X+2}\ns_cbranch_vccz L_syok")
                sync_reads()
                I("s_branch L_sy")
                g.label("L_syok")
            I(f"""
            s_cmp_lg_u32 s3, {9 if ("p" in kill or XWB) else 0}
            s_cbranch_scc1 L_nobump
            v_mov_b32 v{X}, s98
            s_mov_b64 exec, 1
            buffer_store_dword v{X}, v{ZERO}, s[28:31], s100 offen
            s_mov_b64 exec, -1
            """)
            g.label("L_nobump")
            I("s_waitcnt lgkmcnt(0)")
            g.label("L_synced")
            stamp("synced")
            synced = True
        if not gate_done and g.done['A'] > gate_after and n > S1C + 1:
            assert n < SYNC
            gate(); gate_done = True
        if synced:
            k = kgroups_done[0]
            if k < 8 and 4 * k + 3 <= n and g.is_done(f"k{4*k+3}"):
                consume_group(k)
        while w2n < 6 and n == W2POS[w2n]:
            throttle(n, True)
            w2load(w2n); w2n += 1
        while won < len(WOK) and n == WOK[won]:
            assert won < NE and n > S1C
            throttle(n, True)
            woload(won); won += 1
    assert w2n == 6 and gate_done and won == len(WOK) and len(WOK) + len(WOPOS) == 16
    sm = 0; ffn_q = 0
    def after_step(n):
        nonlocal sm, ffn_q
        k = kgroups_done[0]
        if k < 8:
            if g.is_done(f"k{4*k+3}"): consume_group(k)
            return
        if sm == 0:
            softmax1(); sm = 1; return
        if sm == 1:
            softmax2(); build_a(0); build_a(1); sm = 2; stamp("smax")
        elif sm == 2:
            softmax3(); sm = 3
        while vdone[0] <= n and vdone[0] < 32 and g.is_done(f"v{vdone[0]}"):
            pv(vdone[0])
        p = wopairs[0]
        if p < 8 and 2 * p + 1 < won and g.is_done(f"wo{2*p+1}"):
            wo_perm(p)
        elif sm == 3 and ffn_q < 8 and g.is_done("w2_5"):
            if ffn_q % 2 == 0: ffn_mm(ffn_q // 2)
            else: ffn_fold(ffn_q // 2)
            ffn_q += 1
    for n in range(32):
        if PRIO is not None and n == PRIO:
            I("s_cmp_lt_u32 s3, 4\ns_cbranch_scc1 L_prio\ns_setprio 1")
            g.label("L_prio")
        if n == B2AT:
            assert sm == 3
            ml_issue()
        throttle(32 + n)
        if 32 + n in KST: stamp(f"t{32+n}")
        if n < 8: assert kgroups_done[0] > n // 4
        else: assert vdone[0] > n - 8, (n, vdone[0])
        vload(n)
        spf_at(32 + n); vpf_at(32 + n); rk_at(32 + n)
        if n == B2AT: ml_combine()
        after_step(n)
        while won < 16 and n == WOPOS[won - len(WOK)]:
            throttle(32 + n, True)
            assert won < NE or kgroups_done[0] >= (7 if won < NE + 4 else 8), (won, kgroups_done[0])
            assert won < NE + 8 or wopairs[0] > (won - 8) // 2, (won, wopairs[0])
            woload(won); won += 1
            after_step(n)
    assert won == 16 and ffn_q == 8
    def xwb():
        I(f"""
        buffer_store_dword v123, v{V_XL}, s[28:31], s80 offen {XWP}
        s_cmp_lg_u32 s3, 0
        s_cbranch_scc1 L_nobump2
        v_mov_b32 v{TT}, s66
        v_mov_b32 v{TT+1}, 0
        s_mov_b64 exec, 1
        buffer_store_dword v{TT}, v{TT+1}, s[28:31], s100 offen {XWP}
        s_mov_b64 exec, -1
        """)
        g.label("L_nobump2")
    stamp("issued")
    while vdone[0] < 32:
        g.wait(f"v{vdone[0]}")
        after_step(31)
    stamp("lastv")
    if XWB == 1: xwb()
    RS = A4
    def spec_issue():
        I("s_mov_b32 s86, 0x01ff01ff\ns_mov_b32 s87, 0x01ff01ff\ns_mov_b64 exec, s[86:87]")
        g.vm(f"buffer_load_dword v{RS}, v{V_T2}, s[28:31], s82 offen sc1", "sp0")
        g.vm(f"buffer_load_dword v{RS+1}, v{V_T2}, s[28:31], s82 offen offset:256 sc1", "sp1")
        I("s_mov_b64 exec, -1")
    if SPEC == 1: spec_issue()
    I(f"""
    v_permlane32_swap_b32 v{ACC0}, v{ACC0+1}
    v_permlane32_swap_b32 v{ACC0+2}, v{ACC0+3}
    v_permlane32_swap_b32 v{ACC1}, v{ACC1+1}
    v_permlane32_swap_b32 v{ACC1+2}, v{ACC1+3}
    v_add_f32 v{T}, v{ACC0}, v{ACC1+1}
    v_add_f32 v{T+1}, v{ACC0+2}, v{ACC1+3}
    v_mul_f32 v{T}, v{T}, v{V_FAC}
    v_mul_f32 v{T+1}, v{T+1}, v{V_FAC}
    v_cvt_pk_bf16_f32 v{T}, v{T}, v{T+1}
    ds_write_b32 v{V_T0}, v{T} offset:{L_O}
    s_waitcnt lgkmcnt(0)
    s_barrier
    """)
    stamp("b3")
    I(f"ds_read_b128 {r4(AOP)}, v{V_T1} offset:{L_O}")
    I(f"ds_read_b128 {r4(AOP+4)}, v{V_T1} offset:{L_O+64}")
    if SPEC == 2: spec_issue()
    if XWB == 2: xwb()
    while wopairs[0] < 8:
        g.wait(f"wo{2*wopairs[0]+1}")
        wo_perm(wopairs[0])
    TACC = slot(0); E = STG
    I(f"""
    s_mov_b32 s88, {f2u(31.0):#x}
    s_mov_b32 s90, 0x00ff00ff
    s_mov_b32 s91, 0x00ff00ff
    s_mov_b32 s86, 0x01ff01ff
    s_mov_b32 s87, 0x01ff01ff
    s_waitcnt lgkmcnt(0)
    """)
    def ea(c): I(f"v_add_f32_dpp v{E+c}, v{TACC+4*c}, v{TACC+4*c+2} quad_perm:[0,1,2,3] row_mask:0xf bank_mask:0x3")
    def eb(c): I(f"v_add_f32_dpp v{E+c}, v{TACC+4*c+1}, v{TACC+4*c+3} quad_perm:[0,1,2,3] row_mask:0xf bank_mask:0xc")
    def s32(c): I(f"v_permlane32_swap_b32 v{E+c}, v{E+c+2}\nv_add_f32 v{E+c}, v{E+c}, v{E+c+2}")
    def s16(u): I(f"v_permlane16_swap_b32 v{E+4*u}, v{E+4*u+1}\nv_add_f32 v{E+4*u}, v{E+4*u}, v{E+4*u+1}")
    def fin(u): I(f"v_add_f32_dpp v{XU+u}, v{E+4*u}, v{E+4*u} row_ror:8 row_mask:0xf bank_mask:0x3")
    def mm(c):
        for grp in range(2):
            cc = "0" if grp == 0 else r4(TACC + 4 * c)
            I(f"v_mfma_f32_16x16x32_bf16 {r4(TACC+4*c)}, {r4(AOP+4*grp)}, {r4(slot(8)+32*grp+4*c)}, {cc}")
    mm(0); mm(2); mm(1); mm(3); mm(4)
    ea(0); mm(6); eb(0); ea(2); ea(1); mm(5); eb(2); eb(1); ea(3); ea(4); mm(7)
    eb(3); eb(4); s32(0); ea(6); ea(5); s32(1); eb(6); eb(5); ea(7); s16(0); eb(7); s32(4); fin(0)
    s32(5)
    I(f"v_add_f32 v{T}, v{XU}, v{F}\nv_add_f32 v{XU}, v{XU}, v{F}")
    s16(1); fin(1)
    stamp("preat")
    if SPEC:
        I(f"v_add_f32 v{T+1}, v{XU+1}, v{F+1}\nv_add_f32 v{XU+1}, v{XU+1}, v{F+1}\ns_mov_b64 exec, s[86:87]")
        g.wait("sp1")
        I(f"""
        v_mov_b32_dpp v{RS+2}, v{RS} row_newbcast:8 {DPPF}
        v_mov_b32_dpp v{RS+3}, v{RS+1} row_newbcast:8 {DPPF}
        v_cmp_neq_f32 vcc, s88, v{RS+2}
        v_cmp_neq_f32 s[84:85], s88, v{RS+3}
        s_or_b64 s[76:77], vcc, s[84:85]
        v_cndmask_b32 v{T}, v{RS}, v{T}, vcc
        v_cndmask_b32 v{T+1}, v{RS+1}, v{T+1}, s[84:85]
        s_cbranch_scc0 L_noat
        s_mov_b64 exec, s[84:85]
        buffer_atomic_add_f32 v{T+1}, v{V_T2}, s[28:31], s82 offen offset:256 sc0
        s_mov_b64 exec, vcc
        buffer_atomic_add_f32 v{T}, v{V_T2}, s[28:31], s82 offen sc0
        s_mov_b64 exec, s[86:87]
        s_waitcnt vmcnt(0)
        """)
        g.label("L_noat")
    else:
        I(f"""
        v_add_f32 v{T+1}, v{XU+1}, v{F+1}
        s_mov_b64 exec, s[86:87]
        """)
        g.vm(f"buffer_atomic_add_f32 v{T+1}, v{V_C4 if BS else V_T2}, s[28:31], s82 offen offset:{4*BS if BS else 256} sc0 {APOL}", "at1")
        g.vm(f"buffer_atomic_add_f32 v{T}, v{V_C4 if BS else V_T2}, s[28:31], s82 offen sc0 {APOL}", "at0")
        I(f"v_add_f32 v{XU+1}, v{XU+1}, v{F+1}")
        g.wait("at0")
    I(f"""
    v_mov_b32_dpp v{T+2}, v{T} row_newbcast:8 {DPPF}
    v_mov_b32_dpp v{T+3}, v{T+1} row_newbcast:8 {DPPF}
    v_add_f32 v{T}, v{T}, v{XU}
    v_add_f32 v{T+1}, v{T+1}, v{XU+1}
    v_cmp_eq_f32 vcc, s88, v{T+2}
    v_cmp_eq_f32 s[86:87], s88, v{T+3}
    v_cvt_pk_bf16_f32 v{T}, v{T}, v{T+1}
    s_and_b64 exec, vcc, s[90:91]
    s_cbranch_execz L_nost0
    buffer_store_short v{T}, v{V_W2}, s[36:39], s72 offen {OPOL}
    """)
    g.label("L_nost0")
    I(f"""
    s_and_b64 exec, s[86:87], s[90:91]
    s_cbranch_execz L_nost1
    buffer_store_short_d16_hi v{T}, v{V_W2}, s[36:39], s72 offen offset:8 {OPOL}
    """)
    g.label("L_nost1")
    if stamps:
        I("s_mov_b64 exec, -1\ns_memtime s[62:63]")
        stamp("end")
        I(f"""
        s_sub_u32 s62, s62, s64
        v_writelane_b32 v{V_ST}, s62, 14
        s_getreg_b32 s96, hwreg(HW_REG_XCC_ID)
        s_nop 0
        v_writelane_b32 v{V_ST}, s96, 15
        s_lshl_b32 s88, s2, 9
        s_lshl_b32 s89, s3, 6
        s_add_u32 s88, s88, s89
        s_add_u32 s88, s88, {STAMP_OFF}
        s_mov_b64 exec, 0xffff
        buffer_store_dword v{V_ST}, v{V_T2}, s[28:31], s88 offen
        """)
    if ZE:
        I("s_endpgm")
        g.label("L_zero")
        I(f"""
        s_mov_b32 s30, {WS_BYTES}
        s_mov_b32 s31, 0x20000
        s_and_b32 s88, s2, 7
        s_lshl_b32 s88, s88, 12
        s_add_u32 s88, s88, {ACC_OFF}
        v_mov_b32 v{ZERO}, 0
        v_mov_b32 v{ZERO+1}, 0
        v_lshlrev_b32 v{V_T1}, 3, v0
        buffer_store_dwordx2 {r2(ZERO)}, v{V_T1}, s[28:31], s88 offen {ZPOL}
        s_branch L_zret
        """)
    fix_cfg(g)
    body = g.text()
    head = f"""; out = g * attention(x) + (1 - g) * swiglu(x); one workgroup (8 waves) per (batch b, head h), id = 32 b + h.
; @launch grid=(256,1,1) block=(512,1,1) lds={LDS_BYTES}
.amdgcn_target "amdgcn-amd-amdhsa--gfx950"
.text
.globl {KNAME}
.p2align 8
.type {KNAME},@function
{KNAME}:
"""
    foot = f"""L_end:
    s_endpgm
.section .rodata,"a"
.p2align 6
.amdhsa_kernel {KNAME}
  .amdhsa_next_free_vgpr 256
  .amdhsa_next_free_sgpr 102
  .amdhsa_accum_offset 256
  .amdhsa_group_segment_fixed_size 0
  .amdhsa_kernarg_size 104
  .amdhsa_user_sgpr_count 2
  .amdhsa_user_sgpr_kernarg_segment_ptr 1
  .amdhsa_system_sgpr_workgroup_id_x 1
  .amdhsa_float_denorm_mode_32 3
.end_amdhsa_kernel
"""
    return head + body + foot

if __name__ == "__main__":
    out = sys.argv[1]
    kw = {}
    for a in sys.argv[2:]:
        k, v = a.split("=")
        kw[k] = eval(v)
    open(out, "w").write(gen(**kw))
```
